```python
import torch

def _softmax(x, axis=-1):
    return torch.softmax(x, dim=axis)
def _gelu(x):
    return torch.nn.functional.gelu(x, approximate="tanh")
def _silu(x):
    return torch.nn.functional.silu(x)
def _sigmoid(x):
    return torch.sigmoid(x)
def _layernorm(x, axis=-1, eps=1e-5):
    m = x.mean(dim=axis, keepdim=True)
    v = x.var(dim=axis, keepdim=True, unbiased=False)
    return (x - m) / torch.sqrt(v + eps)
def _scatter_add(tgt, idx, src, axis=0):
    return tgt.clone().index_add_(axis, idx, src)
def _segment_sum(src, seg, n):
    out = torch.zeros((n,) + src.shape[1:], dtype=src.dtype)
    return out.index_add_(0, seg, src)
def _pad(x, pw):
    flat = tuple(v for pair in reversed(pw) for v in pair)
    return torch.nn.functional.pad(x, flat)

kernel_name = 'parallel_sum__linear_kernel_hedgehog__glu_gated_geglu__prompt'

def setup_inputs():

    _w = (lambda a: (lambda t: t.to(torch.bfloat16) if t.is_floating_point() else t)(torch.as_tensor(a)))
    def _A_setup():
        B, S, D, H = 1, 2048, 448, 16
        Dh = D // H
        return {
            "x": _w((lambda *s: torch.randn(*s, dtype=torch.bfloat16) * 0.05)(B, S, D)),
            "wqkv": _w((lambda *s: torch.randn(*s, dtype=torch.bfloat16) * 0.2)(D, 3 * D)),
            "w_phi": _w((lambda *s: torch.randn(*s, dtype=torch.bfloat16) * 0.2)(H, Dh, Dh) * (Dh ** -0.5)),
            "wo": _w((lambda *s: torch.randn(*s, dtype=torch.bfloat16) * 0.05)(D, D)),
        }
    _A_in = _A_setup()

    def _B_setup():
        B, S, Dm, Df = 1, 2048, 448, 1792
        return {
            "x": _w((lambda *s: torch.randn(*s, dtype=torch.bfloat16) * 0.05)(B, S, Dm)),
            "w_gate": _w((lambda *s: torch.randn(*s, dtype=torch.bfloat16) * 0.4)(Dm, Df) * (Dm ** -0.5)),
            "w_up": _w((lambda *s: torch.randn(*s, dtype=torch.bfloat16) * 0.4)(Dm, Df) * (Dm ** -0.5)),
            "w_down": _w((lambda *s: torch.randn(*s, dtype=torch.bfloat16) * 0.4)(Df, Dm) * (Df ** -0.5)),
        }
    _B_in = _B_setup()

    return {
        "A_x": _A_in["x"],
        "A_wqkv": _A_in["wqkv"],
        "A_w_phi": _A_in["w_phi"],
        "A_wo": _A_in["wo"],
        "B_x": _B_in["x"],
        "B_w_gate": _B_in["w_gate"],
        "B_w_up": _B_in["w_up"],
        "B_w_down": _B_in["w_down"],
    }

def reference(A_x, A_wqkv, A_w_phi, A_wo, B_x, B_w_gate, B_w_up, B_w_down):
    def _A_ref(x, wqkv, w_phi, wo):
        B, S, D = x.shape
        H = 16; Dh = D // H
        qkv = (lambda x, *d: x.permute(*d))((x @ wqkv).reshape(B, S, 3, H, Dh), 2, 0, 3, 1, 4)
        q, k, v = qkv[0], qkv[1], qkv[2]
        pq = torch.einsum("bhsd,hdf->bhsf", q, w_phi)
        pk = torch.einsum("bhsd,hdf->bhsf", k, w_phi)
        phi_q = torch.concatenate([_softmax(pq, axis=-1), _softmax(-pq, axis=-1)], axis=-1)
        phi_k = torch.concatenate([_softmax(pk, axis=-1), _softmax(-pk, axis=-1)], axis=-1)
        kv = torch.einsum("bhsf,bhsd->bhfd", phi_k, v)
        z  = torch.einsum("bhsf->bhf", phi_k)
        num = torch.einsum("bhqf,bhfd->bhqd", phi_q, kv)
        den = torch.einsum("bhqf,bhf->bhq", phi_q, z)[..., None] + 1e-6
        o = num / den
        return (lambda x, *d: x.permute(*d))(o, 0, 2, 1, 3).reshape(B, S, D) @ wo

    def _B_ref(x, w_gate, w_up, w_down):
        g = torch.einsum("bsd,df->bsf", x, w_gate)
        u = torch.einsum("bsd,df->bsf", x, w_up)
        h = _gelu(g) * u
        return torch.einsum("bsf,fd->bsd", h, w_down)

    x = A_x
    xn = _layernorm(x, axis=-1)
    return x + _A_ref(xn, A_wqkv, A_w_phi, A_wo) + _B_ref(xn, B_w_gate, B_w_up, B_w_down)
```

```python
NAME = 'parallel_sum__linear_kernel_hedgehog__glu_gated_geglu__prompt'
HEADER = '''; Kernarg layout for this problem (88 bytes, ptrs only, base s[0:1]):
'''
class Asm:
    def __init__(self):
        self.lines = []
        self.uid = 0
    def __call__(self, s):
        for l in s.strip('\n').split('\n'):
            l = l.strip()
            if not l: continue
            if l.endswith(':') or l.startswith('.') or l.startswith(';'):
                self.lines.append(l)
            else:
                self.lines.append('    ' + l)
    def label(self, base='L'):
        self.uid += 1
        return f'{base}_{self.uid}'
    def text(self):
        return '\n'.join(self.lines) + '\n'

def v(i, n=1):
    return f'v{i}' if n == 1 else f'v[{i}:{i+n-1}]'
def a(i, n=1):
    return f'a{i}' if n == 1 else f'a[{i}:{i+n-1}]'
def s(i, n=1):
    return f's{i}' if n == 1 else f's[{i}:{i+n-1}]'

def kernel_begin(A, name):
    A(f'.globl {name}\n.p2align 8\n.type {name},@function\n{name}:')

def kernel_desc(name, vgpr, sgpr=102, accum=None):
    if accum is None: accum = min(256, (vgpr + 3)//4*4)
    return f'''.p2align 6
.amdhsa_kernel {name}
  .amdhsa_next_free_vgpr {vgpr}
  .amdhsa_next_free_sgpr {sgpr}
  .amdhsa_accum_offset {accum}
  .amdhsa_group_segment_fixed_size 0
  .amdhsa_kernarg_size 88
  .amdhsa_user_sgpr_count 2
  .amdhsa_user_sgpr_kernarg_segment_ptr 1
  .amdhsa_system_sgpr_workgroup_id_x 1
  .amdhsa_float_denorm_mode_32 3
.end_amdhsa_kernel
'''

def assemble_file(launches, body, descs):
    out = HEADER
    if len(launches) == 1 and launches[0][0] == NAME + '_kernel':
        k, g, b, l = launches[0]
        out += f'; @launch grid=({g},1,1) block=({b},1,1) lds={l}\n'
    else:
        for k, g, b, l in launches:
            out += f'; @launch kernel={k} grid=({g},1,1) block=({b},1,1) lds={l}\n'
    out += '.amdgcn_target "amdgcn-amd-amdhsa--gfx950"\n.text\n'
    out += body
    out += '.section .rodata,"a"\n'
    out += ''.join(descs)
    return out
```

```python
import re
TRANS = ('v_exp_f32','v_log_f32','v_rcp_f32','v_rsq_f32','v_sqrt_f32','v_sin_f32','v_cos_f32')
def regs(tok):
    tok = tok.strip()
    tok = tok.lstrip('-')
    m = re.fullmatch(r'abs\((.*)\)', tok)
    if m: tok = m.group(1)
    m = re.fullmatch(r'([vas])(\d+)', tok)
    if m: return {(m.group(1), int(m.group(2)))}
    m = re.fullmatch(r'([vas])\[(\d+):(\d+)\]', tok)
    if m: return {(m.group(1), i) for i in range(int(m.group(2)), int(m.group(3))+1)}
    if tok == 'vcc': return {('s', 106), ('s', 107)}
    if tok == 'vcc_lo': return {('s', 106)}
    if tok == 'vcc_hi': return {('s', 107)}
    if tok == 'm0': return {('s', 124)}
    if tok == 'exec': return {('s', 126), ('s', 127)}
    if tok in ('exec_lo',): return {('s', 126)}
    if tok in ('exec_hi',): return {('s', 127)}
    return set()
def parse(line):
    line = line.split(';')[0].strip()
    if not line or line.endswith(':') or line.startswith('.'): return None
    p = line.split(None, 1)
    op = p[0]; rest = p[1] if len(p) > 1 else ''
    ops = [x.strip() for x in re.split(r',(?![^\[]*\])', rest)]
    if ops:
        last = ops[-1].split()
        mods = last[1:]; ops[-1] = last[0] if last else ''
    else: mods = []
    d = set(); u = set(); kind = 'other'; srcc = set(); data = set()
    R = [regs(o) for o in ops]
    if op.startswith('v_mfma'):
        kind = 'mfma'; d = R[0]; u = R[1] | R[2] | R[3]; srcc = R[3]
    elif op.startswith('v_cmp'):
        kind = 'valu'; d = R[0]; u = set().union(*R[1:])
    elif op.startswith('v_permlane') and 'swap' in op:
        kind = 'valu'; d = R[0] | R[1]; u = R[0] | R[1]
    elif op.startswith('v_'):
        kind = 'valu'; d = R[0]; u = set().union(*R[1:]) if len(R) > 1 else set()
        if op.startswith(('v_fmac', 'v_dot2c')) or 'dpp' in op: u |= R[0]
        if op.startswith('v_cndmask') and len(ops) == 3: u |= regs('vcc')
    elif op.startswith('ds_read'):
        kind = 'ds'; d = R[0]; u = R[1]
    elif op.startswith('ds_'):
        kind = 'ds'; u = set().union(*R); data = set().union(*R[1:])
    elif op.startswith(('buffer_load', 'global_load')):
        kind = 'vmem'
        if 'lds' in mods: u = set().union(*R) | regs('m0')
        else: d = R[0]; u = set().union(*R[1:])
    elif op.startswith(('buffer_store', 'buffer_atomic', 'global_store')):
        kind = 'vmem'; u = set().union(*R); data = R[0]
    elif op.startswith('s_'):
        kind = 'salu'
        if op.startswith(('s_cmp', 's_cbranch', 's_branch', 's_waitcnt', 's_barrier', 's_nop', 's_sleep', 's_setprio', 's_endpgm', 's_bitcmp')):
            u = set().union(*R) if R else set()
        else:
            d = R[0]; u = set().union(*R[1:]) if len(R) > 1 else set()
    states = 1
    if op == 's_nop': states = int(ops[0], 0) + 1
    passes = 8 if '32x32x16' in op else 4 if '16x16x' in op else 0
    return dict(op=op, d=d, u=u, kind=kind, srcc=srcc, data=data, states=states, passes=passes, mods=mods, line=line, ops=ops)
def check(text, verbose=True):
    ins = [x for x in (parse(l) for l in text.split('\n')) if x]
    errs = []
    for i, c in enumerate(ins):
        dist = 0
        for j in range(i-1, max(-1, i-24), -1):
            p = ins[j]
            need = 0; why = ''
            vec = lambda S: {r for r in S if r[0] in 'va'}
            sc = lambda S: {r for r in S if r[0] == 's'}
            if p['kind'] == 'valu' and c['kind'] == 'mfma' and vec(p['d']) & c['u']: need, why = 2, 'valu->mfma'
            if p['kind'] == 'mfma':
                n = {8: 12, 4: 8}[p['passes']]
                if c['kind'] == 'mfma':
                    if p['d'] & (c['u'] - c['srcc']) : need, why = n, 'mfma D->A/B'
                    elif p['d'] & c['srcc'] and (p['d'] != c['srcc'] or p['passes'] != c['passes']): need, why = n-2, 'mfma D->C partial'
                    elif p['d'] & c['d'] and not (p['d'] == c['srcc']): need, why = n, 'mfma WAW mfma (conservative)'
                elif p['d'] & (c['u'] | c['d']): need, why = n, 'mfma D->' + c['kind']
                elif c['kind'] == 'valu' and p['srcc'] & c['d']: need, why = {8: 7, 4: 3}[p['passes']], 'mfma srcC WAR'
            if p['kind'] == 'valu' and c['kind'] == 'valu':
                if p['op'].startswith(TRANS) and not c['op'].startswith(TRANS) and p['d'] & c['u']: need, why = max(need, 1), 'trans->valu'
                if (c['op'].startswith('v_permlane') or 'dpp' in c['op']) and vec(p['d']) & c['u']: need, why = 2, 'valu->permlane/dpp'
                if c['op'].startswith(('v_readfirstlane', 'v_readlane')) and vec(p['d']) & c['u']: need, why = max(need,1), 'valu->readlane'
                if sc(p['d']) & c['u']: need, why = 2, 'valu sgpr->valu const'
            if p['kind'] == 'valu' and c['kind'] == 'vmem' and sc(p['d']) & c['u']: need, why = 5, 'valu sgpr->vmem'
            if p['kind'] == 'salu' and ('s',124) in p['d'] and c['kind'] == 'vmem' and 'lds' in c['mods']: need, why = 1, 'm0->dma'
            if p['kind'] == 'vmem' and len(p['data']) >= 3 and p['data'] & c['d']: need, why = 2, 'store data WAR'
            if need > dist:
                errs.append((i, why, need, dist, p['line'], c['line']))
            dist += p['states']
            if dist >= 20: break
    if verbose:
        for e in errs[:40]: print('HAZARD', e)
    return errs
if __name__ == '__main__':
    import sys
    e = check(open(sys.argv[1]).read())
    print(len(e), 'hazards')
```

```python
import sys, struct, math
from asmgen import *

def f2u(x): return struct.unpack('<I', struct.pack('<f', x))[0]

WS_H    = 0
WS_KVP  = 10 << 20
WS_ST   = 12 << 20
WS_HF   = WS_ST + 32768
WS_OF   = WS_HF + 4096
WS_KF   = WS_OF + 4096
WS_STAMP = 128 << 20
XW = 24576
WB = 98304; WS_ = 20736
MISC = WB + 3*WS_
L_PHI = MISC; L_CS = MISC + 2048
L_KVF = WB + 57344
SP = 208
RP = 272
NLDS = 163840

sWave, sRb = 26, 27
SX, SQ, SG, SU, SD, SO, SW, SOUT, SDBG, SPH, SGU = 28, 32, 36, 40, 44, 48, 52, 56, 60, 64, 68
sG, sU, sJ, sCg, sSt, sXb, sQb, sFb = 72, 73, 74, 75, 76, 77, 78, 79
sA, sA2, sB, sB2, sC, sC2 = 4, 5, 6, 7, 8, 9
sMx, sMa, sMf = 10, 11, 12
sT0, sT1, sT2 = 13, 14, 15
sL = 16
sHm = 18
sG2, sNb, sDb, sHo = 20, 21, 22, 23
sSpin = 24
sKap = 25
STAMP0 = 80

def srd(n): return f's[{n}:{n+3}]'

class K:
    def __init__(self, opt):
        self.A = Asm(); self.vm = []; self.opt = opt; self.nst = 0
    def __call__(self, t): self.A(t)
    def vmem(self, t, tag):
        self.A(t); self.vm.append(tag)
    def vmwait_n(self, *tags):
        last = max((i for i, x in enumerate(self.vm) if x in tags), default=None)
        if last is None: return None
        return len(self.vm) - 1 - last
    def wait(self, *tags, extra=''):
        n = self.vmwait_n(*tags)
        if n is None:
            if extra: self.A(f's_waitcnt {extra}')
            return
        assert n <= 63, n
        self.A(f's_waitcnt vmcnt({n}) {extra}')
        self.vm = self.vm[len(self.vm)-n:] if n else []
    def stamp(self, i):
        if self.opt.get('stamps'): self.A(f's_memtime s[{STAMP0+2*i}:{STAMP0+2*i+1}]')
    def emit(self, item):
        if callable(item): item()
        elif isinstance(item, tuple): self.vmem(*item)
        else: self.A(item)

vXP, vDP, vXA = 160, 164, 168
vAP, vAA, vCAA = 172, 173, 174
vFP, vFA, vCFA = 175, 178, 182
vCS = 186
vL16 = 191
vCT = 192
vU0, vU1 = 212, 213
vST = 214
vP2 = 218
vP3 = 222
vPoll, vPA = 226, 227
vWP = 228
vDA = 236
vCSA = 238
vT = 240
aFB = 200

def acc(c, tt): return 32*c + 16*tt
def fX(b, tt): return aFB + 28*b + 4*tt
def fW(b, c): return aFB + 28*b + 8 + 4*c

def poll(k, name, nl, target=None, srdn=SW):
    L = k.A.label(name)
    k(f's_mov_b64 exec, {(1<<nl)-1}\ns_mov_b32 s{sSpin}, 0\n{L}:')
    k(f'buffer_load_dword v{vPoll}, v{vPA}, {srd(srdn)}, 0 offen sc1\ns_add_u32 s{sSpin}, s{sSpin}, 1\ns_waitcnt vmcnt(0)')
    if target is None: k(f'v_cmp_eq_u32 vcc, 0, v{vPoll}')
    else: k(f'v_cmp_ne_u32 vcc, {target}, v{vPoll}')
    k(f's_cbranch_vccz {L}_x\ns_cmp_lt_u32 s{sSpin}, {k.opt.get("spin", 200000)}\ns_cbranch_scc1 {L}\n{L}_x:\ns_mov_b64 exec, -1')
    k.vm = []

def prologue(k):
    o = k.opt
    k(f's_cmp_lt_u32 s2, 256\ns_cbranch_scc1 L_go\ns_endpgm\nL_go:')
    k.stamp(0)
    if o.get('stamps'): k('s_memrealtime s[100:101]')
    k('s_load_dwordx16 s[4:19], s[0:1], 0\ns_load_dwordx4 s[20:23], s[0:1], 64\ns_load_dwordx2 s[24:25], s[0:1], 80')
    k(f'v_lshrrev_b32 v1, 6, v0\nv_and_b32 v0, 63, v0\nv_readfirstlane_b32 s{sWave}, v1')
    mp = o.get('map', 'x4')
    k(f's_and_b32 s3, s2, 7\ns_lshr_b32 s{sCg}, s2, 3')
    if mp == 'x4':
        k(f's_and_b32 s{sRb}, s{sCg}, 3\ns_and_b32 s{sSt}, s3, 4\ns_or_b32 s{sRb}, s{sRb}, s{sSt}\ns_and_b32 s{sG}, s3, 3\ns_lshr_b32 s{sU}, s{sCg}, 2')
    elif mp == 'x2':
        k(f's_and_b32 s{sRb}, s{sCg}, 1\ns_and_b32 s{sSt}, s3, 6\ns_or_b32 s{sRb}, s{sRb}, s{sSt}')
        k(f's_and_b32 s{sG}, s3, 1\ns_lshl_b32 s{sG}, s{sG}, 1\ns_bfe_u32 s{sSt}, s{sCg}, 0x10001\ns_or_b32 s{sG}, s{sG}, s{sSt}\ns_lshr_b32 s{sU}, s{sCg}, 2')
    elif mp == 'x1':
        k(f's_mov_b32 s{sRb}, s3\ns_and_b32 s{sG}, s{sCg}, 3\ns_lshr_b32 s{sU}, s{sCg}, 2')
    elif mp == 'x8':
        k(f's_and_b32 s{sRb}, s{sCg}, 7\ns_lshr_b32 s{sG}, s3, 1\ns_and_b32 s{sU}, s3, 1\ns_lshl_b32 s{sU}, s{sU}, 2\ns_lshr_b32 s{sSt}, s{sCg}, 3\ns_or_b32 s{sU}, s{sU}, s{sSt}')
    k(f's_lshr_b32 s{sJ}, s{sU}, 1\ns_lshl_b32 s{sSt}, s{sG}, 2\ns_or_b32 s{sJ}, s{sJ}, s{sSt}')
    k(f's_lshl_b32 s{sCg}, s{sG}, 3\ns_or_b32 s{sCg}, s{sCg}, s{sU}')
    rot = o.get('rot', None)
    if rot is None: k(f's_mov_b32 s{sSt}, 0')
    else:
        k(f's_mul_i32 s{sSt}, s{sRb}, {rot[0]}\ns_mul_i32 s{sXb}, s{sCg}, {rot[1]}\ns_add_u32 s{sSt}, s{sSt}, s{sXb}')
        k(f's_mul_i32 s{sXb}, s{sSt}, 9363\ns_lshr_b32 s{sXb}, s{sXb}, 16\ns_mul_i32 s{sXb}, s{sXb}, 7\ns_sub_u32 s{sSt}, s{sSt}, s{sXb}')
    k(f'''v_lshlrev_b32 v{vL16}, 4, v0
    v_lshrrev_b32 v1, 3, v0
    v_and_b32 v2, 7, v0
    v_mul_u32_u24 v3, 896, v1
    v_lshrrev_b32 v4, 1, v1
    v_xor_b32 v5, v2, v4
    v_lshl_add_u32 v{vXP}, v5, 4, v3
    v_xor_b32 v5, 4, v5
    v_lshl_add_u32 v{vXP+1}, v5, 4, v3
    v_add_u32 v{vXP+1}, 6144, v{vXP+1}
    v_add_u32 v{vXP+2}, {2*6144}, v{vXP}
    v_add_u32 v{vXP+3}, {2*6144}, v{vXP+1}
    v_lshrrev_b32 v6, 2, v0
    v_and_b32 v7, 3, v0
    v_mul_u32_u24 v6, 2688, v6
    v_lshlrev_b32 v8, 4, v7
    v_min_u32 v8, 40, v8
    v_add_u32 v{vAP}, v6, v8''')
    k(f's_lshl_b32 s{sXb}, s{sRb}, 2\ns_add_u32 s{sXb}, s{sXb}, s{sWave}\ns_mul_i32 s{sXb}, s{sXb}, {64*896}')
    k(f's_mul_i32 s{sQb}, s{sWave}, {16*2688}\ns_mul_i32 s3, s{sJ}, 56\ns_add_u32 s{sQb}, s{sQb}, s3')
    k('s_waitcnt lgkmcnt(0)')
    def mk(n, p, size): k(f's_mov_b32 s{n}, s{p}\ns_mov_b32 s{n+1}, s{p+1}\ns_mov_b32 s{n+2}, {size}\ns_mov_b32 s{n+3}, 0x20000')
    mk(SX, 4, 2048*896); mk(SW, 24, 1 << 28); mk(SQ, 6, 448*2688); mk(SG, 14, 448*3584); mk(SU, 16, 448*3584)
    k(f's_cmp_lt_u32 s{sWave}, 2\ns_cselect_b32 s{SGU}, s14, s16\ns_cselect_b32 s{SGU+1}, s15, s17\ns_mov_b32 s{SGU+2}, {448*3584}\ns_mov_b32 s{SGU+3}, 0x20000')
    mk(SD, 18, 1792*896); mk(SO, 10, 448*896); mk(SOUT, 20, 2048*896); mk(SDBG, 22, 256); mk(SPH, 8, 16*1568)
    k(f's_mul_i32 s{sMx}, s{sWave}, {XW}\ns_lshl_b32 s{sMa}, s{sWave}, 10\ns_add_u32 s{sMa}, s{sMa}, {WB}')
    k(f's_mov_b32 s{sL}, {hex(f2u(math.log2(math.e)))}\ns_mov_b32 s{sL+1}, s{sL}\ns_mov_b32 s{sHm}, 0\ns_mov_b32 s{sHm+1}, -1')
    k(f's_bitcmp1_b32 s{sU}, 0\ns_cbranch_scc1 L_typeQ')

def batch(k, typ, slot, first=False):
    g = []
    pre = []
    if not first:
        pre += [f's_add_u32 s{sSt}, s{sSt}, 1', f's_cmp_eq_u32 s{sSt}, 7', f's_cselect_b32 s{sSt}, 0, s{sSt}']
    tag = f'b{k.nb}'; k.nb += 1
    pre += [f's_mul_i32 s{sB}, s{sSt}, {64*2688}', f's_add_u32 s{sB}, s{sB}, s{sQb}', f's_add_u32 m0, s{sMa}, {slot*WS_}',
            f's_mul_i32 s{sC}, s{sSt}, {64*3584}']
    g.append(pre + [(f'buffer_load_dwordx4 v{vAP}, {srd(SQ)}, s{sB} offen lds', tag)])
    if typ == 'KV':
        g.append([f's_add_u32 m0, s{sMa}, {slot*WS_+4096}', f's_add_u32 s{sB2}, s{sB}, 896', (f'buffer_load_dwordx4 v{vAP}, {srd(SQ)}, s{sB2} offen lds', tag)])
        g.append([f's_add_u32 m0, s{sMf}, {slot*WS_}', f's_add_u32 s{sC}, s{sC}, s{sFb}', (f'buffer_load_dwordx4 v{vFP}, {srd(SGU)}, s{sC} offen lds', tag)])
        g.append([(f'buffer_load_dwordx4 v{vFP+1}, {srd(SGU)}, s{sC} offen offset:1024 lds', tag)])
        g.append([(f'buffer_load_dwordx4 v{vFP+2}, {srd(SGU)}, s{sC} offen offset:2048 lds', tag)])
    else:
        g.append([f's_add_u32 m0, s{sMf}, {slot*WS_}', f's_add_u32 s{sC}, s{sC}, s{sFb}', (f'buffer_load_dwordx4 v{vFP}, {srd(SG)}, s{sC} offen lds', tag)])
        g.append([f's_add_u32 s{sC2}, s{sC}, {8*3584-1024}', (f'buffer_load_dwordx4 v{vFP}, {srd(SG)}, s{sC2} offen offset:1024 lds', tag)])
        g.append([f's_add_u32 m0, s{sMf}, {slot*WS_+8192}', 's_nop 0', (f'buffer_load_dwordx4 v{vFP+1}, {srd(SU)}, s{sC} offen lds', tag)])
        g.append([(f'buffer_load_dwordx4 v{vFP+1}, {srd(SU)}, s{sC2} offen offset:1024 lds', tag)])
    for n in range(8):
        p = []
        if n == 0: p = [f's_add_u32 m0, s{sMx}, {slot*8192}', f's_lshl_b32 s{sA}, s{sSt}, 7', f's_add_u32 s{sA}, s{sA}, s{sXb}']
        if n == 4: p = [f's_add_u32 m0, s{sMx}, {slot*8192+4096}', f's_add_u32 s{sA}, s{sA}, {32*896}']
        g.append(p + [(f'buffer_load_dwordx4 v{vXP+(n&3)}, {srd(SX)}, s{sA} offen offset:{(n&3)*1024} lds', tag)])
    return g, tag

def dbatch(k, ci):
    slot = (7 + ci) % 3; tag = f'd{ci}'; g = []
    for n in range(8):
        p = []
        if n == 0: p = [f's_add_u32 m0, s{sMx}, {slot*8192}', f's_add_u32 s{sA}, s{sDb}, {ci*64*896}']
        if n == 4: p = [f's_add_u32 m0, s{sMx}, {slot*8192+4096}', f's_add_u32 s{sA}, s{sA}, {32*896}']
        g.append(p + [(f'buffer_load_dwordx4 v{vDP+(n&3)}, {srd(SD)}, s{sA} offen offset:{(n&3)*1024} lds', tag)])
    return g

def dreads(ci):
    slot = (7 + ci) % 3; r = []
    for kl in range(4):
        for n in range(2):
            for j2 in range(2):
                d = 8*(4*ci + kl) + 4*n + 2*j2
                r.append(f'ds_read_b64_tr_b16 a[{d}:{d+1}], v{vDA+n} offset:{slot*8192 + (16*kl + 8*j2)*128}')
    return r

def wread(typ, c, slot, ks, j2, cs=False):
    nat = 2 if typ == 'KV' else 1
    row = (0 if cs else 16*ks) + 4*j2
    if c < nat: return (vCAA if cs else vAA), slot*WS_ + c*4096 + row*64
    seg = c - nat
    if typ == 'KV': return (vCFA if cs else vFA), slot*WS_ + row*96 + seg*32
    return (vCFA if cs else vFA) + seg, slot*WS_ + row*128

def frag_reads(typ, b, slot, ks):
    r = [f'ds_read_b128 a[{fX(b,0)}:{fX(b,0)+3}], v{vXA+ks} offset:{slot*8192}']
    for c in range(5):
        for j2 in range(2):
            va, im = wread(typ, c, slot, ks, j2)
            r.append(f'ds_read_b64_tr_b16 a[{fW(b,c)+2*j2}:{fW(b,c)+2*j2+1}], v{va} offset:{im}')
        if c == 0: r.append(f'ds_read_b128 a[{fX(b,1)}:{fX(b,1)+3}], v{vXA+ks} offset:{slot*8192+4096}')
    return r

def type_setup(k, typ):
    if typ == 'KV':
        k(f's_add_u32 s{sQb}, s{sQb}, 896')
        tbl = 0
        for j in range(16):
            pos = [0,1,3,2][j & 3] if j < 8 else [1,0,2,3][j & 3]
            tbl |= pos << (2*j)
        k(f's_lshl_b32 s3, s{sJ}, 1\ns_lshr_b32 s3, {hex(tbl)}, s3\ns_and_b32 s3, s3, 3')
        k(f's_mul_i32 s{sKap}, s3, 3\ns_mul_i32 s{sT0}, s{sG}, 28\ns_add_u32 s{sKap}, s{sKap}, s{sT0}\ns_add_u32 s{sKap}, s{sKap}, 16')
        k(f's_and_b32 s3, s{sWave}, 1\ns_mul_i32 s{sFb}, s3, {32*3584}\ns_lshl_b32 s{sT0}, s{sKap}, 5\ns_add_u32 s{sFb}, s{sFb}, s{sT0}')
        k(f's_mul_i32 s{sMf}, s3, 3072\ns_lshr_b32 s3, s{sWave}, 1\ns_mul_i32 s3, s3, 6272\ns_add_u32 s{sMf}, s{sMf}, s3\ns_add_u32 s{sMf}, s{sMf}, {WB+8192}')
        for n in range(3):
            k(f'''v_add_u32 v9, {64*n}, v0
            v_mul_u32_u24 v10, 171, v9
            v_lshrrev_b32 v10, 10, v10
            v_mul_u32_u24 v11, 6, v10
            v_sub_u32 v11, v9, v11
            v_mul_u32_u24 v10, 3584, v10
            v_lshl_add_u32 v{vFP+n}, v11, 4, v10''')
            if n: k(f'v_subrev_u32 v{vFP+n}, {1024*n}, v{vFP+n}')
    else:
        k(f's_and_b32 s3, s{sJ}, 3\ns_lshl_b32 s{sKap}, s3, 2\ns_mul_i32 s{sT0}, s{sG}, 28\ns_add_u32 s{sKap}, s{sKap}, s{sT0}')
        k(f's_mul_i32 s{sFb}, s{sWave}, {16*3584}\ns_lshl_b32 s{sT0}, s{sKap}, 5\ns_add_u32 s{sFb}, s{sFb}, s{sT0}')
        k(f's_lshl_b32 s{sMf}, s{sWave}, 11\ns_add_u32 s{sMf}, s{sMf}, {WB+4096}')
        k(f'''v_and_b32 v9, 2, v1
        v_xor_b32 v9, v2, v9
        v_mul_u32_u24 v10, 3584, v1
        v_lshl_add_u32 v{vFP}, v9, 4, v10
        v_xor_b32 v9, 4, v9
        v_lshl_add_u32 v{vFP+1}, v9, 4, v10''')

def type_setup2(k, typ):
    k(f'''v_and_b32 v9, 31, v0
    v_lshrrev_b32 v10, 5, v0
    v_bfe_u32 v11, v0, 1, 3
    v_lshlrev_b32 v12, 7, v9
    v_add_u32 v12, s{sMx}, v12''')
    for ks in range(4):
        k(f'v_or_b32 v13, {2*ks}, v10\nv_xor_b32 v13, v13, v11\nv_lshl_add_u32 v{vXA+ks}, v13, 4, v12')
    k(f'''v_bfe_u32 v13, v0, 2, 2
    v_and_b32 v14, 3, v0
    v_bfe_u32 v15, v0, 4, 1
    v_lshl_add_u32 v16, v10, 3, v13
    v_lshl_add_u32 v17, v15, 2, v14
    v_cmp_lt_u32 vcc, 5, v17
    v_xor_b32 v18, 1, v17
    v_lshlrev_b32 v19, 6, v16
    v_cndmask_b32 v18, v17, v18, vcc
    v_add_u32 v19, {WB}, v19
    v_lshl_add_u32 v{vAA}, v18, 3, v19
    s_lshl_b32 s3, s{sWave}, 10
    v_add_u32 v{vCAA}, s3, v{vAA}''')
    if typ == 'KV':
        k(f'''v_mul_u32_u24 v19, 96, v16
        v_mul_u32_u24 v20, 6272, v15
        v_lshlrev_b32 v21, 3, v14
        v_add3_u32 v19, v19, v20, v21
        v_add_u32 v{vFA}, {WB+8192}, v19
        s_mul_i32 s3, s{sWave}, {16*96}
        v_add_u32 v{vCFA}, s3, v{vFA}''')
    else:
        k(f'''v_lshlrev_b32 v19, 7, v16
        v_lshlrev_b32 v20, 13, v15
        v_lshlrev_b32 v21, 3, v14
        v_add3_u32 v19, v19, v20, v21
        v_add_u32 v19, {WB+4096}, v19
        v_lshrrev_b32 v20, 1, v13
        v_lshl_add_u32 v20, v15, 1, v20
        s_lshl_b32 s3, s{sWave}, 11''')
        for seg in range(4):
            k(f'v_xor_b32 v21, {seg}, v20\nv_lshl_add_u32 v{vFA+seg}, v21, 5, v19\nv_add_u32 v{vCFA+seg}, s3, v{vFA+seg}')
    k(f'''v_and_b32 v19, 2, v1
    v_lshlrev_b32 v19, 1, v19
    v_xor_b32 v19, v2, v19
    v_lshl_add_u32 v{vDP}, v19, 4, v3
    v_add_u32 v{vDP+1}, 6144, v{vDP}
    v_add_u32 v{vDP+2}, {2*6144}, v{vDP}
    v_add_u32 v{vDP+3}, {3*6144}, v{vDP}
    v_lshl_add_u32 v19, v10, 2, v13
    v_lshlrev_b32 v19, 7, v19
    v_lshl_add_u32 v19, v17, 3, v19
    v_add_u32 v19, s{sMx}, v19
    v_lshrrev_b32 v20, 1, v13
    v_lshl_add_u32 v{vDA}, v20, 6, v19
    v_xor_b32 v20, 1, v20
    v_lshl_add_u32 v{vDA+1}, v20, 6, v19
    v_lshlrev_b32 v19, 4, v10
    v_add_u32 v{vCSA}, {L_CS}, v19''')
    for i in range(5): k(f'v_mov_b32 v{vCS+i}, 0')
    k(f's_and_b32 s3, s2, 7\ns_lshl_b32 s{sG2}, s3, 2\ns_bfe_u32 s3, s2, 0x20003\ns_or_b32 s{sG2}, s{sG2}, s3\ns_lshr_b32 s{sNb}, s2, 5')
    k(f's_min_u32 s3, s{sNb}, 6\ns_lshl_b32 s{sDb}, s3, 7\ns_mul_i32 s3, s{sWave}, {448*896}\ns_add_u32 s{sDb}, s{sDb}, s3')
    k(f's_lshl_b32 s3, s{sRb}, 2\ns_add_u32 s3, s3, s{sWave}\ns_mul_i32 s{sHo}, s3, {144*2048}')

def red32(k, r, t):
    for m in ('quad_perm:[1,0,3,2]', 'quad_perm:[2,3,0,1]', 'row_half_mirror', 'row_mirror'):
        k(f's_nop 1\nv_add_f32_dpp v{r}, v{r}, v{r} {m} row_mask:0xf bank_mask:0xf')
    k(f'v_mov_b32 v{t}, v{r}\ns_nop 1\nv_permlane16_swap_b32 v{r}, v{t}\nv_add_f32 v{r}, v{r}, v{t}')

def init_and_stats_issue(k, typ):
    L = k.A.label('L_nz')
    k(f's_cmp_lg_u32 s{sWave}, 0\ns_cbranch_scc1 {L}')
    k(f's_lshl_b32 s3, s{sRb}, 5\ns_add_u32 s3, s3, s{sCg}\ns_lshl_b32 s3, s3, 6\ns_add_u32 s3, s3, {WS_ST}\nv_lshl_add_u32 v9, v0, 2, s3')
    k(f's_lshl_b32 s3, s{sRb}, 9\ns_lshl_b32 s{sT0}, s{sCg}, 2\ns_add_u32 s{sT0}, s{sT0}, s3\ns_add_u32 s{sT0}, s{sT0}, {WS_HF}\nv_lshl_add_u32 v10, v7, 7, s{sT0}')
    if typ == 'KV':
        k(f's_lshl_b32 s3, s{sJ}, 7\ns_lshl_b32 s{sT0}, s{sRb}, 2\ns_add_u32 s{sT0}, s{sT0}, s3\ns_add_u32 s{sT0}, s{sT0}, {WS_KF}\nv_lshl_add_u32 v11, v7, 5, s{sT0}')
    else:
        k(f's_lshl_b32 s{sT0}, s{sJ}, 2\ns_add_u32 s{sT0}, s{sT0}, s3\ns_add_u32 s{sT0}, s{sT0}, {WS_OF}\nv_lshl_add_u32 v11, v7, 7, s{sT0}')
    k(f'v_cmp_lt_u32 vcc, 15, v0\ns_nop 1\nv_cndmask_b32 v9, v9, v10, vcc\nv_cmp_lt_u32 vcc, 19, v0\nv_mov_b32 v12, 0\ns_nop 0\nv_cndmask_b32 v9, v9, v11, vcc')
    k(f's_mov_b64 exec, 0xffffff\nbuffer_store_dword v12, v9, {srd(SW)}, 0 offen sc1\ns_mov_b64 exec, -1\n{L}:')
    k(f'''v_and_b32 v9, 31, v0
    v_lshrrev_b32 v10, 5, v0
    v_mul_u32_u24 v10, 896, v10
    v_lshl_add_u32 v10, v9, 4, v10
    v_cmp_lt_u32 vcc, 27, v9
    v_mov_b32 v11, 0x40000000
    s_lshl_b32 s3, s{sRb}, 7
    v_cndmask_b32 v10, v10, v11, vcc
    s_lshl_b32 s{sT0}, s{sCg}, 2
    s_add_u32 s3, s3, s{sT0}
    s_add_u32 s3, s3, s{sWave}
    s_mul_i32 s{sT0}, s3, {2*896}''')
    k.vmem(f'buffer_load_dwordx4 v[24:27], v10, {srd(SX)}, s{sT0} offen', 'srow')
    k.vmem(f'buffer_load_dwordx4 v[28:31], v10, {srd(SX)}, s{sT0} offen offset:448', 'srow')
    k(f's_lshl_b32 s{sT2}, s3, 4\ns_add_u32 s{sT2}, s{sT2}, {WS_ST}')

def stats_compute(k):
    k.wait('srow')
    k('v_mov_b32 v32, 0x3f803f80\nv_mov_b32 v33, 0\nv_mov_b32 v34, 0')
    for i in range(4): k(f'v_dot2_f32_bf16 v33, v{24+i}, v32, v33\nv_dot2_f32_bf16 v34, v{28+i}, v32, v34')
    k('s_nop 2\nv_add_f32 v33, v33, v34')
    red32(k, 33, 34)
    k(f'v_mul_f32 v33, {hex(f2u(-1.0/448))}, v33')
    for i in range(8): k(f'v_lshlrev_b32 v{36+2*i}, 16, v{24+i}\nv_and_b32 v{37+2*i}, 0xffff0000, v{24+i}')
    for i in range(8): k(f'v_pk_add_f32 v[{36+2*i}:{37+2*i}], v[{36+2*i}:{37+2*i}], v[32:33] op_sel:[0,1] op_sel_hi:[1,1]')
    k('v_pk_mul_f32 v[52:53], v[36:37], v[36:37]\nv_pk_mul_f32 v[54:55], v[38:39], v[38:39]')
    for i in range(2, 8): k(f'v_pk_fma_f32 v[{52+2*(i&1)}:{53+2*(i&1)}], v[{36+2*i}:{37+2*i}], v[{36+2*i}:{37+2*i}], v[{52+2*(i&1)}:{53+2*(i&1)}]')
    k('v_pk_add_f32 v[52:53], v[52:53], v[54:55]\nv_and_b32 v9, 31, v0\nv_cmp_lt_u32 vcc, 27, v9\nv_add_f32 v34, v52, v53\ns_nop 0\nv_cndmask_b32 v34, v34, 0, vcc')
    red32(k, 34, 35)
    k(f'v_mov_b32 v35, {hex(f2u(1e-5))}\nv_fmac_f32 v35, {hex(f2u(1.0/448))}, v34')
    k(f'v_mov_b32 v{vU0}, v33\nv_mov_b32 v{vU1}, v35\nv_lshrrev_b32 v9, 5, v0\nv_lshlrev_b32 v{vPA}, 3, v9')

def main_loop(k, typ):
    o = k.opt
    k.nb = 0
    init_and_stats_issue(k, typ)
    g0, t0 = batch(k, typ, 0, first=True)
    for g in g0:
        for it in g: k.emit(it)
    L = k.A.label('L_na')
    k(f's_cmp_lg_u32 s{sWave}, 0\ns_cbranch_scc1 {L}\ns_waitcnt vmcnt({len(k.vm)})')
    k(f's_and_b32 s3, s2, 1\ns_lshl_b32 s3, s3, 7\nv_mov_b32 v9, s3\nv_mov_b32 v10, 1\ns_mov_b64 exec, 1\nbuffer_atomic_add v10, v9, {srd(SDBG)}, 0 offen\ns_mov_b64 exec, -1')
    k(f's_branch {L}b\n{L}:')
    k(f's_getpc_b64 s[0:1]\n{L}p:\ns_sub_u32 s0, s0, {L}p-{NAME}_kernel\ns_subb_u32 s1, s1, 0')
    k(f's_lshr_b32 s3, s2, 3\ns_mul_i32 s3, s3, 3\ns_add_u32 s3, s3, s{sWave}\ns_lshl_b32 s3, s3, 10\ns_min_u32 s3, s3, L_codeend-{NAME}_kernel-1024\nv_add_u32 v9, s3, v{vL16}')
    k(f'global_load_dwordx4 v[252:255], v9, s[0:1]\n{L}b:')
    k.vm.append('atom')
    k(f's_and_b32 s3, s{sWave}, 1\ns_lshl_b32 s3, s3, 10\ns_add_u32 m0, s3, {L_PHI}\ns_mul_i32 s{sT0}, s{sJ}, 1568\ns_add_u32 s3, s3, s{sT0}')
    k.vmem(f'buffer_load_dwordx4 v{vL16}, {srd(SPH)}, s3 offen lds', 'phi')
    g1, t1 = batch(k, typ, 1)
    for g in g1:
        for it in g: k.emit(it)
    k.stamp(1)
    type_setup2(k, typ)
    k(f'v_mov_b32 v20, 0\nv_mov_b32 v21, 0\nv_mov_b32 v22, 0\nv_mov_b32 v23, 0\nv_add_u32 v19, {L_CS}, v{vL16}\ns_mov_b32 exec_hi, 0xff\nds_write_b128 v19, v[20:23]\ns_mov_b64 exec, -1')
    stats_compute(k)
    k.wait(t0, extra='lgkmcnt(0)')
    k('s_barrier')
    k.stamp(2)
    for r in frag_reads(typ, 0, 0, 0): k(r)
    k(f's_mov_b32 exec_lo, 1\ns_mov_b32 exec_hi, 1')
    k.vmem(f'buffer_store_dwordx2 v[{vU0}:{vU1}], v{vPA}, {srd(SW)}, s{sT2} offen sc1', 'stst')
    k('s_mov_b64 exec, -1')
    tags = {0: t0, 1: t1}
    pend = []
    cs_pending = []
    ctp = 0
    for s in range(7):
        slot = s % 3
        for ks in range(4):
            b = (4*s + ks) & 1
            last = (s == 6 and ks == 3)
            pre = []
            reads = []
            if ks == 3:
                if s < 6: reads = frag_reads(typ, b ^ 1, (s+1) % 3, 0)
            else: reads = frag_reads(typ, b ^ 1, slot, ks+1)
            if s == 0 and ks == 0:
                pend, tags[2] = batch(k, typ, 2)
            newb = None
            if ks == 3:
                if s + 3 <= 6: newb = ('w', s+3)
                else: newb = ('d', s + 3 - 7)
            cs_s, w = (s+1, 0) if ks == 3 else (s, ks+1)
            plan = (3,3,2,2)
            if cs_s == 0: plan = (0,4,3,3)
            if cs_s == 6: plan = (5,5,0,0)
            csr = []; newcs = []
            if cs_s <= 6:
                st0 = sum(plan[:w])
                for hI in range(st0, st0 + plan[w]):
                    c, j2 = hI >> 1, hI & 1
                    va, im = wread(typ, c, cs_s % 3, 0, j2, cs=True)
                    tr = vCT + 2*(ctp % 10); ctp += 1
                    csr.append(f'ds_read_b64_tr_b16 v[{tr}:{tr+1}], v{va} offset:{im}')
                    newcs.append((c, tr))
            valu = []
            for (c, tr) in cs_pending:
                for e in range(2):
                    valu += [f'v_lshlrev_b32 v{vU0}, 16, v{tr+e}', f'v_and_b32 v{vU1}, 0xffff0000, v{tr+e}',
                             f'v_add_f32 v{vCS+c}, v{vCS+c}, v{vU0}', f'v_add_f32 v{vCS+c}, v{vCS+c}, v{vU1}']
            cs_pending = newcs
            extra = []
            if s == 6 and ks == 2:
                extra.append(f'v_and_b32 v{vU0}, 0x1f0, v{vL16}')
                extra.append(f'v_lshrrev_b32 v{vU0}, 2, v{vU0}')
                extra.append(f'v_add_u32 v{vU0}, {L_CS}, v{vU0}')
                for c in range(5): extra.append(f'ds_add_f32 v{vU0}, v{vCS+c} offset:{c*128}')
            if s == 6 and ks in (1, 2):
                dr = dreads(0)
                if ks == 1: extra.append(lambda: k.wait('d0'))
                extra += dr[:8] if ks == 1 else dr[8:]
            k('s_waitcnt lgkmcnt(0)')
            mf = []
            for c in range(5):
                for tt in range(2):
                    D = acc(c, tt); C = '0' if (s == 0 and ks == 0) else v(D, 16)
                    mf.append(f'v_mfma_f32_32x32x16_bf16 {v(D,16)}, {a(fW(b,c),4)}, {a(fX(b,tt),4)}, {C}')
            gaps = [[] for _ in range(10)]
            if ks == 3:
                assert not pend
                def bar(s=s):
                    if s < 6: k.wait(tags[s+1])
                    k('s_barrier')
                gaps[0].append(bar)
                if s == 4:
                    gaps[1] += [f'v_lshlrev_b32 v{vPA}, 3, v{vL16}', 's_mov_b64 exec, 3', (f'buffer_load_dword v{vPoll}, v{vPA}, {srd(SDBG)}, 0 offen sc1', 'ipoll'), 's_mov_b64 exec, -1']
                if s == 5:
                    def chk():
                        k.wait('ipoll')
                        L = k.A.label('L_iok')
                        k(f's_mov_b64 exec, 3\nv_cmp_ne_u32 vcc, 128, v{vPoll}\ns_mov_b64 exec, -1\ns_cbranch_vccz {L}')
                        save = list(k.vm)
                        poll(k, 'L_ip', 2, target=128, srdn=SDBG)
                        k.vm = save
                        k(f'{L}:')
                        k(f'v_and_b32 v{vPA}, 0x1f0, v{vL16}\nv_lshrrev_b32 v{vPA}, 1, v{vPA}\ns_lshl_b32 s3, s{sRb}, 2\ns_add_u32 s3, s3, s{sWave}\ns_lshl_b32 s3, s3, 9\ns_add_u32 s{sT2}, s3, {WS_ST}')
                        k.vmem(f'buffer_load_dwordx2 v[{vST}:{vST+1}], v{vPA}, {srd(SW)}, s{sT2} offen sc1', 'stld')
                        k.vmem(f'buffer_load_dwordx2 v[{vST+2}:{vST+3}], v{vPA}, {srd(SW)}, s{sT2} offen offset:256 sc1', 'stld')
                    gaps[1].append(chk)
                if newb[0] == 'w': pend, tags[newb[1]] = batch(k, typ, newb[1] % 3)
                else: pend = dbatch(k, newb[1])
            rd = reads + csr
            gi = 1 if ks == 3 else 0
            while rd:
                gaps[gi] += rd[:3]; rd = rd[3:]; gi += 1
            remaining_ks = {3: 4, 0: 3, 1: 2, 2: 1}[ks]
            if last: remaining_ks = 1
            nd = -(-len(pend) // remaining_ks)
            pos = {0: [], 1: [5], 2: [3, 7], 3: [2, 5, 8], 4: [2, 4, 6, 8], 5: [1, 3, 5, 7, 9], 8: [2,3,4,5,6,7,8,9]}[nd]
            for p in pos:
                gaps[p] += pend.pop(0)
            rest = valu + extra
            cap = 6
            while True:
                free = sum(max(0, cap - len(gp)) for gp in gaps[1:])
                if free >= len(rest): break
                cap += 1
            gi = 1
            for it in rest:
                while len(gaps[gi]) >= cap: gi += 1
                gaps[gi].append(it)
            for i in range(10):
                k(mf[i])
                for it in gaps[i]: k.emit(it)
    k.stamp(3)

def stats_consts(k):
    k.wait('stld')
    L = k.A.label('L_sok')
    k(f's_mov_b32 s{sSpin}, 0\n{L}r:\nv_cmp_eq_u32 vcc, 0, v{vST+1}\nv_cmp_eq_u32 s[{sT0+1}:{sT0+2}], 0, v{vST+3}') if False else None
    k(f's_mov_b32 s{sSpin}, 0\n{L}r:\nv_min_u32 v{vU0}, v{vST+1}, v{vST+3}\nv_cmp_eq_u32 vcc, 0, v{vU0}\ns_cbranch_vccz {L}')
    k(f's_add_u32 s{sSpin}, s{sSpin}, 1\ns_cmp_ge_u32 s{sSpin}, {k.opt.get("spin", 200000)}\ns_cbranch_scc1 {L}')
    k(f'buffer_load_dwordx2 v[{vST}:{vST+1}], v{vPA}, {srd(SW)}, s{sT2} offen sc1\nbuffer_load_dwordx2 v[{vST+2}:{vST+3}], v{vPA}, {srd(SW)}, s{sT2} offen offset:256 sc1\ns_waitcnt vmcnt(0)\ns_branch {L}r\n{L}:')
    c0 = -2*math.sqrt(2/math.pi)*math.log2(math.e); c1 = c0*0.044715
    for tt in range(2): k(f'v_rsq_f32 v{vP3+2*tt}, v{vST+2*tt+1}')
    for tt in range(2): k(f'v_mul_f32 v{vP3+2*tt+1}, v{vP3+2*tt}, v{vP3+2*tt}\nv_mul_f32 v{vP2+2*tt}, {hex(f2u(c0))}, v{vP3+2*tt}')
    for tt in range(2): k(f'v_mul_f32 v{vP2+2*tt+1}, {hex(f2u(0.044715))}, v{vP2+2*tt}')
    for tt in range(2): k(f'v_mul_f32 v{vP2+2*tt+1}, v{vP2+2*tt+1}, v{vP3+2*tt+1}')

def pr(r): return f'v[{r}:{r+1}]'
def cs_reads(c, dst): return [f'ds_read_b128 {v(dst+4*q,4)}, v{vCSA} offset:{c*128+q*32}' for q in range(4)]

def ffn_unit(k, c, tt, seg, CS):
    A_ = acc(c, tt); P1 = vST + 2*tt; P2 = vP2 + 2*tt; T = vT
    for i in range(8): k(f'v_pk_fma_f32 {pr(A_+2*i)}, {pr(CS+2*i)}, {pr(P1)}, {pr(A_+2*i)} op_sel_hi:[1,0,1]')
    for i in range(4): k(f'v_pk_mul_f32 {pr(T+2*i)}, {pr(A_+2*i)}, {pr(A_+2*i)}')
    for i in range(4): k(f'v_pk_fma_f32 {pr(T+2*i)}, {pr(T+2*i)}, {pr(P2)}, {pr(P2)} op_sel:[0,1,0] op_sel_hi:[1,1,0]')
    for i in range(4): k(f'v_pk_mul_f32 {pr(T+2*i)}, {pr(A_+2*i)}, {pr(T+2*i)}')
    for i in range(8): k(f'v_exp_f32 v{T+i}, v{T+i}')
    for i in range(4): k(f'v_pk_mul_f32 {pr(A_+2*i)}, {pr(A_+2*i)}, {pr(A_+8+2*i)}')
    for i in range(4): k(f'v_pk_fma_f32 {pr(T+2*i)}, {pr(T+2*i)}, {pr(P1)}, {pr(P1)} op_sel:[0,1,1] op_sel_hi:[1,1,1]')
    for i in range(8): k(f'v_rcp_f32 v{T+i}, v{T+i}')
    k(f's_add_u32 s3, s{sKap}, {seg}\ns_lshl_b32 s3, s3, 11\ns_add_u32 s3, s3, s{sHo}')
    for i in range(4): k(f'v_pk_mul_f32 {pr(A_+2*i)}, {pr(A_+2*i)}, {pr(T+2*i)}')
    for i in range(4): k(f'v_cvt_pk_bf16_f32 v{A_+8+i}, v{A_+2*i}, v{A_+2*i+1}')
    k.vmem(f'buffer_store_dwordx4 {v(A_+8,4)}, v{vL16}, {srd(SW)}, s3 offen offset:{tt*1024} sc1', 'hst')

def d_step(k, ci_read, ci_issue):
    if ci_read is not None:
        k.wait(f'd{ci_read}')
        for r in dreads(ci_read): k(r)
    if ci_issue is not None:
        k('s_waitcnt lgkmcnt(0)')
        for g in dbatch(k, ci_issue):
            for it in g: k.emit(it)

def ffn_epilogue(k, typ, hooks):
    nat = 2 if typ == 'KV' else 1
    tiles = list(range(nat, 5))
    CSb = [vCT, 160]
    CSb = [vCT, vCT]
    for n, c in enumerate(tiles):
        for r in cs_reads(c, vCT): k(r)
        k('s_waitcnt lgkmcnt(0)')
        for tt in range(2):
            ffn_unit(k, c, tt, c - nat, vCT)
        if n in hooks: hooks[n]()

def norm_pack(k, c, tt, CS, dst):
    A_ = acc(c, tt); P1 = vST + 2*tt; P3 = vP3 + 2*tt
    for i in range(8): k(f'v_pk_fma_f32 {pr(A_+2*i)}, {pr(CS+2*i)}, {pr(P1)}, {pr(A_+2*i)} op_sel_hi:[1,0,1]')
    for i in range(8): k(f'v_pk_mul_f32 {pr(A_+2*i)}, {pr(A_+2*i)}, {pr(P3)} op_sel_hi:[1,0]')

def pack8(k, src, dst, n=8):
    for i in range(n): k(f'v_cvt_pk_bf16_f32 v{dst+i}, v{src+2*i}, v{src+2*i+1}')

def wphi_prep(k):
    k(f'''v_lshrrev_b32 v{vT}, 4, v{vL16}
    v_bfe_u32 v{vT+1}, v{vT}, 2, 2
    v_lshrrev_b32 v{vT+2}, 5, v{vT}
    v_lshl_add_u32 v{vT+1}, v{vT+2}, 2, v{vT+1}
    v_mul_u32_u24 v{vT+1}, 56, v{vT+1}
    v_bfe_u32 v{vT+2}, v{vT}, 4, 1
    v_and_b32 v{vT+3}, 3, v{vT}
    v_lshl_add_u32 v{vT+2}, v{vT+2}, 2, v{vT+3}
    v_min_u32 v{vT+2}, 6, v{vT+2}
    v_lshl_add_u32 v{vT+1}, v{vT+2}, 3, v{vT+1}
    v_add_u32 v{vT+1}, {L_PHI}, v{vT+1}''')
    for s_ in range(2):
        for j2 in range(2):
            k(f'ds_read_b64_tr_b16 {pr(vWP+4*s_+2*j2)}, v{vT+1} offset:{(16*s_+8*j2)*56}')
    k('s_waitcnt lgkmcnt(0)')
    for i in range(8): k(f'v_mov_b32_dpp v{vWP+i}, v{vWP+i} quad_perm:[2,3,2,3] row_mask:0xa bank_mask:0x8')
    k(f'v_cndmask_b32 v{vWP+6}, v{vWP+6}, 0, s[{sHm}:{sHm+1}]\nv_cndmask_b32 v{vWP+7}, v{vWP+7}, 0, s[{sHm}:{sHm+1}]')

def feature_map(k, c, CS, E, F):
    T = vT
    for tt in range(2):
        norm_pack(k, c, tt, CS, None)
        pack8(k, acc(c, tt), E + 16*tt)
    k('s_nop 1')
    for tt in range(2):
        P = acc(c, tt)
        k(f'v_mfma_f32_32x32x16_bf16 {v(P,16)}, {v(vWP,4)}, {v(E+16*tt,4)}, 0')
        k(f'v_mfma_f32_32x32x16_bf16 {v(P,16)}, {v(vWP+4,4)}, {v(E+16*tt+4,4)}, {v(P,16)}')
    k('s_nop 9')
    for tt in range(2):
        P = acc(c, tt); M = E + 16*tt
        if tt == 1: pass
        k(f'v_max3_f32 v{T}, v{P}, v{P+1}, v{P+2}\nv_min3_f32 v{T+1}, v{P}, v{P+1}, v{P+2}')
        for i in range(3, 13, 2): k(f'v_max3_f32 v{T}, v{T}, v{P+i}, v{P+i+1}\nv_min3_f32 v{T+1}, v{T+1}, v{P+i}, v{P+i+1}')
        k(f'v_max_f32 v{T}, v{T}, v{P+13}\nv_min_f32 v{T+1}, v{T+1}, v{P+13}')
        k(f'v_mov_b32 v{T+2}, v{T}\nv_mov_b32 v{T+3}, v{T+1}\ns_nop 1\nv_permlane32_swap_b32 v{T}, v{T+2}\nv_permlane32_swap_b32 v{T+1}, v{T+3}')
        k(f'v_max_f32 v{T}, v{T}, v{T+2}\nv_min_f32 v{T+1}, v{T+1}, v{T+3}')
        k(f'v_pk_mul_f32 {pr(T)}, {pr(T)}, s[{sL}:{sL+1}]')
        for i in range(7): k(f'v_pk_fma_f32 {pr(M+2*i)}, {pr(P+2*i)}, s[{sL}:{sL+1}], {pr(T)} op_sel:[0,0,1] op_sel_hi:[1,1,1] neg_lo:[1,0,0] neg_hi:[1,0,0]')
        for i in range(7): k(f'v_pk_fma_f32 {pr(P+2*i)}, {pr(P+2*i)}, s[{sL}:{sL+1}], {pr(T)} op_sel_hi:[1,1,0] neg_lo:[0,0,1] neg_hi:[0,0,1]')
        for i in range(14): k(f'v_exp_f32 v{M+i}, v{M+i}')
        for i in range(14): k(f'v_exp_f32 v{P+i}, v{P+i}')
        k(f'v_pk_add_f32 {pr(T+6)}, {pr(M)}, {pr(M+2)}\nv_pk_add_f32 {pr(T+4)}, {pr(P)}, {pr(P+2)}')
        for i in range(2, 7): k(f'v_pk_add_f32 {pr(T+6)}, {pr(T+6)}, {pr(M+2*i)}\nv_pk_add_f32 {pr(T+4)}, {pr(T+4)}, {pr(P+2*i)}')
        k(f'v_add_f32 v{T+1}, v{T+6}, v{T+7}\nv_add_f32 v{T}, v{T+4}, v{T+5}')
        k(f'v_mov_b32 v{T+3}, v{T+1}\nv_mov_b32 v{T+2}, v{T}\ns_nop 1\nv_permlane32_swap_b32 v{T+1}, v{T+3}\nv_permlane32_swap_b32 v{T}, v{T+2}')
        k(f'v_pk_add_f32 {pr(T)}, {pr(T)}, {pr(T+2)}\nv_rcp_f32 v{T}, v{T}\nv_rcp_f32 v{T+1}, v{T+1}\ns_nop 0')
        for i in range(7): k(f'v_pk_mul_f32 {pr(P+2*i)}, {pr(P+2*i)}, {pr(T)} op_sel_hi:[1,0]')
        for i in range(7): k(f'v_pk_mul_f32 {pr(M+2*i)}, {pr(M+2*i)}, {pr(T)} op_sel:[0,1] op_sel_hi:[1,1]')
        pack8(k, P, F[tt], 7); pack8(k, M, F[tt]+8, 7)
        k(f'v_mov_b32 v{F[tt]+7}, 0\nv_mov_b32 v{F[tt]+15}, 0')

def set_flag(k, tags, addr_code):
    k(addr_code)
    k(f'v_mov_b32 v{vPA}, s3\nv_mov_b32 v{vPoll}, 1')
    k.wait(*tags)
    k('s_mov_b64 exec, 1')
    k.vmem(f'buffer_store_dword v{vPoll}, v{vPA}, {srd(SW)}, 0 offen sc1', 'flag')
    k('s_mov_b64 exec, -1')

def hflag(k):
    set_flag(k, ['hst'], f's_lshl_b32 s3, s{sRb}, 2\ns_add_u32 s3, s3, s{sWave}\ns_lshl_b32 s3, s3, 5\ns_add_u32 s3, s3, s{sCg}\ns_lshl_b32 s3, s3, 2\ns_add_u32 s3, s3, {WS_HF}')

def wo_issue(k):
    k(f's_mul_i32 s{sT0}, s{sWave}, {14*1024}\ns_add_u32 s{sT0}, s{sT0}, {WB}')
    k(f's_min_u32 s3, s{sNb}, 6\ns_lshl_b32 s3, s3, 7\ns_mul_i32 s{sA}, s{sWave}, {112*896}\ns_add_u32 s{sA}, s{sA}, s3')
    for n in range(14):
        if n % 4 == 0:
            k(f's_add_u32 m0, s{sT0}, {n*1024}')
            k(f's_add_u32 s{sA}, s{sA}, {32*896}' if n else 's_nop 0')
        k.vmem(f'buffer_load_dwordx4 v{vDP+(n&3)}, {srd(SO)}, s{sA} offen offset:{(n&3)*1024} lds', 'wo')

def kv_part(k):
    E = 64; F = [96, 112]; V = 128
    wphi_prep(k)
    for r in cs_reads(0, vCT): k(r)
    for r in cs_reads(1, 144): k(r)
    k('s_waitcnt lgkmcnt(0)')
    for tt in range(2):
        norm_pack(k, 1, tt, 144, None)
        A_ = acc(1, tt)
        k(f'v_cndmask_b32 v{A_+12}, v{A_+12}, 1.0, s[{sHm}:{sHm+1}]')
        for i in (13, 14, 15): k(f'v_cndmask_b32 v{A_+i}, v{A_+i}, 0, s[{sHm}:{sHm+1}]')
        pack8(k, A_, V + 8*tt)
    aw = 144
    k(f'''v_lshrrev_b32 v{aw}, 4, v{vL16}
    v_and_b32 v{aw+1}, 31, v{aw}
    v_lshrrev_b32 v{aw+2}, 5, v{aw}
    v_mul_u32_u24 v{aw+1}, {SP}, v{aw+1}
    v_lshl_add_u32 v{aw+1}, v{aw+2}, 5, v{aw+1}
    s_mul_i32 s3, s{sWave}, {64*SP}
    s_add_u32 s3, s3, {WB}
    v_add_u32 v{aw+1}, s3, v{aw+1}''')
    for tt in range(2):
        for q in range(2): k(f'ds_write_b128 v{aw+1}, {v(V+8*tt+4*q,4)} offset:{tt*32*SP+128+16*q}')
    feature_map(k, 0, vCT, E, F)
    for tt in range(2):
        for sec in range(2):
            for q in range(2): k(f'ds_write_b128 v{aw+1}, {v(F[tt]+8*sec+4*q,4)} offset:{tt*32*SP+64*sec+16*q}')
    k(f'''v_lshrrev_b32 v{aw+2}, 4, v{aw}
    v_lshlrev_b32 v{aw+2}, 3, v{aw+2}
    v_bfe_u32 v{aw+3}, v{aw}, 2, 1
    v_bfe_u32 v{aw+4}, v{aw}, 3, 1
    v_lshl_add_u32 v{aw+3}, v{aw+4}, 2, v{aw+3}
    v_add_u32 v{aw+2}, v{aw+2}, v{aw+3}
    v_mul_u32_u24 v{aw+2}, {SP}, v{aw+2}
    v_and_b32 v{aw+3}, 1, v{aw}
    v_lshl_add_u32 v{aw+2}, v{aw+3}, 5, v{aw+2}
    v_bfe_u32 v{aw+3}, v{aw}, 1, 1
    v_lshl_add_u32 v{aw+2}, v{aw+3}, 3, v{aw+2}
    v_add_u32 v{aw+2}, {WB}, v{aw+2}
    s_lshr_b32 s3, s{sWave}, 1
    s_lshl_b32 s3, s3, 6
    s_and_b32 s{sT0}, s{sWave}, 1
    s_lshl_b32 s{sT0}, s{sT0}, 4
    s_add_u32 s3, s3, s{sT0}
    v_add_u32 v{aw+3}, s3, v{aw+2}''')
    k('s_waitcnt lgkmcnt(0)\ns_barrier')
    for kk in range(8):
        for j2 in range(2):
            im = (32*kk + 2*j2)*SP
            k(f'ds_read_b64_tr_b16 {pr(12*kk+2*j2)}, v{aw+3} offset:{im}')
            for dt in range(2): k(f'ds_read_b64_tr_b16 {pr(12*kk+4+4*dt+2*j2)}, v{aw+2} offset:{im+128+16*dt}')
    D = 96
    k('s_waitcnt lgkmcnt(0)')
    for kk in range(8):
        for dt in range(2):
            k(f'v_mfma_f32_16x16x32_bf16 {v(D+4*dt,4)}, {v(12*kk,4)}, {v(12*kk+4+4*dt,4)}, {"0" if kk == 0 else v(D+4*dt,4)}')
    k('s_barrier')
    k(f'''v_lshrrev_b32 v{aw+2}, 5, v{aw}
    v_lshlrev_b32 v{aw+2}, 10, v{aw+2}
    v_bfe_u32 v{aw+3}, v{aw}, 4, 1
    v_lshl_add_u32 v{aw+2}, v{aw+3}, 9, v{aw+2}
    v_and_b32 v{aw+3}, 15, v{aw}
    v_lshl_add_u32 v{aw+2}, v{aw+3}, 4, v{aw+2}
    s_lshl_b32 s3, s{sJ}, 3
    s_add_u32 s3, s3, s{sRb}
    s_lshl_b32 s3, s3, 2
    s_add_u32 s3, s3, s{sWave}
    s_lshl_b32 s3, s3, 11
    s_add_u32 s3, s3, {WS_KVP}''')
    for dt in range(2): k.vmem(f'buffer_store_dwordx4 {v(D+4*dt,4)}, v{aw+2}, {srd(SW)}, s3 offen offset:{256*dt} sc1', 'kvst')

def kvflag(k):
    set_flag(k, ['kvst'], f's_lshl_b32 s3, s{sJ}, 2\ns_add_u32 s3, s3, s{sWave}\ns_lshl_b32 s3, s3, 3\ns_add_u32 s3, s3, s{sRb}\ns_lshl_b32 s3, s3, 2\ns_add_u32 s3, s3, {WS_KF}')

QF = [128, 144]
def q_part(k):
    wphi_prep(k)
    for r in cs_reads(0, vCT): k(r)
    k('s_waitcnt lgkmcnt(0)')
    feature_map(k, 0, vCT, 32, QF)

def o_part(k):
    k(f's_lshl_b32 s3, s{sJ}, 2\ns_add_u32 s3, s3, s{sWave}\ns_lshl_b32 s{sT0}, s3, 5\ns_add_u32 s{sT0}, s{sT0}, {WS_KF}\nv_lshrrev_b32 v{vPA}, 2, v{vL16}\nv_add_u32 v{vPA}, s{sT0}, v{vPA}')
    poll(k, 'L_kp', 8)
    k.stamp(6)
    k(f's_lshl_b32 s3, s{sJ}, 5\ns_add_u32 s3, s3, s{sWave}\ns_lshl_b32 s3, s3, 11\ns_add_u32 s3, s3, {WS_KVP}')
    for rb in range(8):
        for q in range(2): k.vmem(f'buffer_load_dwordx4 {v(8*rb+4*q,4)}, v{vL16}, {srd(SW)}, s3 offen offset:{1024*q} sc1', f'kv{rb}')
        if rb < 7: k(f's_add_u32 s3, s3, 8192')
    for rb in range(1, 8):
        k.wait(f'kv{rb}')
        for i in range(4): k(f'v_pk_add_f32 {pr(2*i)}, {pr(2*i)}, {pr(8*rb+2*i)}')
    pack8(k, 0, 8, 4)
    k(f's_lshl_b32 s3, s{sWave}, 10\ns_add_u32 s3, s3, {L_KVF}\nv_add_u32 v12, s3, v{vL16}\nv_add_u32 v13, {L_KVF}, v{vL16}')
    k(f'ds_write_b128 v12, v[8:11]\ns_waitcnt lgkmcnt(0)\ns_barrier')
    for s_ in range(4): k(f'ds_read_b128 {v(16+4*s_,4)}, v13 offset:{1024*s_}')
    k('s_waitcnt lgkmcnt(0)')
    for tt in range(2):
        for s_ in range(4):
            k(f'v_mfma_f32_32x32x16_bf16 {v(32+16*tt,16)}, {v(16+4*s_,4)}, {v(QF[tt]+4*s_,4)}, {"0" if s_ == 0 else v(32+16*tt,16)}')
    k(f's_lshl_b32 s3, s{sJ}, 12\ns_add_u32 s3, s3, s{sHo}\ns_add_u32 s3, s3, {112*2048}\ns_nop 8')
    T = vT
    for tt in range(2):
        N = 32 + 16*tt
        k(f'v_mov_b32 v{T}, v{N+12}\nv_mov_b32 v{T+1}, v{N+12}\nv_cndmask_b32 v{N+12}, v{N+12}, 0, s[{sHm}:{sHm+1}]\ns_nop 0\nv_permlane32_swap_b32 v{T}, v{T+1}')
        k(f'v_add_f32 v{T}, {hex(f2u(1e-6))}, v{T+1}\nv_rcp_f32 v{T}, v{T}\ns_nop 0')
        for i in range(8): k(f'v_pk_mul_f32 {pr(N+2*i)}, {pr(N+2*i)}, {pr(T)} op_sel_hi:[1,0]')
        pack8(k, N, 64 + 8*tt)
        for s_ in range(2): k.vmem(f'buffer_store_dwordx4 {v(64+8*tt+4*s_,4)}, v{vL16}, {srd(SW)}, s3 offen offset:{2048*s_+1024*tt} sc1', 'ost')

def oflag(k):
    set_flag(k, ['ost'], f's_lshl_b32 s3, s{sRb}, 2\ns_add_u32 s3, s3, s{sWave}\ns_lshl_b32 s3, s3, 5\ns_add_u32 s3, s3, s{sJ}\ns_lshl_b32 s3, s3, 2\ns_add_u32 s3, s3, {WS_OF}')

def phase2(k, typ):
    o = k.opt
    Lend = f'L_end{typ}'
    k(f's_cmp_eq_u32 s{sNb}, 7\ns_cbranch_scc1 {Lend}')
    AC = 0; HB = 64; NQ = 24; DEPTH = o.get('depth', 20)
    XR = 192
    k(f'''v_lshrrev_b32 v{vT}, 7, v{vL16}
    v_mul_u32_u24 v{vT+1}, 896, v{vT}
    v_and_b32 v{vT+2}, 0x70, v{vL16}
    v_add_u32 v{vT+1}, v{vT+1}, v{vT+2}
    s_lshl_b32 s3, s{sG2}, 2
    s_add_u32 s3, s3, s{sWave}
    s_mul_i32 s{sB}, s3, {16*896}
    s_lshl_b32 s3, s{sNb}, 7
    s_add_u32 s{sB}, s{sB}, s3
    s_add_u32 s{sB2}, s{sB}, {8*896}''')
    k.vmem(f'buffer_load_dwordx4 {v(XR,4)}, v{vT+1}, {srd(SX)}, s{sB} offen', 'xr')
    k.vmem(f'buffer_load_dwordx4 {v(XR+4,4)}, v{vT+1}, {srd(SX)}, s{sB2} offen', 'xr')
    vOA = 200
    k(f's_mul_i32 s3, s{sWave}, {14*1024 - XW}\ns_add_u32 s3, s3, {WB}')
    k(f'v_add_u32 v{vOA}, s3, v{vDA}\nv_add_u32 v{vOA+1}, s3, v{vDA+1}\nv_and_b32 v{vT+2}, 0x200, v{vL16}\nv_sub_u32 v{vOA+2}, v{vOA}, v{vT+2}\nv_sub_u32 v{vOA+3}, v{vOA+1}, v{vT+2}')
    k(f's_lshl_b32 s3, s{sG2}, 2\ns_add_u32 s3, s3, s{sWave}\ns_lshl_b32 s{sT0}, s3, 5\ns_add_u32 s{sT0}, s{sT0}, {WS_HF}\nv_lshrrev_b32 v{vPA}, 2, v{vL16}\nv_add_u32 v{vPA}, s{sT0}, v{vPA}')
    poll(k, 'L_hp', 8)
    k.stamp(7)
    k(f's_mul_i32 s{sC}, s{sG2}, {144*2048}\ns_mul_i32 s3, s{sWave}, {28*2048}\ns_add_u32 s{sA}, s{sC}, s3')
    k(f's_lshl_b32 s3, s{sWave}, 14\ns_add_u32 s{sC}, s{sC}, s3\ns_add_u32 s{sC}, s{sC}, {112*2048}')
    nload = 72
    def load(i):
        kap, tt = i >> 1, i & 1
        if kap == 28 and tt == 0:
            k(f's_lshl_b32 s{sT0}, s{sG2}, 7\ns_lshl_b32 s3, s{sWave}, 4\ns_add_u32 s{sT0}, s{sT0}, s3\ns_add_u32 s{sT0}, s{sT0}, {WS_OF}\nv_lshrrev_b32 v{vPA}, 2, v{vL16}\nv_add_u32 v{vPA}, s{sT0}, v{vPA}')
            poll(k, 'L_op', 4)
            k.stamp(8)
            k(f's_mov_b32 s{sA}, s{sC}')
        elif i and i % 4 == 0: k(f's_add_u32 s{sA}, s{sA}, 4096')
        r = HB + 4*(i % NQ)
        k.vmem(f'buffer_load_dwordx4 {v(r,4)}, v{vL16}, {srd(SW)}, s{sA} offen offset:{(i%4)*1024} sc1', f'h{i}')
    issued = 0
    while issued < DEPTH: load(issued); issued += 1
    OF = 224
    def oreads(ko):
        jj, s_ = ko >> 1, ko & 1; r = []
        for n in range(2):
            for j2 in range(2):
                va = vOA + n + (2 if (s_ == 1 and j2 == 1) else 0)
                d = OF + 8*(ko & 1) + 4*n + 2*j2
                r.append(f'ds_read_b64_tr_b16 a[{d}:{d+1}], v{va} offset:{(28*jj + 16*s_ + 8*j2)*128}')
        return r
    for kap in range(36):
        if kap == 27:
            k.wait('wo')
            for r in oreads(0): k(r)
        k.wait(f'h{2*kap+1}', extra='lgkmcnt(0)' if kap >= 28 else '')
        cnt = 0
        for tt in range(2):
            for n in range(2):
                D = AC + 32*n + 16*tt
                Af = a(8*kap + 4*n, 4) if kap < 28 else a(OF + 8*((kap-28) & 1) + 4*n, 4)
                k(f'v_mfma_f32_32x32x16_bf16 {v(D,16)}, {Af}, {v(HB+4*((2*kap+tt)%NQ),4)}, {"0" if kap == 0 else v(D,16)}')
                if cnt == 0 and 28 <= kap < 35:
                    for r in oreads(kap - 27): k(r)
                if cnt in (1, 3) and issued < nload: load(issued); issued += 1
                cnt += 1
    k.stamp(9)
    k(f'''v_lshrrev_b32 v{vT+2}, 4, v{vL16}
    v_and_b32 v{vT+3}, 31, v{vT+2}
    v_mul_u32_u24 v{vT+3}, {RP}, v{vT+3}
    v_lshrrev_b32 v{vT+4}, 5, v{vT+2}
    v_lshl_add_u32 v{vT+3}, v{vT+4}, 4, v{vT+3}
    v_add_u32 v{vT+3}, s{sMx}, v{vT+3}
    v_mul_u32_u24 v{vT+4}, {RP}, v{vT}
    v_and_b32 v{vT+5}, 0x70, v{vL16}
    v_lshl_add_u32 v{vT+4}, v{vT+5}, 1, v{vT+4}
    s_mul_i32 s3, s{sWave}, {16*RP}
    v_add_u32 v{vT+4}, s3, v{vT+4}
    v_add_u32 v{vT+5}, {2*XW}, v{vT+4}''')
    for tt in range(2):
        for n in range(2):
            if tt == 1 and n == 1: k('s_nop 0')
            for q in range(4): k(f'ds_write_b128 v{vT+3}, {v(AC+32*n+16*tt+4*q,4)} offset:{tt*32*RP + n*128 + q*32}')
    k('s_waitcnt lgkmcnt(0)\ns_barrier')
    for it in range(2):
        for w in range(4):
            for hf in range(2):
                k(f'ds_read_b128 {v(64+32*it+8*w+4*hf,4)}, v{vT+4+(w>>1)} offset:{(w&1)*XW + it*8*RP + 16*hf}')
    k.wait('xr')
    for i in range(8): k(f'v_lshlrev_b32 v{2*i}, 16, v{XR+i}\nv_and_b32 v{2*i+1}, 0xffff0000, v{XR+i}')
    for it in range(2):
        k(f's_waitcnt lgkmcnt({8*(1-it)})')
        for w in range(4):
            for i in range(4): k(f'v_pk_add_f32 {pr(8*it+2*i)}, {pr(8*it+2*i)}, {pr(64+32*it+8*w+2*i)}')
        pack8(k, 8*it, 16+4*it, 4)
        k.vmem(f'buffer_store_dwordx4 {v(16+4*it,4)}, v{vT+1}, {srd(SOUT)}, s{sB2 if it else sB} offen', 'out')
    k(f'{Lend}:')
    if o.get('stamps'):
        k(f's_memtime s[{sA}:{sA+1}]\ns_memrealtime s[{sC}:{sC+1}]\ns_waitcnt lgkmcnt(0)')
        k(f's_lshl_b32 s3, s2, 2\ns_add_u32 s3, s3, s{sWave}\ns_lshl_b32 s3, s3, 6\ns_add_u32 s3, s3, {WS_STAMP}\nv_mov_b32 v20, s3\ns_mov_b64 exec, 1')
        k(f'v_mov_b32 v0, s100\nv_mov_b32 v1, s{sC}')
        for i in range(1, 10): k(f's_sub_u32 s3, s{STAMP0+2*i}, s{STAMP0}\nv_mov_b32 v{1+i}, s3')
        k(f's_sub_u32 s3, s{sA}, s{STAMP0}\nv_mov_b32 v11, s3')
        for q in range(3): k(f'buffer_store_dwordx4 {v(4*q,4)}, v20, {srd(SW)}, 0 offen offset:{16*q}')
    k('s_endpgm')

def body(k, typ):
    type_setup(k, typ)
    main_loop(k, typ)
    stats_consts(k)
    if typ == 'Q':
        hooks = {0: lambda: d_step(k, None, 3), 1: lambda: d_step(k, 1, 4), 3: lambda: d_step(k, 2, 5)}
        ffn_epilogue(k, typ, hooks)
        k.stamp(4)
        hflag(k)
        k.stamp(5)
        d_step(k, 3, 6)
        wo_issue(k)
        q_part(k)
        for ci in (4, 5, 6): d_step(k, ci, None)
        o_part(k)
        oflag(k)
    else:
        hooks = {0: lambda: d_step(k, None, 3), 1: lambda: d_step(k, 1, 4), 2: lambda: d_step(k, 2, 5)}
        ffn_epilogue(k, typ, hooks)
        k.stamp(4)
        hflag(k)
        k.stamp(5)
        d_step(k, 3, 6)
        kv_part(k)
        wo_issue(k)
        kvflag(k)
        k.stamp(6)
        for ci in (4, 5, 6): d_step(k, ci, None)
    k('s_waitcnt lgkmcnt(0)')
    phase2(k, typ)

def generate(opt):
    k = K(opt); name = NAME + '_kernel'
    kernel_begin(k.A, name)
    prologue(k)
    k.vm = []
    body(k, 'KV')
    k('L_typeQ:')
    k.vm = []
    body(k, 'Q')
    k('L_codeend:')
    return assemble_file([(name, 256, 256, NLDS)], k.A.text(), [kernel_desc(name, 512, accum=256)])

if __name__ == '__main__':
    import json, hazard
    opt = json.loads(sys.argv[2]) if len(sys.argv) > 2 else {}
    txt = generate(opt)
    open(sys.argv[1], 'w').write(txt)
    e = hazard.check(txt)
    print(len(txt), 'bytes of text;', len(e), 'hazards')
```

```python
import sys, struct, math
from asmgen import *

def f2u(x): return struct.unpack('<I', struct.pack('<f', x))[0]

WS_H    = 0
WS_KVP  = 10 << 20
WS_ST   = 12 << 20
WS_HF   = WS_ST + 32768
WS_OF   = WS_HF + 4096
WS_KF   = WS_OF + 4096
WS_STAMP = 128 << 20
XW = 24576
WB = 98304; WS_ = 20736
MISC = WB + 3*WS_
L_PHI = MISC; L_CS = MISC + 2048
L_KVF = WB + 57344
SP = 208
RP = 272
NLDS = 163840

sWave, sRb = 26, 27
SX, SQ, SG, SU, SD, SO, SW, SOUT, SDBG, SPH, SGU = 28, 32, 36, 40, 44, 48, 52, 56, 60, 64, 68
sG, sU, sJ, sCg, sSt, sXb, sQb, sFb = 72, 73, 74, 75, 76, 77, 78, 79
sA, sA2, sB, sB2, sC, sC2 = 4, 5, 6, 7, 8, 9
sMx, sMa, sMf = 10, 11, 12
sT0, sT1, sT2 = 13, 14, 15
sL = 16
sHm = 18
sG2, sNb, sDb, sHo = 20, 21, 22, 23
sSpin = 24
sKap = 25
STAMP0 = 80

def srd(n): return f's[{n}:{n+3}]'

class K:
    def __init__(self, opt):
        self.A = Asm(); self.vm = []; self.opt = opt; self.nst = 0
    def __call__(self, t): self.A(t)
    def vmem(self, t, tag):
        self.A(t); self.vm.append(tag)
    def vmwait_n(self, *tags):
        last = max((i for i, x in enumerate(self.vm) if x in tags), default=None)
        if last is None: return None
        return len(self.vm) - 1 - last
    def wait(self, *tags, extra=''):
        n = self.vmwait_n(*tags)
        if n is None:
            if extra: self.A(f's_waitcnt {extra}')
            return
        assert n <= 63, n
        self.A(f's_waitcnt vmcnt({n}) {extra}')
        self.vm = self.vm[len(self.vm)-n:] if n else []
    def stamp(self, i):
        if self.opt.get('stamps'): self.A(f's_memtime s[{STAMP0+2*i}:{STAMP0+2*i+1}]')
    def emit(self, item):
        if callable(item): item()
        elif isinstance(item, tuple): self.vmem(*item)
        else: self.A(item)

vXP, vDP, vXA = 160, 164, 168
vAP, vAA, vCAA = 172, 173, 174
vFP, vFA, vCFA = 175, 178, 182
vCS = 186
vL16 = 191
vCT = 192
vU0, vU1 = 212, 213
vST = 214
vP2 = 218
vP3 = 222
vPoll, vPA = 226, 227
vWP = 228
vDA = 236
vCSA = 238
vT = 240
aFB = 200

def acc(c, tt): return 32*c + 16*tt
def fX(b, tt): return aFB + 28*b + 4*tt
def fW(b, c): return aFB + 28*b + 8 + 4*c

def poll(k, name, nl, target=None, srdn=SW):
    L = k.A.label(name)
    k(f's_mov_b64 exec, {(1<<nl)-1}\ns_mov_b32 s{sSpin}, 0\n{L}:')
    k(f'buffer_load_dword v{vPoll}, v{vPA}, {srd(srdn)}, 0 offen sc1\ns_add_u32 s{sSpin}, s{sSpin}, 1\ns_waitcnt vmcnt(0)')
    if target is None: k(f'v_cmp_eq_u32 vcc, 0, v{vPoll}')
    else: k(f'v_cmp_gt_u32 vcc, {target}, v{vPoll}')
    k(f's_cbranch_vccz {L}_x\ns_cmp_lt_u32 s{sSpin}, {k.opt.get("spin", 200000)}\ns_cbranch_scc1 {L}\n{L}_x:\ns_mov_b64 exec, -1')
    k.vm = []

def prologue(k):
    o = k.opt
    k(f's_cmp_lt_u32 s2, 256\ns_cbranch_scc1 L_go\ns_endpgm\nL_go:')
    k.stamp(0)
    if o.get('stamps') or o.get('fixdur'): k('s_memrealtime s[100:101]')
    k('s_load_dwordx16 s[4:19], s[0:1], 0\ns_load_dwordx4 s[20:23], s[0:1], 64\ns_load_dwordx2 s[24:25], s[0:1], 80')
    k(f'v_lshrrev_b32 v1, 6, v0\nv_and_b32 v0, 63, v0\nv_readfirstlane_b32 s{sWave}, v1')
    mp = o.get('map', 'x4')
    k(f's_and_b32 s3, s2, 7\ns_lshr_b32 s{sCg}, s2, 3')
    if mp == 'x4':
        k(f's_and_b32 s{sRb}, s{sCg}, 3\ns_and_b32 s{sSt}, s3, 4\ns_or_b32 s{sRb}, s{sRb}, s{sSt}\ns_and_b32 s{sG}, s3, 3\ns_lshr_b32 s{sU}, s{sCg}, 2')
    elif mp == 'x2':
        k(f's_and_b32 s{sRb}, s{sCg}, 1\ns_and_b32 s{sSt}, s3, 6\ns_or_b32 s{sRb}, s{sRb}, s{sSt}')
        k(f's_and_b32 s{sG}, s3, 1\ns_lshl_b32 s{sG}, s{sG}, 1\ns_bfe_u32 s{sSt}, s{sCg}, 0x10001\ns_or_b32 s{sG}, s{sG}, s{sSt}\ns_lshr_b32 s{sU}, s{sCg}, 2')
    elif mp == 'x1':
        k(f's_mov_b32 s{sRb}, s3\ns_and_b32 s{sG}, s{sCg}, 3\ns_lshr_b32 s{sU}, s{sCg}, 2')
    elif mp == 'x8':
        k(f's_and_b32 s{sRb}, s{sCg}, 7\ns_lshr_b32 s{sG}, s3, 1\ns_and_b32 s{sU}, s3, 1\ns_lshl_b32 s{sU}, s{sU}, 2\ns_lshr_b32 s{sSt}, s{sCg}, 3\ns_or_b32 s{sU}, s{sU}, s{sSt}')
    k(f's_lshr_b32 s{sJ}, s{sU}, 1\ns_lshl_b32 s{sSt}, s{sG}, 2\ns_or_b32 s{sJ}, s{sJ}, s{sSt}')
    k(f's_lshl_b32 s{sCg}, s{sG}, 3\ns_or_b32 s{sCg}, s{sCg}, s{sU}')
    rot = o.get('rot', None)
    if rot is None: k(f's_mov_b32 s{sSt}, 0')
    else:
        k(f's_mul_i32 s{sSt}, s{sRb}, {rot[0]}\ns_mul_i32 s{sXb}, s{sCg}, {rot[1]}\ns_add_u32 s{sSt}, s{sSt}, s{sXb}')
        k(f's_mul_i32 s{sXb}, s{sSt}, 9363\ns_lshr_b32 s{sXb}, s{sXb}, 16\ns_mul_i32 s{sXb}, s{sXb}, 7\ns_sub_u32 s{sSt}, s{sSt}, s{sXb}')
    k(f'''v_lshlrev_b32 v{vL16}, 4, v0
    v_lshrrev_b32 v1, 3, v0
    v_and_b32 v2, 7, v0
    v_mul_u32_u24 v3, 896, v1
    v_lshrrev_b32 v4, 1, v1
    v_xor_b32 v5, v2, v4
    v_lshl_add_u32 v{vXP}, v5, 4, v3
    v_xor_b32 v5, 4, v5
    v_lshl_add_u32 v{vXP+1}, v5, 4, v3
    v_add_u32 v{vXP+1}, 6144, v{vXP+1}
    v_add_u32 v{vXP+2}, {2*6144}, v{vXP}
    v_add_u32 v{vXP+3}, {2*6144}, v{vXP+1}
    v_lshrrev_b32 v6, 2, v0
    v_and_b32 v7, 3, v0
    v_mul_u32_u24 v6, 2688, v6
    v_lshlrev_b32 v8, 4, v7
    v_min_u32 v8, 40, v8
    v_add_u32 v{vAP}, v6, v8''')
    k(f's_lshl_b32 s{sXb}, s{sRb}, 2\ns_add_u32 s{sXb}, s{sXb}, s{sWave}\ns_mul_i32 s{sXb}, s{sXb}, {64*896}')
    k(f's_mul_i32 s{sQb}, s{sWave}, {16*2688}\ns_mul_i32 s3, s{sJ}, 56\ns_add_u32 s{sQb}, s{sQb}, s3')
    k('s_waitcnt lgkmcnt(0)')
    def mk(n, p, size): k(f's_mov_b32 s{n}, s{p}\ns_mov_b32 s{n+1}, s{p+1}\ns_mov_b32 s{n+2}, {size}\ns_mov_b32 s{n+3}, 0x20000')
    mk(SX, 4, 2048*896); mk(SW, 24, 1 << 28); mk(SQ, 6, 448*2688); mk(SG, 14, 448*3584); mk(SU, 16, 448*3584)
    k(f's_cmp_lt_u32 s{sWave}, 2\ns_cselect_b32 s{SGU}, s14, s16\ns_cselect_b32 s{SGU+1}, s15, s17\ns_mov_b32 s{SGU+2}, {448*3584}\ns_mov_b32 s{SGU+3}, 0x20000')
    mk(SD, 18, 1792*896); mk(SO, 10, 448*896); mk(SOUT, 20, 2048*896); mk(SDBG, 22, 256); mk(SPH, 8, 16*1568)
    k(f's_mul_i32 s{sMx}, s{sWave}, {XW}\ns_lshl_b32 s{sMa}, s{sWave}, 10\ns_add_u32 s{sMa}, s{sMa}, {WB}')
    k(f's_mov_b32 s{sL}, {hex(f2u(math.log2(math.e)))}\ns_mov_b32 s{sL+1}, s{sL}\ns_mov_b32 s{sHm}, 0\ns_mov_b32 s{sHm+1}, -1')
    k(f's_bitcmp1_b32 s{sU}, 0\ns_cbranch_scc1 L_typeQ')

def batch(k, typ, slot, first=False):
    g = []
    pre = []
    if not first:
        pre += [f's_add_u32 s{sSt}, s{sSt}, 1', f's_cmp_eq_u32 s{sSt}, 7', f's_cselect_b32 s{sSt}, 0, s{sSt}']
    tag = f'b{k.nb}'; k.nb += 1
    pre += [f's_mul_i32 s{sB}, s{sSt}, {64*2688}', f's_add_u32 s{sB}, s{sB}, s{sQb}', f's_add_u32 m0, s{sMa}, {slot*WS_}',
            f's_mul_i32 s{sC}, s{sSt}, {64*3584}']
    g.append(pre + [(f'buffer_load_dwordx4 v{vAP}, {srd(SQ)}, s{sB} offen lds', tag)])
    if typ == 'KV':
        g.append([f's_add_u32 m0, s{sMa}, {slot*WS_+4096}', f's_add_u32 s{sB2}, s{sB}, 896', (f'buffer_load_dwordx4 v{vAP}, {srd(SQ)}, s{sB2} offen lds', tag)])
        g.append([f's_add_u32 m0, s{sMf}, {slot*WS_}', f's_add_u32 s{sC}, s{sC}, s{sFb}', (f'buffer_load_dwordx4 v{vFP}, {srd(SGU)}, s{sC} offen lds', tag)])
        g.append([(f'buffer_load_dwordx4 v{vFP+1}, {srd(SGU)}, s{sC} offen offset:1024 lds', tag)])
        g.append([(f'buffer_load_dwordx4 v{vFP+2}, {srd(SGU)}, s{sC} offen offset:2048 lds', tag)])
    else:
        g.append([f's_add_u32 m0, s{sMf}, {slot*WS_}', f's_add_u32 s{sC}, s{sC}, s{sFb}', (f'buffer_load_dwordx4 v{vFP}, {srd(SG)}, s{sC} offen lds', tag)])
        g.append([f's_add_u32 s{sC2}, s{sC}, {8*3584-1024}', (f'buffer_load_dwordx4 v{vFP}, {srd(SG)}, s{sC2} offen offset:1024 lds', tag)])
        g.append([f's_add_u32 m0, s{sMf}, {slot*WS_+8192}', 's_nop 0', (f'buffer_load_dwordx4 v{vFP+1}, {srd(SU)}, s{sC} offen lds', tag)])
        g.append([(f'buffer_load_dwordx4 v{vFP+1}, {srd(SU)}, s{sC2} offen offset:1024 lds', tag)])
    for n in range(8):
        p = []
        if n == 0: p = [f's_add_u32 m0, s{sMx}, {slot*8192}', f's_lshl_b32 s{sA}, s{sSt}, 7', f's_add_u32 s{sA}, s{sA}, s{sXb}']
        if n == 4: p = [f's_add_u32 m0, s{sMx}, {slot*8192+4096}', f's_add_u32 s{sA}, s{sA}, {32*896}']
        g.append(p + [(f'buffer_load_dwordx4 v{vXP+(n&3)}, {srd(SX)}, s{sA} offen offset:{(n&3)*1024} lds', tag)])
    return g, tag

def dbatch(k, ci):
    slot = (7 + ci) % 3; tag = f'd{ci}'; g = []
    for n in range(8):
        p = []
        if n == 0: p = [f's_add_u32 m0, s{sMx}, {slot*8192}', f's_add_u32 s{sA}, s{sDb}, {ci*64*896}']
        if n == 4: p = [f's_add_u32 m0, s{sMx}, {slot*8192+4096}', f's_add_u32 s{sA}, s{sA}, {32*896}']
        g.append(p + [(f'buffer_load_dwordx4 v{vDP+(n&3)}, {srd(SD)}, s{sA} offen offset:{(n&3)*1024} lds', tag)])
    return g

def dreads(ci):
    slot = (7 + ci) % 3; r = []
    for kl in range(4):
        for n in range(2):
            for j2 in range(2):
                d = 8*(4*ci + kl) + 4*n + 2*j2
                r.append(f'ds_read_b64_tr_b16 a[{d}:{d+1}], v{vDA+n} offset:{slot*8192 + (16*kl + 8*j2)*128}')
    return r

def wread(typ, c, slot, ks, j2, cs=False):
    nat = 2 if typ == 'KV' else 1
    row = (0 if cs else 16*ks) + 4*j2
    if c < nat: return (vCAA if cs else vAA), slot*WS_ + c*4096 + row*64
    seg = c - nat
    if typ == 'KV': return (vCFA if cs else vFA), slot*WS_ + row*96 + seg*32
    return (vCFA if cs else vFA) + seg, slot*WS_ + row*128

def frag_reads(typ, b, slot, ks):
    r = [f'ds_read_b128 a[{fX(b,0)}:{fX(b,0)+3}], v{vXA+ks} offset:{slot*8192}']
    for c in range(5):
        for j2 in range(2):
            va, im = wread(typ, c, slot, ks, j2)
            r.append(f'ds_read_b64_tr_b16 a[{fW(b,c)+2*j2}:{fW(b,c)+2*j2+1}], v{va} offset:{im}')
        if c == 0: r.append(f'ds_read_b128 a[{fX(b,1)}:{fX(b,1)+3}], v{vXA+ks} offset:{slot*8192+4096}')
    return r

def type_setup(k, typ):
    if typ == 'KV':
        k(f's_add_u32 s{sQb}, s{sQb}, 896')
        tbl = 0
        for j in range(16):
            pos = [0,1,3,2][j & 3] if j < 8 else [1,0,2,3][j & 3]
            tbl |= pos << (2*j)
        k(f's_lshl_b32 s3, s{sJ}, 1\ns_lshr_b32 s3, {hex(tbl)}, s3\ns_and_b32 s3, s3, 3')
        k(f's_mul_i32 s{sKap}, s3, 3\ns_mul_i32 s{sT0}, s{sG}, 28\ns_add_u32 s{sKap}, s{sKap}, s{sT0}\ns_add_u32 s{sKap}, s{sKap}, 16')
        k(f's_and_b32 s3, s{sWave}, 1\ns_mul_i32 s{sFb}, s3, {32*3584}\ns_lshl_b32 s{sT0}, s{sKap}, 5\ns_add_u32 s{sFb}, s{sFb}, s{sT0}')
        k(f's_mul_i32 s{sMf}, s3, 3072\ns_lshr_b32 s3, s{sWave}, 1\ns_mul_i32 s3, s3, 6272\ns_add_u32 s{sMf}, s{sMf}, s3\ns_add_u32 s{sMf}, s{sMf}, {WB+8192}')
        for n in range(3):
            k(f'''v_add_u32 v9, {64*n}, v0
            v_mul_u32_u24 v10, 171, v9
            v_lshrrev_b32 v10, 10, v10
            v_mul_u32_u24 v11, 6, v10
            v_sub_u32 v11, v9, v11
            v_mul_u32_u24 v10, 3584, v10
            v_lshl_add_u32 v{vFP+n}, v11, 4, v10''')
            if n: k(f'v_subrev_u32 v{vFP+n}, {1024*n}, v{vFP+n}')
    else:
        k(f's_and_b32 s3, s{sJ}, 3\ns_lshl_b32 s{sKap}, s3, 2\ns_mul_i32 s{sT0}, s{sG}, 28\ns_add_u32 s{sKap}, s{sKap}, s{sT0}')
        k(f's_mul_i32 s{sFb}, s{sWave}, {16*3584}\ns_lshl_b32 s{sT0}, s{sKap}, 5\ns_add_u32 s{sFb}, s{sFb}, s{sT0}')
        k(f's_lshl_b32 s{sMf}, s{sWave}, 11\ns_add_u32 s{sMf}, s{sMf}, {WB+4096}')
        k(f'''v_and_b32 v9, 2, v1
        v_xor_b32 v9, v2, v9
        v_mul_u32_u24 v10, 3584, v1
        v_lshl_add_u32 v{vFP}, v9, 4, v10
        v_xor_b32 v9, 4, v9
        v_lshl_add_u32 v{vFP+1}, v9, 4, v10''')

def type_setup2(k, typ):
    k(f'''v_and_b32 v9, 31, v0
    v_lshrrev_b32 v10, 5, v0
    v_bfe_u32 v11, v0, 1, 3
    v_lshlrev_b32 v12, 7, v9
    v_add_u32 v12, s{sMx}, v12''')
    for ks in range(4):
        k(f'v_or_b32 v13, {2*ks}, v10\nv_xor_b32 v13, v13, v11\nv_lshl_add_u32 v{vXA+ks}, v13, 4, v12')
    k(f'''v_bfe_u32 v13, v0, 2, 2
    v_and_b32 v14, 3, v0
    v_bfe_u32 v15, v0, 4, 1
    v_lshl_add_u32 v16, v10, 3, v13
    v_lshl_add_u32 v17, v15, 2, v14
    v_cmp_lt_u32 vcc, 5, v17
    v_xor_b32 v18, 1, v17
    v_lshlrev_b32 v19, 6, v16
    v_cndmask_b32 v18, v17, v18, vcc
    v_add_u32 v19, {WB}, v19
    v_lshl_add_u32 v{vAA}, v18, 3, v19
    s_lshl_b32 s3, s{sWave}, 10
    v_add_u32 v{vCAA}, s3, v{vAA}''')
    if typ == 'KV':
        k(f'''v_mul_u32_u24 v19, 96, v16
        v_mul_u32_u24 v20, 6272, v15
        v_lshlrev_b32 v21, 3, v14
        v_add3_u32 v19, v19, v20, v21
        v_add_u32 v{vFA}, {WB+8192}, v19
        s_mul_i32 s3, s{sWave}, {16*96}
        v_add_u32 v{vCFA}, s3, v{vFA}''')
    else:
        k(f'''v_lshlrev_b32 v19, 7, v16
        v_lshlrev_b32 v20, 13, v15
        v_lshlrev_b32 v21, 3, v14
        v_add3_u32 v19, v19, v20, v21
        v_add_u32 v19, {WB+4096}, v19
        v_lshrrev_b32 v20, 1, v13
        v_lshl_add_u32 v20, v15, 1, v20
        s_lshl_b32 s3, s{sWave}, 11''')
        for seg in range(4):
            k(f'v_xor_b32 v21, {seg}, v20\nv_lshl_add_u32 v{vFA+seg}, v21, 5, v19\nv_add_u32 v{vCFA+seg}, s3, v{vFA+seg}')
    k(f'''v_and_b32 v19, 2, v1
    v_lshlrev_b32 v19, 1, v19
    v_xor_b32 v19, v2, v19
    v_lshl_add_u32 v{vDP}, v19, 4, v3
    v_add_u32 v{vDP+1}, 6144, v{vDP}
    v_add_u32 v{vDP+2}, {2*6144}, v{vDP}
    v_add_u32 v{vDP+3}, {3*6144}, v{vDP}
    v_lshl_add_u32 v19, v10, 2, v13
    v_lshlrev_b32 v19, 7, v19
    v_lshl_add_u32 v19, v17, 3, v19
    v_add_u32 v19, s{sMx}, v19
    v_lshrrev_b32 v20, 1, v13
    v_lshl_add_u32 v{vDA}, v20, 6, v19
    v_xor_b32 v20, 1, v20
    v_lshl_add_u32 v{vDA+1}, v20, 6, v19
    v_lshlrev_b32 v19, 4, v10
    v_add_u32 v{vCSA}, {L_CS}, v19''')
    for i in range(5): k(f'v_mov_b32 v{vCS+i}, 0')
    k(f's_and_b32 s3, s2, 7\ns_lshl_b32 s{sG2}, s3, 2\ns_bfe_u32 s3, s2, 0x20003\ns_or_b32 s{sG2}, s{sG2}, s3\ns_lshr_b32 s{sNb}, s2, 5')
    k(f's_min_u32 s3, s{sNb}, 6\ns_lshl_b32 s{sDb}, s3, 7\ns_mul_i32 s3, s{sWave}, {448*896}\ns_add_u32 s{sDb}, s{sDb}, s3')
    k(f's_lshl_b32 s3, s{sRb}, 2\ns_add_u32 s3, s3, s{sWave}\ns_mul_i32 s{sHo}, s3, {144*2048}')

def red32(k, r, t):
    for m in ('quad_perm:[1,0,3,2]', 'quad_perm:[2,3,0,1]', 'row_half_mirror', 'row_mirror'):
        k(f's_nop 1\nv_add_f32_dpp v{r}, v{r}, v{r} {m} row_mask:0xf bank_mask:0xf')
    k(f'v_mov_b32 v{t}, v{r}\ns_nop 1\nv_permlane16_swap_b32 v{r}, v{t}\nv_add_f32 v{r}, v{r}, v{t}')

def init_and_stats_issue(k, typ):
    L = k.A.label('L_nz')
    k(f's_cmp_lg_u32 s{sWave}, 0\ns_cbranch_scc1 {L}')
    k(f's_lshl_b32 s3, s{sRb}, 5\ns_add_u32 s3, s3, s{sCg}\ns_lshl_b32 s3, s3, 6\ns_add_u32 s3, s3, {WS_ST}\nv_lshl_add_u32 v9, v0, 2, s3')
    k(f's_lshl_b32 s3, s{sRb}, 9\ns_lshl_b32 s{sT0}, s{sCg}, 2\ns_add_u32 s{sT0}, s{sT0}, s3\ns_add_u32 s{sT0}, s{sT0}, {WS_HF}\nv_lshl_add_u32 v10, v7, 7, s{sT0}')
    if typ == 'KV':
        k(f's_lshl_b32 s3, s{sJ}, 7\ns_lshl_b32 s{sT0}, s{sRb}, 2\ns_add_u32 s{sT0}, s{sT0}, s3\ns_add_u32 s{sT0}, s{sT0}, {WS_KF}\nv_lshl_add_u32 v11, v7, 5, s{sT0}')
    else:
        k(f's_lshl_b32 s{sT0}, s{sJ}, 2\ns_add_u32 s{sT0}, s{sT0}, s3\ns_add_u32 s{sT0}, s{sT0}, {WS_OF}\nv_lshl_add_u32 v11, v7, 7, s{sT0}')
    k(f'v_cmp_lt_u32 vcc, 15, v0\ns_nop 1\nv_cndmask_b32 v9, v9, v10, vcc\nv_cmp_lt_u32 vcc, 19, v0\nv_mov_b32 v12, 0\ns_nop 0\nv_cndmask_b32 v9, v9, v11, vcc')
    k(f's_mov_b64 exec, 0xffffff\nbuffer_store_dword v12, v9, {srd(SW)}, 0 offen sc1\ns_mov_b64 exec, -1\n{L}:')
    k(f'''v_and_b32 v9, 31, v0
    v_lshrrev_b32 v10, 5, v0
    v_mul_u32_u24 v10, 896, v10
    v_lshl_add_u32 v10, v9, 4, v10
    v_cmp_lt_u32 vcc, 27, v9
    v_mov_b32 v11, 0x40000000
    s_lshl_b32 s3, s{sRb}, 7
    v_cndmask_b32 v10, v10, v11, vcc
    s_lshl_b32 s{sT0}, s{sCg}, 2
    s_add_u32 s3, s3, s{sT0}
    s_add_u32 s3, s3, s{sWave}
    s_mul_i32 s{sT0}, s3, {2*896}''')
    k.vmem(f'buffer_load_dwordx4 v[24:27], v10, {srd(SX)}, s{sT0} offen', 'srow')
    k.vmem(f'buffer_load_dwordx4 v[28:31], v10, {srd(SX)}, s{sT0} offen offset:448', 'srow')
    k(f's_lshl_b32 s{sT2}, s3, 4\ns_add_u32 s{sT2}, s{sT2}, {WS_ST}')

def stats_compute(k):
    k.wait('srow')
    k('v_mov_b32 v32, 0x3f803f80\nv_mov_b32 v33, 0\nv_mov_b32 v34, 0')
    for i in range(4): k(f'v_dot2_f32_bf16 v33, v{24+i}, v32, v33\nv_dot2_f32_bf16 v34, v{28+i}, v32, v34')
    k('s_nop 2\nv_add_f32 v33, v33, v34')
    red32(k, 33, 34)
    k(f'v_mul_f32 v33, {hex(f2u(-1.0/448))}, v33')
    for i in range(8): k(f'v_lshlrev_b32 v{36+2*i}, 16, v{24+i}\nv_and_b32 v{37+2*i}, 0xffff0000, v{24+i}')
    for i in range(8): k(f'v_pk_add_f32 v[{36+2*i}:{37+2*i}], v[{36+2*i}:{37+2*i}], v[32:33] op_sel:[0,1] op_sel_hi:[1,1]')
    k('v_pk_mul_f32 v[52:53], v[36:37], v[36:37]\nv_pk_mul_f32 v[54:55], v[38:39], v[38:39]')
    for i in range(2, 8): k(f'v_pk_fma_f32 v[{52+2*(i&1)}:{53+2*(i&1)}], v[{36+2*i}:{37+2*i}], v[{36+2*i}:{37+2*i}], v[{52+2*(i&1)}:{53+2*(i&1)}]')
    k('v_pk_add_f32 v[52:53], v[52:53], v[54:55]\nv_and_b32 v9, 31, v0\nv_cmp_lt_u32 vcc, 27, v9\nv_add_f32 v34, v52, v53\ns_nop 0\nv_cndmask_b32 v34, v34, 0, vcc')
    red32(k, 34, 35)
    k(f'v_mov_b32 v35, {hex(f2u(1e-5))}\nv_fmac_f32 v35, {hex(f2u(1.0/448))}, v34')
    k(f'v_mov_b32 v{vU0}, v33\nv_mov_b32 v{vU1}, v35\nv_lshrrev_b32 v9, 5, v0\nv_lshlrev_b32 v{vPA}, 3, v9')

def main_loop(k, typ):
    o = k.opt
    k.nb = 0
    init_and_stats_issue(k, typ)
    g0, t0 = batch(k, typ, 0, first=True)
    for g in g0:
        for it in g: k.emit(it)
    L = k.A.label('L_na')
    k(f's_cmp_lg_u32 s{sWave}, 0\ns_cbranch_scc1 {L}\ns_waitcnt vmcnt({len(k.vm)})')
    k(f's_and_b32 s3, s2, 1\ns_lshl_b32 s3, s3, 7\nv_mov_b32 v9, s3\nv_mov_b32 v10, 1\ns_mov_b64 exec, 1\nbuffer_atomic_add v10, v9, {srd(SDBG)}, 0 offen\ns_mov_b64 exec, -1')
    k(f's_branch {L}b\n{L}:')
    k(f's_getpc_b64 s[0:1]\n{L}p:\ns_sub_u32 s0, s0, {L}p-{NAME}_kernel\ns_subb_u32 s1, s1, 0')
    k(f's_lshr_b32 s3, s2, 3\ns_mul_i32 s3, s3, 3\ns_add_u32 s3, s3, s{sWave}\ns_lshl_b32 s3, s3, 10\ns_min_u32 s3, s3, L_codeend-{NAME}_kernel-1024\nv_add_u32 v9, s3, v{vL16}')
    k(f'global_load_dwordx4 v[252:255], v9, s[0:1]\n{L}b:')
    k.vm.append('atom')
    k(f's_and_b32 s3, s{sWave}, 1\ns_lshl_b32 s3, s3, 10\ns_add_u32 m0, s3, {L_PHI}\ns_mul_i32 s{sT0}, s{sJ}, 1568\ns_add_u32 s3, s3, s{sT0}')
    k.vmem(f'buffer_load_dwordx4 v{vL16}, {srd(SPH)}, s3 offen lds', 'phi')
    g1, t1 = batch(k, typ, 1)
    for g in g1:
        for it in g: k.emit(it)
    k.stamp(1)
    type_setup2(k, typ)
    k(f'v_mov_b32 v20, 0\nv_mov_b32 v21, 0\nv_mov_b32 v22, 0\nv_mov_b32 v23, 0\nv_add_u32 v19, {L_CS}, v{vL16}\ns_mov_b32 exec_hi, 0xff\nds_write_b128 v19, v[20:23]\ns_mov_b64 exec, -1')
    stats_compute(k)
    k.wait(t0, extra='lgkmcnt(0)')
    k('s_barrier')
    k.stamp(2)
    for r in frag_reads(typ, 0, 0, 0): k(r)
    k(f's_mov_b32 exec_lo, 1\ns_mov_b32 exec_hi, 1')
    k.vmem(f'buffer_store_dwordx2 v[{vU0}:{vU1}], v{vPA}, {srd(SW)}, s{sT2} offen sc1', 'stst')
    k('s_mov_b64 exec, -1')
    tags = {0: t0, 1: t1}
    pend = []
    cs_pending = []
    ctp = 0
    for s in range(7):
        slot = s % 3
        for ks in range(4):
            b = (4*s + ks) & 1
            last = (s == 6 and ks == 3)
            pre = []
            reads = []
            if ks == 3:
                if s < 6: reads = frag_reads(typ, b ^ 1, (s+1) % 3, 0)
            else: reads = frag_reads(typ, b ^ 1, slot, ks+1)
            if s == 0 and ks == 0:
                pend, tags[2] = batch(k, typ, 2)
            newb = None
            if ks == 3:
                if s + 3 <= 6: newb = ('w', s+3)
                else: newb = ('d', s + 3 - 7)
            cs_s, w = (s+1, 0) if ks == 3 else (s, ks+1)
            plan = (3,3,2,2)
            if cs_s == 0: plan = (0,4,3,3)
            if cs_s == 6: plan = (5,5,0,0)
            csr = []; newcs = []
            if cs_s <= 6:
                st0 = sum(plan[:w])
                for hI in range(st0, st0 + plan[w]):
                    c, j2 = hI >> 1, hI & 1
                    va, im = wread(typ, c, cs_s % 3, 0, j2, cs=True)
                    tr = vCT + 2*(ctp % 10); ctp += 1
                    csr.append(f'ds_read_b64_tr_b16 v[{tr}:{tr+1}], v{va} offset:{im}')
                    newcs.append((c, tr))
            valu = []
            for (c, tr) in cs_pending:
                for e in range(2):
                    valu += [f'v_lshlrev_b32 v{vU0}, 16, v{tr+e}', f'v_and_b32 v{vU1}, 0xffff0000, v{tr+e}',
                             f'v_add_f32 v{vCS+c}, v{vCS+c}, v{vU0}', f'v_add_f32 v{vCS+c}, v{vCS+c}, v{vU1}']
            cs_pending = newcs
            extra = []
            if s == 6 and ks == 2:
                extra.append(f'v_and_b32 v{vU0}, 0x1f0, v{vL16}')
                extra.append(f'v_lshrrev_b32 v{vU0}, 2, v{vU0}')
                extra.append(f'v_add_u32 v{vU0}, {L_CS}, v{vU0}')
                for c in range(5): extra.append(f'ds_add_f32 v{vU0}, v{vCS+c} offset:{c*128}')
            if s == 6 and ks in (1, 2):
                dr = dreads(0)
                if ks == 1: extra.append(lambda: k.wait('d0'))
                extra += dr[:8] if ks == 1 else dr[8:]
            k('s_waitcnt lgkmcnt(0)')
            mf = []
            for c in range(5):
                for tt in range(2):
                    D = acc(c, tt); C = '0' if (s == 0 and ks == 0) else v(D, 16)
                    mf.append(f'v_mfma_f32_32x32x16_bf16 {v(D,16)}, {a(fW(b,c),4)}, {a(fX(b,tt),4)}, {C}')
            gaps = [[] for _ in range(10)]
            if ks == 3:
                assert not pend
                def bar(s=s):
                    if s < 6: k.wait(tags[s+1])
                    k('s_barrier')
                gaps[0].append(bar)
                if s == 4:
                    gaps[1] += [f'v_lshlrev_b32 v{vPA}, 3, v{vL16}', 's_mov_b64 exec, 3', (f'buffer_load_dword v{vPoll}, v{vPA}, {srd(SDBG)}, 0 offen sc1', 'ipoll'), 's_mov_b64 exec, -1']
                if s == 5:
                    def chk():
                        k.wait('ipoll')
                        L = k.A.label('L_iok')
                        k(f's_mov_b64 exec, 3\nv_cmp_gt_u32 vcc, 128, v{vPoll}\ns_mov_b64 exec, -1\ns_cbranch_vccz {L}')
                        save = list(k.vm)
                        poll(k, 'L_ip', 2, target=128, srdn=SDBG)
                        k.vm = save
                        k(f'{L}:')
                        k(f'v_and_b32 v{vPA}, 0x1f0, v{vL16}\nv_lshrrev_b32 v{vPA}, 1, v{vPA}\ns_lshl_b32 s3, s{sRb}, 2\ns_add_u32 s3, s3, s{sWave}\ns_lshl_b32 s3, s3, 9\ns_add_u32 s{sT2}, s3, {WS_ST}')
                        k.vmem(f'buffer_load_dwordx2 v[{vST}:{vST+1}], v{vPA}, {srd(SW)}, s{sT2} offen sc1', 'stld')
                        k.vmem(f'buffer_load_dwordx2 v[{vST+2}:{vST+3}], v{vPA}, {srd(SW)}, s{sT2} offen offset:256 sc1', 'stld')
                    gaps[1].append(chk)
                if newb[0] == 'w': pend, tags[newb[1]] = batch(k, typ, newb[1] % 3)
                else: pend = dbatch(k, newb[1])
            rd = reads + csr
            gi = 1 if ks == 3 else 0
            while rd:
                gaps[gi] += rd[:3]; rd = rd[3:]; gi += 1
            remaining_ks = {3: 4, 0: 3, 1: 2, 2: 1}[ks]
            if last: remaining_ks = 1
            nd = -(-len(pend) // remaining_ks)
            pos = {0: [], 1: [5], 2: [3, 7], 3: [2, 5, 8], 4: [2, 4, 6, 8], 5: [1, 3, 5, 7, 9], 8: [2,3,4,5,6,7,8,9]}[nd]
            for p in pos:
                gaps[p] += pend.pop(0)
            rest = valu + extra
            cap = 6
            while True:
                free = sum(max(0, cap - len(gp)) for gp in gaps[1:])
                if free >= len(rest): break
                cap += 1
            gi = 1
            for it in rest:
                while len(gaps[gi]) >= cap: gi += 1
                gaps[gi].append(it)
            for i in range(10):
                k(mf[i])
                for it in gaps[i]: k.emit(it)
    k.stamp(3)

def stats_consts(k):
    k.wait('stld')
    L = k.A.label('L_sok')
    k(f's_mov_b32 s{sSpin}, 0\n{L}r:\nv_cmp_eq_u32 vcc, 0, v{vST+1}\nv_cmp_eq_u32 s[{sT0+1}:{sT0+2}], 0, v{vST+3}') if False else None
    k(f's_mov_b32 s{sSpin}, 0\n{L}r:\nv_min_u32 v{vU0}, v{vST+1}, v{vST+3}\nv_cmp_eq_u32 vcc, 0, v{vU0}\ns_cbranch_vccz {L}')
    k(f's_add_u32 s{sSpin}, s{sSpin}, 1\ns_cmp_ge_u32 s{sSpin}, {k.opt.get("spin", 200000)}\ns_cbranch_scc1 {L}')
    k(f'buffer_load_dwordx2 v[{vST}:{vST+1}], v{vPA}, {srd(SW)}, s{sT2} offen sc1\nbuffer_load_dwordx2 v[{vST+2}:{vST+3}], v{vPA}, {srd(SW)}, s{sT2} offen offset:256 sc1\ns_waitcnt vmcnt(0)\ns_branch {L}r\n{L}:')
    c0 = -2*math.sqrt(2/math.pi)*math.log2(math.e); c1 = c0*0.044715
    for tt in range(2): k(f'v_rsq_f32 v{vP3+2*tt}, v{vST+2*tt+1}')
    for tt in range(2): k(f'v_mul_f32 v{vP3+2*tt+1}, v{vP3+2*tt}, v{vP3+2*tt}\nv_mul_f32 v{vP2+2*tt}, {hex(f2u(c0))}, v{vP3+2*tt}')
    for tt in range(2): k(f'v_mul_f32 v{vP2+2*tt+1}, {hex(f2u(0.044715))}, v{vP2+2*tt}')
    for tt in range(2): k(f'v_mul_f32 v{vP2+2*tt+1}, v{vP2+2*tt+1}, v{vP3+2*tt+1}')

def pr(r): return f'v[{r}:{r+1}]'
def cs_reads(c, dst): return [f'ds_read_b128 {v(dst+4*q,4)}, v{vCSA} offset:{c*128+q*32}' for q in range(4)]

def ffn_unit(k, c, tt, seg, CS):
    A_ = acc(c, tt); P1 = vST + 2*tt; P2 = vP2 + 2*tt; T = vT
    for i in range(8): k(f'v_pk_fma_f32 {pr(A_+2*i)}, {pr(CS+2*i)}, {pr(P1)}, {pr(A_+2*i)} op_sel_hi:[1,0,1]')
    for i in range(4): k(f'v_pk_mul_f32 {pr(T+2*i)}, {pr(A_+2*i)}, {pr(A_+2*i)}')
    for i in range(4): k(f'v_pk_fma_f32 {pr(T+2*i)}, {pr(T+2*i)}, {pr(P2)}, {pr(P2)} op_sel:[0,1,0] op_sel_hi:[1,1,0]')
    for i in range(4): k(f'v_pk_mul_f32 {pr(T+2*i)}, {pr(A_+2*i)}, {pr(T+2*i)}')
    for i in range(8): k(f'v_exp_f32 v{T+i}, v{T+i}')
    for i in range(4): k(f'v_pk_mul_f32 {pr(A_+2*i)}, {pr(A_+2*i)}, {pr(A_+8+2*i)}')
    for i in range(4): k(f'v_pk_fma_f32 {pr(T+2*i)}, {pr(T+2*i)}, {pr(P1)}, {pr(P1)} op_sel:[0,1,1] op_sel_hi:[1,1,1]')
    for i in range(8): k(f'v_rcp_f32 v{T+i}, v{T+i}')
    k(f's_add_u32 s3, s{sKap}, {seg}\ns_lshl_b32 s3, s3, 11\ns_add_u32 s3, s3, s{sHo}')
    for i in range(4): k(f'v_pk_mul_f32 {pr(A_+2*i)}, {pr(A_+2*i)}, {pr(T+2*i)}')
    for i in range(4): k(f'v_cvt_pk_bf16_f32 v{A_+8+i}, v{A_+2*i}, v{A_+2*i+1}')
    k.vmem(f'buffer_store_dwordx4 {v(A_+8,4)}, v{vL16}, {srd(SW)}, s3 offen offset:{tt*1024} sc1', 'hst')

def d_step(k, ci_read, ci_issue):
    if ci_read is not None:
        k.wait(f'd{ci_read}')
        for r in dreads(ci_read): k(r)
    if ci_issue is not None:
        k('s_waitcnt lgkmcnt(0)')
        for g in dbatch(k, ci_issue):
            for it in g: k.emit(it)

def ffn_epilogue(k, typ, hooks):
    nat = 2 if typ == 'KV' else 1
    tiles = list(range(nat, 5))
    CSb = [vCT, 160]
    CSb = [vCT, vCT]
    for n, c in enumerate(tiles):
        for r in cs_reads(c, vCT): k(r)
        k('s_waitcnt lgkmcnt(0)')
        for tt in range(2):
            ffn_unit(k, c, tt, c - nat, vCT)
        if n in hooks: hooks[n]()

def norm_pack(k, c, tt, CS, dst):
    A_ = acc(c, tt); P1 = vST + 2*tt; P3 = vP3 + 2*tt
    for i in range(8): k(f'v_pk_fma_f32 {pr(A_+2*i)}, {pr(CS+2*i)}, {pr(P1)}, {pr(A_+2*i)} op_sel_hi:[1,0,1]')
    for i in range(8): k(f'v_pk_mul_f32 {pr(A_+2*i)}, {pr(A_+2*i)}, {pr(P3)} op_sel_hi:[1,0]')

def pack8(k, src, dst, n=8):
    for i in range(n): k(f'v_cvt_pk_bf16_f32 v{dst+i}, v{src+2*i}, v{src+2*i+1}')

def wphi_prep(k):
    k(f'''v_lshrrev_b32 v{vT}, 4, v{vL16}
    v_bfe_u32 v{vT+1}, v{vT}, 2, 2
    v_lshrrev_b32 v{vT+2}, 5, v{vT}
    v_lshl_add_u32 v{vT+1}, v{vT+2}, 2, v{vT+1}
    v_mul_u32_u24 v{vT+1}, 56, v{vT+1}
    v_bfe_u32 v{vT+2}, v{vT}, 4, 1
    v_and_b32 v{vT+3}, 3, v{vT}
    v_lshl_add_u32 v{vT+2}, v{vT+2}, 2, v{vT+3}
    v_min_u32 v{vT+2}, 6, v{vT+2}
    v_lshl_add_u32 v{vT+1}, v{vT+2}, 3, v{vT+1}
    v_add_u32 v{vT+1}, {L_PHI}, v{vT+1}''')
    for s_ in range(2):
        for j2 in range(2):
            k(f'ds_read_b64_tr_b16 {pr(vWP+4*s_+2*j2)}, v{vT+1} offset:{(16*s_+8*j2)*56}')
    k('s_waitcnt lgkmcnt(0)')
    for i in range(8): k(f'v_mov_b32_dpp v{vWP+i}, v{vWP+i} quad_perm:[2,3,2,3] row_mask:0xa bank_mask:0x8')
    k(f'v_cndmask_b32 v{vWP+6}, v{vWP+6}, 0, s[{sHm}:{sHm+1}]\nv_cndmask_b32 v{vWP+7}, v{vWP+7}, 0, s[{sHm}:{sHm+1}]')

def feature_map(k, c, CS, E, F):
    T = vT
    for tt in range(2):
        norm_pack(k, c, tt, CS, None)
        pack8(k, acc(c, tt), E + 16*tt)
    k('s_nop 1')
    for tt in range(2):
        P = acc(c, tt)
        k(f'v_mfma_f32_32x32x16_bf16 {v(P,16)}, {v(vWP,4)}, {v(E+16*tt,4)}, 0')
        k(f'v_mfma_f32_32x32x16_bf16 {v(P,16)}, {v(vWP+4,4)}, {v(E+16*tt+4,4)}, {v(P,16)}')
    k('s_nop 9')
    for tt in range(2):
        P = acc(c, tt); M = E + 16*tt
        if tt == 1: pass
        k(f'v_max3_f32 v{T}, v{P}, v{P+1}, v{P+2}\nv_min3_f32 v{T+1}, v{P}, v{P+1}, v{P+2}')
        for i in range(3, 13, 2): k(f'v_max3_f32 v{T}, v{T}, v{P+i}, v{P+i+1}\nv_min3_f32 v{T+1}, v{T+1}, v{P+i}, v{P+i+1}')
        k(f'v_max_f32 v{T}, v{T}, v{P+13}\nv_min_f32 v{T+1}, v{T+1}, v{P+13}')
        k(f'v_mov_b32 v{T+2}, v{T}\nv_mov_b32 v{T+3}, v{T+1}\ns_nop 1\nv_permlane32_swap_b32 v{T}, v{T+2}\nv_permlane32_swap_b32 v{T+1}, v{T+3}')
        k(f'v_max_f32 v{T}, v{T}, v{T+2}\nv_min_f32 v{T+1}, v{T+1}, v{T+3}')
        k(f'v_pk_mul_f32 {pr(T)}, {pr(T)}, s[{sL}:{sL+1}]')
        for i in range(7): k(f'v_pk_fma_f32 {pr(M+2*i)}, {pr(P+2*i)}, s[{sL}:{sL+1}], {pr(T)} op_sel:[0,0,1] op_sel_hi:[1,1,1] neg_lo:[1,0,0] neg_hi:[1,0,0]')
        for i in range(7): k(f'v_pk_fma_f32 {pr(P+2*i)}, {pr(P+2*i)}, s[{sL}:{sL+1}], {pr(T)} op_sel_hi:[1,1,0] neg_lo:[0,0,1] neg_hi:[0,0,1]')
        for i in range(14): k(f'v_exp_f32 v{M+i}, v{M+i}')
        for i in range(14): k(f'v_exp_f32 v{P+i}, v{P+i}')
        k(f'v_pk_add_f32 {pr(T+6)}, {pr(M)}, {pr(M+2)}\nv_pk_add_f32 {pr(T+4)}, {pr(P)}, {pr(P+2)}')
        for i in range(2, 7): k(f'v_pk_add_f32 {pr(T+6)}, {pr(T+6)}, {pr(M+2*i)}\nv_pk_add_f32 {pr(T+4)}, {pr(T+4)}, {pr(P+2*i)}')
        k(f'v_add_f32 v{T+1}, v{T+6}, v{T+7}\nv_add_f32 v{T}, v{T+4}, v{T+5}')
        k(f'v_mov_b32 v{T+3}, v{T+1}\nv_mov_b32 v{T+2}, v{T}\ns_nop 1\nv_permlane32_swap_b32 v{T+1}, v{T+3}\nv_permlane32_swap_b32 v{T}, v{T+2}')
        k(f'v_pk_add_f32 {pr(T)}, {pr(T)}, {pr(T+2)}\nv_rcp_f32 v{T}, v{T}\nv_rcp_f32 v{T+1}, v{T+1}\ns_nop 0')
        for i in range(7): k(f'v_pk_mul_f32 {pr(P+2*i)}, {pr(P+2*i)}, {pr(T)} op_sel_hi:[1,0]')
        for i in range(7): k(f'v_pk_mul_f32 {pr(M+2*i)}, {pr(M+2*i)}, {pr(T)} op_sel:[0,1] op_sel_hi:[1,1]')
        pack8(k, P, F[tt], 7); pack8(k, M, F[tt]+8, 7)
        k(f'v_mov_b32 v{F[tt]+7}, 0\nv_mov_b32 v{F[tt]+15}, 0')

def set_flag(k, tags, addr_code):
    k(addr_code)
    k(f'v_mov_b32 v{vPA}, s3\nv_mov_b32 v{vPoll}, 1')
    k.wait(*tags)
    k('s_mov_b64 exec, 1')
    k.vmem(f'buffer_store_dword v{vPoll}, v{vPA}, {srd(SW)}, 0 offen sc1', 'flag')
    k('s_mov_b64 exec, -1')

def hflag(k):
    set_flag(k, ['hst'], f's_lshl_b32 s3, s{sRb}, 2\ns_add_u32 s3, s3, s{sWave}\ns_lshl_b32 s3, s3, 5\ns_add_u32 s3, s3, s{sCg}\ns_lshl_b32 s3, s3, 2\ns_add_u32 s3, s3, {WS_HF}')

def wo_issue(k):
    k(f's_mul_i32 s{sT0}, s{sWave}, {14*1024}\ns_add_u32 s{sT0}, s{sT0}, {WB}')
    k(f's_min_u32 s3, s{sNb}, 6\ns_lshl_b32 s3, s3, 7\ns_mul_i32 s{sA}, s{sWave}, {112*896}\ns_add_u32 s{sA}, s{sA}, s3')
    for n in range(14):
        if n % 4 == 0:
            k(f's_add_u32 m0, s{sT0}, {n*1024}')
            k(f's_add_u32 s{sA}, s{sA}, {32*896}' if n else 's_nop 0')
        k.vmem(f'buffer_load_dwordx4 v{vDP+(n&3)}, {srd(SO)}, s{sA} offen offset:{(n&3)*1024} lds', 'wo')

def kv_part(k):
    E = 64; F = [96, 112]; V = 128
    wphi_prep(k)
    for r in cs_reads(0, vCT): k(r)
    for r in cs_reads(1, 144): k(r)
    k('s_waitcnt lgkmcnt(0)')
    for tt in range(2):
        norm_pack(k, 1, tt, 144, None)
        A_ = acc(1, tt)
        k(f'v_cndmask_b32 v{A_+12}, v{A_+12}, 1.0, s[{sHm}:{sHm+1}]')
        for i in (13, 14, 15): k(f'v_cndmask_b32 v{A_+i}, v{A_+i}, 0, s[{sHm}:{sHm+1}]')
        pack8(k, A_, V + 8*tt)
    aw = 144
    k(f'''v_lshrrev_b32 v{aw}, 4, v{vL16}
    v_and_b32 v{aw+1}, 31, v{aw}
    v_lshrrev_b32 v{aw+2}, 5, v{aw}
    v_mul_u32_u24 v{aw+1}, {SP}, v{aw+1}
    v_lshl_add_u32 v{aw+1}, v{aw+2}, 5, v{aw+1}
    s_mul_i32 s3, s{sWave}, {64*SP}
    s_add_u32 s3, s3, {WB}
    v_add_u32 v{aw+1}, s3, v{aw+1}''')
    for tt in range(2):
        for q in range(2): k(f'ds_write_b128 v{aw+1}, {v(V+8*tt+4*q,4)} offset:{tt*32*SP+128+16*q}')
    feature_map(k, 0, vCT, E, F)
    for tt in range(2):
        for sec in range(2):
            for q in range(2): k(f'ds_write_b128 v{aw+1}, {v(F[tt]+8*sec+4*q,4)} offset:{tt*32*SP+64*sec+16*q}')
    k(f'''v_lshrrev_b32 v{aw+2}, 4, v{aw}
    v_lshlrev_b32 v{aw+2}, 3, v{aw+2}
    v_bfe_u32 v{aw+3}, v{aw}, 2, 1
    v_bfe_u32 v{aw+4}, v{aw}, 3, 1
    v_lshl_add_u32 v{aw+3}, v{aw+4}, 2, v{aw+3}
    v_add_u32 v{aw+2}, v{aw+2}, v{aw+3}
    v_mul_u32_u24 v{aw+2}, {SP}, v{aw+2}
    v_and_b32 v{aw+3}, 1, v{aw}
    v_lshl_add_u32 v{aw+2}, v{aw+3}, 5, v{aw+2}
    v_bfe_u32 v{aw+3}, v{aw}, 1, 1
    v_lshl_add_u32 v{aw+2}, v{aw+3}, 3, v{aw+2}
    v_add_u32 v{aw+2}, {WB}, v{aw+2}
    s_lshr_b32 s3, s{sWave}, 1
    s_lshl_b32 s3, s3, 6
    s_and_b32 s{sT0}, s{sWave}, 1
    s_lshl_b32 s{sT0}, s{sT0}, 4
    s_add_u32 s3, s3, s{sT0}
    v_add_u32 v{aw+3}, s3, v{aw+2}''')
    k('s_waitcnt lgkmcnt(0)\ns_barrier')
    for kk in range(8):
        for j2 in range(2):
            im = (32*kk + 2*j2)*SP
            k(f'ds_read_b64_tr_b16 {pr(12*kk+2*j2)}, v{aw+3} offset:{im}')
            for dt in range(2): k(f'ds_read_b64_tr_b16 {pr(12*kk+4+4*dt+2*j2)}, v{aw+2} offset:{im+128+16*dt}')
    D = 96
    k('s_waitcnt lgkmcnt(0)')
    for kk in range(8):
        for dt in range(2):
            k(f'v_mfma_f32_16x16x32_bf16 {v(D+4*dt,4)}, {v(12*kk,4)}, {v(12*kk+4+4*dt,4)}, {"0" if kk == 0 else v(D+4*dt,4)}')
    k('s_barrier')
    k(f'''v_lshrrev_b32 v{aw+2}, 5, v{aw}
    v_lshlrev_b32 v{aw+2}, 10, v{aw+2}
    v_bfe_u32 v{aw+3}, v{aw}, 4, 1
    v_lshl_add_u32 v{aw+2}, v{aw+3}, 9, v{aw+2}
    v_and_b32 v{aw+3}, 15, v{aw}
    v_lshl_add_u32 v{aw+2}, v{aw+3}, 4, v{aw+2}
    s_lshl_b32 s3, s{sJ}, 3
    s_add_u32 s3, s3, s{sRb}
    s_lshl_b32 s3, s3, 2
    s_add_u32 s3, s3, s{sWave}
    s_lshl_b32 s3, s3, 11
    s_add_u32 s3, s3, {WS_KVP}''')
    for dt in range(2): k.vmem(f'buffer_store_dwordx4 {v(D+4*dt,4)}, v{aw+2}, {srd(SW)}, s3 offen offset:{256*dt} sc1', 'kvst')

def kvflag(k):
    set_flag(k, ['kvst'], f's_lshl_b32 s3, s{sJ}, 2\ns_add_u32 s3, s3, s{sWave}\ns_lshl_b32 s3, s3, 3\ns_add_u32 s3, s3, s{sRb}\ns_lshl_b32 s3, s3, 2\ns_add_u32 s3, s3, {WS_KF}')

QF = [128, 144]
def q_part(k):
    wphi_prep(k)
    for r in cs_reads(0, vCT): k(r)
    k('s_waitcnt lgkmcnt(0)')
    feature_map(k, 0, vCT, 32, QF)

def o_part(k):
    k(f's_lshl_b32 s3, s{sJ}, 2\ns_add_u32 s3, s3, s{sWave}\ns_lshl_b32 s{sT0}, s3, 5\ns_add_u32 s{sT0}, s{sT0}, {WS_KF}\nv_lshrrev_b32 v{vPA}, 2, v{vL16}\nv_add_u32 v{vPA}, s{sT0}, v{vPA}')
    poll(k, 'L_kp', 8)
    k.stamp(6)
    k(f's_lshl_b32 s3, s{sJ}, 5\ns_add_u32 s3, s3, s{sWave}\ns_lshl_b32 s3, s3, 11\ns_add_u32 s3, s3, {WS_KVP}')
    for rb in range(8):
        for q in range(2): k.vmem(f'buffer_load_dwordx4 {v(8*rb+4*q,4)}, v{vL16}, {srd(SW)}, s3 offen offset:{1024*q} sc1', f'kv{rb}')
        if rb < 7: k(f's_add_u32 s3, s3, 8192')
    for rb in range(1, 8):
        k.wait(f'kv{rb}')
        for i in range(4): k(f'v_pk_add_f32 {pr(2*i)}, {pr(2*i)}, {pr(8*rb+2*i)}')
    pack8(k, 0, 8, 4)
    k(f's_lshl_b32 s3, s{sWave}, 10\ns_add_u32 s3, s3, {L_KVF}\nv_add_u32 v12, s3, v{vL16}\nv_add_u32 v13, {L_KVF}, v{vL16}')
    k(f'ds_write_b128 v12, v[8:11]\ns_waitcnt lgkmcnt(0)\ns_barrier')
    for s_ in range(4): k(f'ds_read_b128 {v(16+4*s_,4)}, v13 offset:{1024*s_}')
    k('s_waitcnt lgkmcnt(0)')
    for tt in range(2):
        for s_ in range(4):
            k(f'v_mfma_f32_32x32x16_bf16 {v(32+16*tt,16)}, {v(16+4*s_,4)}, {v(QF[tt]+4*s_,4)}, {"0" if s_ == 0 else v(32+16*tt,16)}')
    k(f's_lshl_b32 s3, s{sJ}, 12\ns_add_u32 s3, s3, s{sHo}\ns_add_u32 s3, s3, {112*2048}\ns_nop 8')
    T = vT
    for tt in range(2):
        N = 32 + 16*tt
        k(f'v_mov_b32 v{T}, v{N+12}\nv_mov_b32 v{T+1}, v{N+12}\nv_cndmask_b32 v{N+12}, v{N+12}, 0, s[{sHm}:{sHm+1}]\ns_nop 0\nv_permlane32_swap_b32 v{T}, v{T+1}')
        k(f'v_add_f32 v{T}, {hex(f2u(1e-6))}, v{T+1}\nv_rcp_f32 v{T}, v{T}\ns_nop 0')
        for i in range(8): k(f'v_pk_mul_f32 {pr(N+2*i)}, {pr(N+2*i)}, {pr(T)} op_sel_hi:[1,0]')
        pack8(k, N, 64 + 8*tt)
        for s_ in range(2): k.vmem(f'buffer_store_dwordx4 {v(64+8*tt+4*s_,4)}, v{vL16}, {srd(SW)}, s3 offen offset:{2048*s_+1024*tt} sc1', 'ost')

def oflag(k):
    set_flag(k, ['ost'], f's_lshl_b32 s3, s{sRb}, 2\ns_add_u32 s3, s3, s{sWave}\ns_lshl_b32 s3, s3, 5\ns_add_u32 s3, s3, s{sJ}\ns_lshl_b32 s3, s3, 2\ns_add_u32 s3, s3, {WS_OF}')

def phase2(k, typ):
    o = k.opt
    Lend = f'L_end{typ}'
    k(f's_cmp_eq_u32 s{sNb}, 7\ns_cbranch_scc1 {Lend}')
    AC = 0; HB = 64; NQ = 24; DEPTH = o.get('depth', 20)
    XR = 192
    k(f'''v_lshrrev_b32 v{vT}, 7, v{vL16}
    v_mul_u32_u24 v{vT+1}, 896, v{vT}
    v_and_b32 v{vT+2}, 0x70, v{vL16}
    v_add_u32 v{vT+1}, v{vT+1}, v{vT+2}
    s_lshl_b32 s3, s{sG2}, 2
    s_add_u32 s3, s3, s{sWave}
    s_mul_i32 s{sB}, s3, {16*896}
    s_lshl_b32 s3, s{sNb}, 7
    s_add_u32 s{sB}, s{sB}, s3
    s_add_u32 s{sB2}, s{sB}, {8*896}''')
    k.vmem(f'buffer_load_dwordx4 {v(XR,4)}, v{vT+1}, {srd(SX)}, s{sB} offen', 'xr')
    k.vmem(f'buffer_load_dwordx4 {v(XR+4,4)}, v{vT+1}, {srd(SX)}, s{sB2} offen', 'xr')
    vOA = 200
    k(f's_mul_i32 s3, s{sWave}, {14*1024 - XW}\ns_add_u32 s3, s3, {WB}')
    k(f'v_add_u32 v{vOA}, s3, v{vDA}\nv_add_u32 v{vOA+1}, s3, v{vDA+1}\nv_and_b32 v{vT+2}, 0x200, v{vL16}\nv_sub_u32 v{vOA+2}, v{vOA}, v{vT+2}\nv_sub_u32 v{vOA+3}, v{vOA+1}, v{vT+2}')
    k(f's_lshl_b32 s3, s{sG2}, 2\ns_add_u32 s3, s3, s{sWave}\ns_lshl_b32 s{sT0}, s3, 5\ns_add_u32 s{sT0}, s{sT0}, {WS_HF}\nv_lshrrev_b32 v{vPA}, 2, v{vL16}\nv_add_u32 v{vPA}, s{sT0}, v{vPA}')
    poll(k, 'L_hp', 8)
    k.stamp(7)
    k(f's_mul_i32 s{sC}, s{sG2}, {144*2048}\ns_mul_i32 s3, s{sWave}, {28*2048}\ns_add_u32 s{sA}, s{sC}, s3')
    k(f's_lshl_b32 s3, s{sWave}, 14\ns_add_u32 s{sC}, s{sC}, s3\ns_add_u32 s{sC}, s{sC}, {112*2048}')
    nload = 72
    def load(i):
        kap, tt = i >> 1, i & 1
        if kap == 28 and tt == 0:
            k(f's_lshl_b32 s{sT0}, s{sG2}, 7\ns_lshl_b32 s3, s{sWave}, 4\ns_add_u32 s{sT0}, s{sT0}, s3\ns_add_u32 s{sT0}, s{sT0}, {WS_OF}\nv_lshrrev_b32 v{vPA}, 2, v{vL16}\nv_add_u32 v{vPA}, s{sT0}, v{vPA}')
            poll(k, 'L_op', 4)
            k.stamp(8)
            k(f's_mov_b32 s{sA}, s{sC}')
        elif i and i % 4 == 0: k(f's_add_u32 s{sA}, s{sA}, 4096')
        r = HB + 4*(i % NQ)
        k.vmem(f'buffer_load_dwordx4 {v(r,4)}, v{vL16}, {srd(SW)}, s{sA} offen offset:{(i%4)*1024} sc1', f'h{i}')
    issued = 0
    while issued < DEPTH: load(issued); issued += 1
    OF = 224
    def oreads(ko):
        jj, s_ = ko >> 1, ko & 1; r = []
        for n in range(2):
            for j2 in range(2):
                va = vOA + n + (2 if (s_ == 1 and j2 == 1) else 0)
                d = OF + 8*(ko & 1) + 4*n + 2*j2
                r.append(f'ds_read_b64_tr_b16 a[{d}:{d+1}], v{va} offset:{(28*jj + 16*s_ + 8*j2)*128}')
        return r
    for kap in range(36):
        if kap == 27:
            k.wait('wo')
            for r in oreads(0): k(r)
        k.wait(f'h{2*kap+1}', extra='lgkmcnt(0)' if kap >= 28 else '')
        cnt = 0
        for tt in range(2):
            for n in range(2):
                D = AC + 32*n + 16*tt
                Af = a(8*kap + 4*n, 4) if kap < 28 else a(OF + 8*((kap-28) & 1) + 4*n, 4)
                k(f'v_mfma_f32_32x32x16_bf16 {v(D,16)}, {Af}, {v(HB+4*((2*kap+tt)%NQ),4)}, {"0" if kap == 0 else v(D,16)}')
                if cnt == 0 and 28 <= kap < 35:
                    for r in oreads(kap - 27): k(r)
                if cnt in (1, 3) and issued < nload: load(issued); issued += 1
                cnt += 1
    k.stamp(9)
    k(f'''v_lshrrev_b32 v{vT+2}, 4, v{vL16}
    v_and_b32 v{vT+3}, 31, v{vT+2}
    v_mul_u32_u24 v{vT+3}, {RP}, v{vT+3}
    v_lshrrev_b32 v{vT+4}, 5, v{vT+2}
    v_lshl_add_u32 v{vT+3}, v{vT+4}, 4, v{vT+3}
    v_add_u32 v{vT+3}, s{sMx}, v{vT+3}
    v_mul_u32_u24 v{vT+4}, {RP}, v{vT}
    v_and_b32 v{vT+5}, 0x70, v{vL16}
    v_lshl_add_u32 v{vT+4}, v{vT+5}, 1, v{vT+4}
    s_mul_i32 s3, s{sWave}, {16*RP}
    v_add_u32 v{vT+4}, s3, v{vT+4}
    v_add_u32 v{vT+5}, {2*XW}, v{vT+4}''')
    for tt in range(2):
        for n in range(2):
            if tt == 1 and n == 1: k('s_nop 0')
            for q in range(4): k(f'ds_write_b128 v{vT+3}, {v(AC+32*n+16*tt+4*q,4)} offset:{tt*32*RP + n*128 + q*32}')
    k('s_waitcnt lgkmcnt(0)\ns_barrier')
    for it in range(2):
        for w in range(4):
            for hf in range(2):
                k(f'ds_read_b128 {v(64+32*it+8*w+4*hf,4)}, v{vT+4+(w>>1)} offset:{(w&1)*XW + it*8*RP + 16*hf}')
    k.wait('xr')
    for i in range(8): k(f'v_lshlrev_b32 v{2*i}, 16, v{XR+i}\nv_and_b32 v{2*i+1}, 0xffff0000, v{XR+i}')
    for it in range(2):
        k(f's_waitcnt lgkmcnt({8*(1-it)})')
        for w in range(4):
            for i in range(4): k(f'v_pk_add_f32 {pr(8*it+2*i)}, {pr(8*it+2*i)}, {pr(64+32*it+8*w+2*i)}')
        pack8(k, 8*it, 16+4*it, 4)
        k.vmem(f'buffer_store_dwordx4 {v(16+4*it,4)}, v{vT+1}, {srd(SOUT)}, s{sB2 if it else sB} offen', 'out')
    k(f'{Lend}:')
    if o.get('fixdur'):
        k(f'{Lend}f:\ns_memrealtime s[{sC}:{sC+1}]\ns_waitcnt lgkmcnt(0)\ns_sub_u32 s3, s{sC}, s100\ns_cmp_lt_u32 s3, {o["fixdur"]}\ns_cbranch_scc1 {Lend}f')
    if o.get('stamps'):
        k(f's_memtime s[{sA}:{sA+1}]\ns_memrealtime s[{sC}:{sC+1}]\ns_waitcnt lgkmcnt(0)')
        k(f's_lshl_b32 s3, s2, 2\ns_add_u32 s3, s3, s{sWave}\ns_lshl_b32 s3, s3, 6\ns_add_u32 s3, s3, {WS_STAMP}\nv_mov_b32 v20, s3\ns_mov_b64 exec, 1')
        k(f'v_mov_b32 v0, s100\nv_mov_b32 v1, s{sC}')
        for i in range(1, 10): k(f's_sub_u32 s3, s{STAMP0+2*i}, s{STAMP0}\nv_mov_b32 v{1+i}, s3')
        k(f's_sub_u32 s3, s{sA}, s{STAMP0}\nv_mov_b32 v11, s3')
        for q in range(3): k(f'buffer_store_dwordx4 {v(4*q,4)}, v20, {srd(SW)}, 0 offen offset:{16*q}')
    k('s_endpgm')

def body(k, typ):
    type_setup(k, typ)
    main_loop(k, typ)
    stats_consts(k)
    if typ == 'Q':
        hooks = {0: lambda: d_step(k, None, 3), 1: lambda: d_step(k, 1, 4), 3: lambda: d_step(k, 2, 5)}
        ffn_epilogue(k, typ, hooks)
        k.stamp(4)
        hflag(k)
        k.stamp(5)
        d_step(k, 3, 6)
        wo_issue(k)
        q_part(k)
        for ci in (4, 5, 6): d_step(k, ci, None)
        o_part(k)
        oflag(k)
    else:
        hooks = {0: lambda: d_step(k, None, 3), 1: lambda: d_step(k, 1, 4), 2: lambda: d_step(k, 2, 5)}
        ffn_epilogue(k, typ, hooks)
        k.stamp(4)
        hflag(k)
        k.stamp(5)
        d_step(k, 3, 6)
        kv_part(k)
        wo_issue(k)
        kvflag(k)
        k.stamp(6)
        for ci in (4, 5, 6): d_step(k, ci, None)
    k('s_waitcnt lgkmcnt(0)')
    phase2(k, typ)

def generate(opt):
    k = K(opt); name = NAME + '_kernel'
    kernel_begin(k.A, name)
    prologue(k)
    k.vm = []
    body(k, 'KV')
    k('L_typeQ:')
    k.vm = []
    body(k, 'Q')
    k('L_codeend:')
    return assemble_file([(name, 256, 256, NLDS)], k.A.text(), [kernel_desc(name, 512, accum=256)])

if __name__ == '__main__':
    import json, hazard
    opt = json.loads(sys.argv[2]) if len(sys.argv) > 2 else {}
    txt = generate(opt)
    open(sys.argv[1], 'w').write(txt)
    e = hazard.check(txt)
    print(len(txt), 'bytes of text;', len(e), 'hazards')
```

```python
import sys, struct, math
from collections import deque
from asmgen import *

def f2u(x): return struct.unpack('<I', struct.pack('<f', x))[0]

WS_H    = 0
WS_KVP  = 10 << 20
WS_ST   = 12 << 20
WS_FL   = WS_ST + 32768
WS_KF   = WS_FL + 262144
WS_STAMP = 128 << 20
OOB = 0x40000000
XW = 24576
WB = 98304; WS_ = 20736
L_CS = WB + 57344
L_PHI = 163840 - 2048
KVF_OFF = 20480
SP = 208
RP = 272
NLDS = 163840

sA, sA2, sB, sB2, sC, sC2 = 4, 5, 6, 7, 8, 9
sMx, sMa, sMf = 10, 11, 12
sT0, sT1, sT2 = 13, 14, 15
sL = 16
sHm = 18
sG2, sNb, sDb, sHo = 20, 21, 22, 23
sSpin, sKap, sWave, sRb = 24, 25, 26, 27
SX, SQ, SG, SU, SD, SO, SW, SOUT, SDBG, SPH, SGU = 28, 32, 36, 40, 44, 48, 52, 56, 60, 64, 68
sG, sU, sJ, sCg, sSt, sXb, sQb, sFb = 72, 73, 74, 75, 76, 77, 78, 79
sFh, sF2 = 16, 17
SPF = 56
sMu = 76
STAMP0 = 80

def srd(n): return f's[{n}:{n+3}]'
def pr(r): return f'v[{r}:{r+1}]'

TRANS = ('v_exp_f32', 'v_rcp_f32', 'v_rsq_f32')
def cost(line):
    op = line.split()[0]
    if op.endswith(':') or op.startswith('.') or op.startswith(';'): return 0
    if op.startswith('v_mfma'): return 32 if '32x32' in op else 16
    if op in TRANS: return 8
    if op == 's_nop': return 4*(int(line.split()[1]) + 1)
    if op == 'ds_write_b128': return 16
    return 4

class K:
    def __init__(self, opt):
        self.A = Asm(); self.vm = []; self.opt = opt
        self.t = 0; self.bg = deque(); self.timed = []; self.lastbg = -10**9; self.inbg = False
    def raw(self, t):
        for l in t.strip('\n').split('\n'):
            l = l.strip()
            if l: self.A(l); self.t += cost(l)
    def __call__(self, t): self.raw(t)
    def f(self, t):
        for l in t.strip('\n').split('\n'):
            l = l.strip()
            if l: self.raw(l); self.tick()
    def tick(self):
        if self.inbg: return
        self.inbg = True
        for it in [x for x in self.timed if x[0] <= self.t]:
            self.timed.remove(it); it[1]()
        if self.bg and self.t - self.lastbg >= self.bg[0][0] and (len(self.bg[0]) < 3 or self.bg[0][2]()):
            g = self.bg.popleft()
            for it in g[1]: self.emit(it)
            self.lastbg = self.t
        self.inbg = False
    def flush_bg(self, timed=True):
        self.inbg = True
        while self.bg:
            g = self.bg.popleft()
            assert len(g) < 3 or g[2]()
            for it in g[1]: self.emit(it)
            for it in [x for x in self.timed if x[0] <= self.t]:
                self.timed.remove(it); it[1]()
            self.t += 60
        if timed:
            for it in list(self.timed): self.timed.remove(it); it[1]()
        self.inbg = False
    def vmem(self, t, tag):
        for key, srds in (('ntw', (SQ, SG, SU, SGU)), ('ntx', (SX,)), ('ntd', (SD, SO)), ('ntp', (SPF,))):
            if self.opt.get(key) and t.startswith('buffer_load') and any(srd(n) in t for n in srds):
                t = t.replace(' lds', ' nt lds') if t.endswith(' lds') else t + ' nt'
        self.raw(t); self.vm.append(tag)
    def wait(self, *tags, extra=''):
        last = max((i for i, x in enumerate(self.vm) if x in tags), default=None)
        if last is None:
            if extra: self.raw(f's_waitcnt {extra}')
            return
        n = len(self.vm) - 1 - last
        assert n <= 63, n
        self.raw(f's_waitcnt vmcnt({n}) {extra}')
        self.vm = self.vm[len(self.vm)-n:] if n else []
    def stamp(self, i, grp=1):
        if self.opt.get('stamps') and (i <= 2 or self.opt.get('stamps') == grp): self.A(f's_memtime s[{STAMP0+2*i}:{STAMP0+2*i+1}]')
    def emit(self, item):
        if callable(item): item()
        elif isinstance(item, tuple): self.vmem(*item)
        else: self.raw(item)

vXP, vDP, vXA = 160, 164, 168
vAP, vAA, vCAA = 172, 173, 174
vFP, vFA, vCFA = 175, 178, 182
vCS = 186
vL16 = 191
vCT = 192
vU0, vU1 = 212, 213
vST = 214
vP2 = 218
vP3 = 222
vPoll, vPA = 226, 227
vWP = 228
vDA = 236
vF0, vOne = 238, 239
vT = 240
vJ = 252
vMB = 240
vS0 = 248
aFB = 200

def acc(c, tt): return 32*c + 16*tt
def fX(b, tt): return aFB + 28*b + 4*tt
def fW(b, c): return aFB + 28*b + 8 + 4*c

def spin(k, name, load, cmp_, mask):
    L = k.A.label(name)
    k(f's_mov_b32 s{sSpin}, 0\n{L}:\n{load}\ns_add_u32 s{sSpin}, s{sSpin}, 1\ns_waitcnt vmcnt(0)\n{cmp_}')
    if mask is None: k(f's_cbranch_vccz {L}_x')
    else: k(f's_and_b32 s3, vcc_lo, {mask}\ns_cbranch_scc0 {L}_x')
    if k.opt.get('sleep'): k(f's_sleep {k.opt["sleep"]}')
    k(f's_cmp_lt_u32 s{sSpin}, {k.opt.get("spin", 200000)}\ns_cbranch_scc1 {L}\n{L}_x:')

def gate(k, name, tag, load, cmp_, mask):
    k.wait(tag)
    L = k.A.label(name)
    k(cmp_)
    if mask is None: k(f's_cbranch_vccz {L}')
    else: k(f's_and_b32 s3, vcc_lo, {mask}\ns_cbranch_scc0 {L}')
    t = k.t
    spin(k, name + 's', load, cmp_, mask)
    k.t = t
    k(f'{L}:')

def iftype(k, fkv, fq):
    L = k.A.label('L_ty')
    k(f's_bitcmp1_b32 s{sU}, 0\ns_cbranch_scc1 {L}q')
    sv = (list(k.vm), k.t, k.nb)
    fkv()
    n = len(k.vm)
    k(f's_branch {L}j\n{L}q:')
    k.vm, k.t, k.nb = sv
    fq()
    assert len(k.vm) == n
    k(f'{L}j:')

def prologue(k):
    o = k.opt
    k.nb = 0
    k(f's_cmp_lt_u32 s2, 256\ns_cbranch_scc1 L_go\ns_endpgm\nL_go:')
    k.stamp(0)
    if o.get('stamps') or o.get('fixdur'): k('s_memrealtime s[100:101]')
    k(f'v_lshrrev_b32 v1, 6, v0\ns_getpc_b64 s[20:21]\nL_pc:\nv_readfirstlane_b32 s{sWave}, v1')
    k(f's_lshr_b32 s{sCg}, s2, 3\nv_lshrrev_b32 v2, 4, v0\nv_lshl_add_u32 v2, v2, 5, s{sCg}\nv_lshlrev_b32 v2, 7, v2\nv_min_u32 v2, L_codeend-L_pc-4, v2')
    k(f's_mov_b32 exec_lo, 0x10001\ns_mov_b32 exec_hi, 0x10001')
    k.vmem(f'global_load_dword v{vJ}, v2, s[20:21]', 'pf')
    k(f's_mov_b64 exec, -1\ns_lshl_b32 s3, s{sWave}, 3\ns_lshr_b32 s3, 0x08302800, s3\ns_and_b32 s3, s3, 0xff\ns_load_dwordx2 s[{SPF}:{SPF+1}], s[0:1], s3')
    for n, off in ((SQ, 8), (SX, 0), (SG, 40), (SU, 48), (SW, 80), (SD, 56), (SO, 24), (SDBG, 72), (SPH, 16)): k(f's_load_dwordx2 s[{n}:{n+1}], s[0:1], {off}')
    k('v_and_b32 v0, 63, v0')
    assert o.get('map', 'x4') == 'x4'
    k(f's_and_b32 s{sG}, s2, 3')
    P, B, S, R, M, Z = 4, 5, 6, 7, 8, 9
    k(f'''s_mul_i32 s{B}, s{sG}, 896
    s_lshr_b32 s3, s{B}, 2
    s_andn2_b32 s3, s3, 127
    s_cmp_eq_u32 s{sWave}, 3
    s_cselect_b32 s{B}, s3, s{B}
    s_movk_i32 s{P}, 3584
    s_cselect_b32 s{P}, 2688, s{P}
    s_movk_i32 s{S}, 512
    s_cselect_b32 s{S}, 896, s{S}
    s_mov_b32 s{M}, 0x007f007f
    s_cselect_b32 s{M}, 0x07770777, s{M}
    s_lshl_b32 s{R}, s{sCg}, 1
    s_lshl_b32 s{Z}, s{P}, 6
    s_mul_i32 s{SPF+2}, s{P}, 448
    s_and_b32 s3, s2, 4
    s_lshl_b32 s3, s3, 3
    s_add_u32 s3, s3, s{sCg}
    s_lshl_b32 s3, s3, 5
    s_cmp_eq_u32 s{sWave}, 0
    s_cselect_b32 s{R}, s3, s{R}
    s_cselect_b32 s{P}, 896, s{P}
    s_cselect_b32 s{B}, 0, s{B}
    s_cselect_b32 s{M}, -1, s{M}
    s_cselect_b32 s{Z}, 128, s{Z}
    s_cselect_b32 s{SPF+2}, {2048*896}, s{SPF+2}
    s_cselect_b32 s3, 0, 4
    s_cselect_b32 s{sT0}, 0, 15
    s_mov_b32 s{SPF+3}, 0x20000
    v_and_b32 v9, 31, v0
    v_lshrrev_b32 v2, s3, v9
    v_add_u32 v2, s{R}, v2
    v_mul_lo_u32 v2, v2, s{P}
    v_and_b32 v3, s{sT0}, v0
    v_lshrrev_b32 v4, 2, v3
    v_mad_u32_u24 v2, v4, s{S}, v2
    v_and_b32 v3, 3, v3
    v_lshl_add_u32 v2, v3, 7, v2
    v_add_u32 v2, s{B}, v2
    s_mov_b32 exec_lo, s{M}
    s_mov_b32 exec_hi, 0
    s_waitcnt lgkmcnt(0)''')
    k.stamp(3, 5)
    npf = o.get('npf', 2)
    for i in range(npf):
        if i: k(f'v_add_u32 v2, s{Z}, v2')
        k.vmem(f'buffer_load_dword v{vJ+1}, v2, {srd(SPF)}, 0 offen', 'pf')
    k('s_mov_b64 exec, -1')
    k(f's_and_b32 s{sRb}, s{sCg}, 3\ns_and_b32 s3, s2, 4\ns_or_b32 s{sRb}, s{sRb}, s3\ns_lshr_b32 s{sU}, s{sCg}, 2')
    k(f's_lshr_b32 s{sJ}, s{sU}, 1\ns_lshl_b32 s3, s{sG}, 2\ns_or_b32 s{sJ}, s{sJ}, s3')
    k(f's_lshl_b32 s{sCg}, s{sG}, 3\ns_or_b32 s{sCg}, s{sCg}, s{sU}\ns_mov_b32 s{sSt}, 0')
    k(f'''v_lshlrev_b32 v{vL16}, 4, v0
    v_lshrrev_b32 v1, 3, v0
    v_and_b32 v2, 7, v0
    v_mul_u32_u24 v3, 896, v1
    v_lshrrev_b32 v4, 1, v1
    v_xor_b32 v5, v2, v4
    v_lshl_add_u32 v{vXP}, v5, 4, v3
    v_xor_b32 v5, 4, v5
    v_lshl_add_u32 v{vXP+1}, v5, 4, v3
    v_add_u32 v{vXP+1}, 6144, v{vXP+1}
    v_add_u32 v{vXP+2}, {2*6144}, v{vXP}
    v_add_u32 v{vXP+3}, {2*6144}, v{vXP+1}
    v_lshrrev_b32 v6, 2, v0
    v_and_b32 v7, 3, v0
    v_mul_u32_u24 v6, 2688, v6
    v_lshlrev_b32 v8, 4, v7
    v_min_u32 v8, 40, v8
    v_add_u32 v{vAP}, v6, v8
    v_lshrrev_b32 v10, 5, v0
    v_mov_b32 v11, {OOB}''')
    k(f's_lshl_b32 s{sHo}, s{sRb}, 2\ns_add_u32 s{sHo}, s{sHo}, s{sWave}\ns_mul_i32 s{sXb}, s{sHo}, {64*896}')
    k(f's_mul_i32 s{sQb}, s{sWave}, {16*2688}\ns_mul_i32 s3, s{sJ}, 56\ns_add_u32 s{sQb}, s{sQb}, s3')
    for n, size in ((SX, 2048*896), (SW, 1 << 28), (SQ, 448*2688), (SG, 448*3584), (SU, 448*3584)):
        k(f's_mov_b32 s{n+2}, {size}\ns_mov_b32 s{n+3}, 0x20000')
    k(f's_mul_i32 s{sMx}, s{sWave}, {XW}\ns_lshl_b32 s{sMa}, s{sWave}, 10\ns_add_u32 s{sMa}, s{sMa}, {WB}')
    gx = batch(k, 'Q', 0, first=True)[0][5:]
    k.nb = 0
    nx0 = o.get('nx0', 4)
    for g in gx[:nx0]:
        for it in g: k.emit(it)
    k.stamp(4, 5)
    k(f'''v_mul_u32_u24 v22, 896, v10
    v_lshl_add_u32 v22, v9, 4, v22
    v_cmp_lt_u32 vcc, 27, v9
    s_lshl_b32 s3, s{sRb}, 7
    s_lshl_b32 s{sT0}, s{sCg}, 2
    v_cndmask_b32 v22, v22, v11, vcc
    s_add_u32 s3, s3, s{sT0}
    s_add_u32 s{sT2}, s3, s{sWave}
    s_mul_i32 s{sT1}, s{sT2}, {2*896}
    s_lshl_b32 s{sT2}, s{sT2}, 4
    s_add_u32 s{sT2}, s{sT2}, {WS_ST}
    v_cmp_eq_u32 vcc, 0, v9
    v_lshlrev_b32 v12, 3, v10
    s_lshl_b32 s3, s{sHo}, 2
    v_cndmask_b32 v{vMB+1}, v11, v12, vcc''')
    k(f's_add_u32 s3, s3, s{sG}\ns_lshl_b32 s3, s3, 4\ns_lshr_b32 s{sT0}, s{sU}, 1\ns_add_u32 s3, s3, s{sT0}\ns_lshl_b32 s{sFh}, s3, 7')
    common_setup2(k)
    iftype(k, lambda: type_setup(k, 'KV'), lambda: type_setup(k, 'Q'))
    k(f'''v_lshl_add_u32 v23, v0, 2, s{sT2}
    v_cmp_lt_u32 vcc, 5, v0
    v_writelane_b32 v23, s{sFh}, 4
    v_writelane_b32 v23, s{sF2}, 5
    v_mov_b32 v21, 0
    v_cndmask_b32 v23, v23, v11, vcc''')
    k.vmem(f'buffer_store_dword v21, v23, {srd(SW)}, 0 offen sc1', 'zero')
    k.stamp(5, 5)
    for g in gx[nx0:]:
        for it in g: k.emit(it)
    def w0(typ):
        for g in batch(k, typ, 0, first=True)[0][:5]:
            for it in g: k.emit(it)
    iftype(k, lambda: w0('KV'), lambda: w0('Q'))
    k.stamp(6, 5)
    k(f's_bitcmp1_b32 s{sU}, 0\ns_cbranch_scc1 L_typeQ')

def type_setup(k, typ):
    if typ == 'KV':
        k(f's_add_u32 s{sQb}, s{sQb}, 896')
        tbl = 0
        for j in range(16): tbl |= ([0,1,3,2][j & 3] if j < 8 else [1,0,2,3][j & 3]) << (2*j)
        k(f's_lshl_b32 s3, s{sJ}, 1\ns_lshr_b32 s3, {hex(tbl)}, s3\ns_and_b32 s3, s3, 3')
        k(f's_mul_i32 s{sKap}, s3, 3\ns_mul_i32 s{sT0}, s{sG}, 28\ns_add_u32 s{sKap}, s{sKap}, s{sT0}\ns_add_u32 s{sKap}, s{sKap}, 16')
        k(f's_and_b32 s3, s{sWave}, 1\ns_mul_i32 s{sFb}, s3, {32*3584}\ns_lshl_b32 s{sT0}, s{sKap}, 5\ns_add_u32 s{sFb}, s{sFb}, s{sT0}')
        k(f's_mul_i32 s{sMf}, s3, 3072\ns_lshr_b32 s3, s{sWave}, 1\ns_mul_i32 s3, s3, 6272\ns_add_u32 s{sMf}, s{sMf}, s3\ns_add_u32 s{sMf}, s{sMf}, {WB+8192}')
        for n in range(3):
            k(f'''v_add_u32 v12, {64*n}, v0
            v_mul_u32_u24 v19, 171, v12
            v_lshrrev_b32 v19, 10, v19
            v_mul_u32_u24 v20, 6, v19
            v_sub_u32 v20, v12, v20
            v_mul_u32_u24 v19, 3584, v19
            v_lshl_add_u32 v{vFP+n}, v20, 4, v19''')
            if n: k(f'v_subrev_u32 v{vFP+n}, {1024*n}, v{vFP+n}')
        k(f's_mov_b32 s{SGU+2}, {448*3584}\ns_mov_b32 s{SGU+3}, 0x20000')
        k(f's_cmp_lt_u32 s{sWave}, 2\ns_cselect_b32 s{SGU}, s{SG}, s{SU}\ns_cselect_b32 s{SGU+1}, s{SG+1}, s{SU+1}')
        k(f's_add_u32 s{sFh}, s{sFh}, {WS_FL+4*128}')
        k(f's_lshl_b32 s3, s{sJ}, 2\ns_add_u32 s3, s3, s{sWave}\ns_lshl_b32 s3, s3, 3\ns_add_u32 s3, s3, s{sRb}\ns_lshl_b32 s3, s3, 7\ns_add_u32 s{sF2}, s3, {WS_KF}')
        k(f'''v_mul_u32_u24 v19, 96, v16
        v_mul_u32_u24 v20, 6272, v15
        v_lshlrev_b32 v12, 3, v14
        v_add3_u32 v19, v19, v20, v12
        v_add_u32 v{vFA}, {WB+8192}, v19
        s_mul_i32 s3, s{sWave}, {16*96}
        v_add_u32 v{vCFA}, s3, v{vFA}''')
    else:
        k(f's_and_b32 s3, s{sJ}, 3\ns_lshl_b32 s{sKap}, s3, 2\ns_mul_i32 s{sT0}, s{sG}, 28\ns_add_u32 s{sKap}, s{sKap}, s{sT0}')
        k(f's_mul_i32 s{sFb}, s{sWave}, {16*3584}\ns_lshl_b32 s{sT0}, s{sKap}, 5\ns_add_u32 s{sFb}, s{sFb}, s{sT0}')
        k(f's_lshl_b32 s{sMf}, s{sWave}, 11\ns_add_u32 s{sMf}, s{sMf}, {WB+4096}')
        k(f'''v_and_b32 v12, 2, v1
        v_xor_b32 v12, v2, v12
        v_mul_u32_u24 v19, 3584, v1
        v_lshl_add_u32 v{vFP}, v12, 4, v19
        v_xor_b32 v12, 4, v12
        v_lshl_add_u32 v{vFP+1}, v12, 4, v19
        v_mov_b32 v{vFP+2}, 0''')
        k(f's_add_u32 s{sFh}, s{sFh}, {WS_FL}\ns_add_u32 s{sF2}, s{sFh}, {8*128}')
        k(f'''v_lshlrev_b32 v19, 7, v16
        v_lshlrev_b32 v20, 13, v15
        v_lshlrev_b32 v12, 3, v14
        v_add3_u32 v19, v19, v20, v12
        v_add_u32 v19, {WB+4096}, v19
        v_lshrrev_b32 v20, 1, v13
        v_lshl_add_u32 v20, v15, 1, v20
        s_lshl_b32 s3, s{sWave}, 11''')
        for seg in range(4):
            k(f'v_xor_b32 v12, {seg}, v20\nv_lshl_add_u32 v{vFA+seg}, v12, 5, v19\nv_add_u32 v{vCFA+seg}, s3, v{vFA+seg}')
        k(f's_mov_b32 s{SGU}, s{SG}\ns_mov_b32 s{SGU+1}, s{SG+1}\ns_mov_b32 s{SGU+2}, {448*3584}\ns_mov_b32 s{SGU+3}, 0x20000')

def batch(k, typ, slot, first=False):
    g = []; pre = []
    if not first:
        pre += [f's_add_u32 s{sSt}, s{sSt}, 1']
        if k.opt.get('rot'): pre += [f's_cmp_eq_u32 s{sSt}, 7', f's_cselect_b32 s{sSt}, 0, s{sSt}']
    tag = f'b{k.nb}'; k.nb += 1
    pre += [f's_mul_i32 s{sB}, s{sSt}, {64*2688}', f's_add_u32 s{sB}, s{sB}, s{sQb}', f's_add_u32 m0, s{sMa}, {slot*WS_}',
            f's_mul_i32 s{sC}, s{sSt}, {64*3584}']
    g.append(pre + [(f'buffer_load_dwordx4 v{vAP}, {srd(SQ)}, s{sB} offen lds', tag)])
    if typ == 'KV':
        g.append([f's_add_u32 m0, s{sMa}, {slot*WS_+4096}', f's_add_u32 s{sB2}, s{sB}, 896', (f'buffer_load_dwordx4 v{vAP}, {srd(SQ)}, s{sB2} offen lds', tag)])
        g.append([f's_add_u32 m0, s{sMf}, {slot*WS_}', f's_add_u32 s{sC}, s{sC}, s{sFb}', (f'buffer_load_dwordx4 v{vFP}, {srd(SGU)}, s{sC} offen lds', tag)])
        g.append([(f'buffer_load_dwordx4 v{vFP+1}, {srd(SGU)}, s{sC} offen offset:1024 lds', tag)])
        g.append([(f'buffer_load_dwordx4 v{vFP+2}, {srd(SGU)}, s{sC} offen offset:2048 lds', tag)])
    else:
        g.append([f's_add_u32 m0, s{sMf}, {slot*WS_}', f's_add_u32 s{sC}, s{sC}, s{sFb}', (f'buffer_load_dwordx4 v{vFP}, {srd(SG)}, s{sC} offen lds', tag)])
        g.append([f's_add_u32 s{sC2}, s{sC}, {8*3584-1024}', (f'buffer_load_dwordx4 v{vFP}, {srd(SG)}, s{sC2} offen offset:1024 lds', tag)])
        g.append([f's_add_u32 m0, s{sMf}, {slot*WS_+8192}', 's_nop 0', (f'buffer_load_dwordx4 v{vFP+1}, {srd(SU)}, s{sC} offen lds', tag)])
        g.append([(f'buffer_load_dwordx4 v{vFP+1}, {srd(SU)}, s{sC2} offen offset:1024 lds', tag)])
    for n in range(8):
        p = []
        if n == 0: p = [f's_add_u32 m0, s{sMx}, {slot*8192}', f's_lshl_b32 s{sA}, s{sSt}, 7', f's_add_u32 s{sA}, s{sA}, s{sXb}']
        if n == 4: p = [f's_add_u32 m0, s{sMx}, {slot*8192+4096}', f's_add_u32 s{sA}, s{sA}, {32*896}']
        g.append(p + [(f'buffer_load_dwordx4 v{vXP+(n&3)}, {srd(SX)}, s{sA} offen offset:{(n&3)*1024} lds', tag)])
    return g, tag

def dbatch(ci):
    slot = (7 + ci) % 3; tag = f'd{ci}'; g = []
    for n in range(8):
        p = []
        if n == 0: p = [f's_bfe_u32 s{sA}, s{sMu}, {hex(0x40000 + 4*ci)}', f's_mul_i32 s{sA}, s{sA}, {64*896}', f's_add_u32 m0, s{sMx}, {slot*8192}', f's_add_u32 s{sA}, s{sA}, s{sDb}']
        if n == 4: p = [f's_add_u32 m0, s{sMx}, {slot*8192+4096}', f's_add_u32 s{sA}, s{sA}, {32*896}']
        g.append(p + [(f'buffer_load_dwordx4 v{vDP+(n&3)}, {srd(SD)}, s{sA} offen offset:{(n&3)*1024} lds', tag)])
    return g

def obatch():
    g = []
    for n in range(14):
        p = []
        if n == 0:
            p = [f's_mul_i32 s{sA2}, s{sWave}, {14*1024}', f's_add_u32 s{sA2}, s{sA2}, {WB}', f's_mul_i32 s{sA}, s{sWave}, {(112-448)*896}', f's_mov_b32 m0, s{sA2}', f's_add_u32 s{sA}, s{sA}, s{sDb}']
        elif n % 4 == 0: p = [f's_add_u32 m0, s{sA2}, {n*1024}', f's_add_u32 s{sA}, s{sA}, {32*896}']
        g.append(p + [(f'buffer_load_dwordx4 v{vDP+(n&3)}, {srd(SO)}, s{sA} offen offset:{(n&3)*1024} lds', 'wo')])
    return g

def dreads(ci):
    slot = (7 + ci) % 3; r = []
    for kl in range(4):
        for n in range(2):
            for j2 in range(2):
                d = 8*(4*ci + kl) + 4*n + 2*j2
                r.append(f'ds_read_b64_tr_b16 a[{d}:{d+1}], v{vDA+n} offset:{slot*8192 + (16*kl + 8*j2)*128}')
    return r

def wread(typ, c, slot, ks, j2, cs=False):
    nat = 2 if typ == 'KV' else 1
    row = (0 if cs else 16*ks) + 4*j2
    if c < nat: return (vCAA if cs else vAA), slot*WS_ + c*4096 + row*64
    seg = c - nat
    if typ == 'KV': return (vCFA if cs else vFA), slot*WS_ + row*96 + seg*32
    return (vCFA if cs else vFA) + seg, slot*WS_ + row*128

def frag_reads(typ, b, slot, ks):
    r = [f'ds_read_b128 a[{fX(b,0)}:{fX(b,0)+3}], v{vXA+ks} offset:{slot*8192}']
    for c in range(5):
        for j2 in range(2):
            va, im = wread(typ, c, slot, ks, j2)
            r.append(f'ds_read_b64_tr_b16 a[{fW(b,c)+2*j2}:{fW(b,c)+2*j2+1}], v{va} offset:{im}')
        if c == 0: r.append(f'ds_read_b128 a[{fX(b,1)}:{fX(b,1)+3}], v{vXA+ks} offset:{slot*8192+4096}')
    return r

def common_setup2(k):
    for n, size in ((SD, 1792*896), (SO, 448*896), (SDBG, 256), (SPH, 16*1568)):
        k(f's_mov_b32 s{n+2}, {size}\ns_mov_b32 s{n+3}, 0x20000')
    k(f's_and_b32 s3, s2, 7\ns_lshl_b32 s{sG2}, s3, 2\ns_bfe_u32 s3, s2, 0x20003\ns_or_b32 s{sG2}, s{sG2}, s3\ns_lshr_b32 s{sNb}, s2, 5')
    k(f's_lshl_b32 s{sDb}, s{sNb}, 7\ns_mul_i32 s3, s{sWave}, {448*896}\ns_add_u32 s{sDb}, s{sDb}, s3')
    k(f's_mul_i32 s{sHo}, s{sHo}, {144*2048}\ns_mov_b32 s{sHm}, 0\ns_mov_b32 s{sHm+1}, -1')
    k(f'''v_bfe_u32 v18, v0, 1, 3
    v_lshlrev_b32 v12, 7, v9
    v_add_u32 v12, s{sMx}, v12''')
    for ks in range(4):
        k(f'v_or_b32 v13, {2*ks}, v10\nv_xor_b32 v13, v13, v18\nv_lshl_add_u32 v{vXA+ks}, v13, 4, v12')
    k(f'''v_bfe_u32 v13, v0, 2, 2
    v_and_b32 v14, 3, v0
    v_bfe_u32 v15, v0, 4, 1
    v_lshl_add_u32 v16, v10, 3, v13
    v_lshl_add_u32 v17, v15, 2, v14
    v_cmp_lt_u32 vcc, 5, v17
    v_xor_b32 v18, 1, v17
    v_lshlrev_b32 v19, 6, v16
    v_cndmask_b32 v18, v17, v18, vcc
    v_add_u32 v19, {WB}, v19
    v_lshl_add_u32 v{vAA}, v18, 3, v19
    s_lshl_b32 s3, s{sWave}, 10
    v_add_u32 v{vCAA}, s3, v{vAA}
    v_and_b32 v19, 2, v1
    v_lshlrev_b32 v19, 1, v19
    v_xor_b32 v19, v2, v19
    v_lshl_add_u32 v{vDP}, v19, 4, v3
    s_cmp_eq_u32 s{sNb}, 7
    s_cselect_b32 s3, {OOB}, 0
    v_add_u32 v{vDP}, s3, v{vDP}
    v_add_u32 v{vDP+1}, 6144, v{vDP}
    v_add_u32 v{vDP+2}, {2*6144}, v{vDP}
    v_add_u32 v{vDP+3}, {3*6144}, v{vDP}
    v_lshl_add_u32 v12, v10, 2, v13
    v_lshlrev_b32 v19, 7, v12
    v_lshl_add_u32 v19, v17, 3, v19
    v_add_u32 v19, s{sMx}, v19
    v_lshrrev_b32 v20, 1, v13
    v_lshl_add_u32 v{vDA}, v20, 6, v19
    v_xor_b32 v20, 1, v20
    v_lshl_add_u32 v{vDA+1}, v20, 6, v19
    v_mul_u32_u24 v12, 56, v12
    v_min_u32 v19, 6, v17
    v_lshl_add_u32 v12, v19, 3, v12
    v_add_u32 v{vMB}, {L_PHI}, v12
    v_cmp_eq_u32 vcc, 0, v0
    v_mov_b32 v{vOne}, 1
    v_mov_b32 v{vCS}, 0
    v_cndmask_b32 v{vF0}, v11, v0, vcc''')
    for i in range(1, 5): k(f'v_mov_b32 v{vCS+i}, 0')

def kv_addr_items():
    a_, b_, l = vMB+2, vMB+3, vMB+4
    return [x.replace('|', '\n') for x in f'''v_lshrrev_b32 v{l}, 4, v{vL16}
        v_and_b32 v{a_}, 31, v{l}
        v_mul_u32_u24 v{a_}, {SP}, v{a_}
        v_and_b32 v{b_}, 32, v{l}
        s_mul_i32 s3, s{sWave}, {64*SP}|s_add_u32 s3, s3, {WB}|v_add3_u32 v{vS0}, v{a_}, v{b_}, s3
        v_lshrrev_b32 v{a_}, 4, v{l}
        v_lshlrev_b32 v{a_}, 3, v{a_}
        v_bfe_u32 v{b_}, v{l}, 2, 1
        v_add_u32 v{a_}, v{a_}, v{b_}
        v_bfe_u32 v{b_}, v{l}, 3, 1
        v_lshl_add_u32 v{a_}, v{b_}, 2, v{a_}
        v_mul_u32_u24 v{a_}, {SP}, v{a_}
        v_and_b32 v{b_}, 1, v{l}
        v_lshl_add_u32 v{a_}, v{b_}, 5, v{a_}
        v_bfe_u32 v{b_}, v{l}, 1, 1
        v_lshl_add_u32 v{a_}, v{b_}, 3, v{a_}
        v_add_u32 v{vS0+2}, {WB}, v{a_}
        s_lshl_b32 s3, s{sWave}, 3|s_lshr_b32 s3, 0x50401000, s3|s_and_b32 s3, s3, 0xff|v_add_u32 v{vS0+1}, s3, v{vS0+2}
        v_lshrrev_b32 v{a_}, 4, v{l}
        v_lshlrev_b32 v{a_}, 9, v{a_}
        v_and_b32 v{b_}, 15, v{l}
        v_lshl_add_u32 v{vS0+3}, v{b_}, 4, v{a_}'''.split('\n')]

def stats_items(k):
    X = vWP; Lo = vST; s0, s1, r1, t = 222, 223, 224, 225
    it = [lambda: k.wait('srow')]
    for i in range(8): it += [f'v_lshlrev_b32 v{Lo+i}, 16, v{X+i}', f'v_and_b32 v{X+i}, 0xffff0000, v{X+i}']
    it += [f'v_add_f32 v{s0}, v{Lo}, v{X}', f'v_add_f32 v{s1}, v{Lo+1}, v{X+1}']
    for i in range(2, 8): it += [f'v_add_f32 v{s0}, v{s0}, v{Lo+i}', f'v_add_f32 v{s1}, v{s1}, v{X+i}']
    def red(r):
        o_ = []
        for m in ('quad_perm:[1,0,3,2]', 'quad_perm:[2,3,0,1]', 'row_half_mirror', 'row_mirror'):
            o_.append(f's_nop 1\nv_add_f32_dpp v{r}, v{r}, v{r} {m} row_mask:0xf bank_mask:0xf')
        o_ += [f'v_mov_b32 v{t}, v{r}', f's_nop 1\nv_permlane16_swap_b32 v{r}, v{t}', f'v_add_f32 v{r}, v{r}, v{t}']
        return o_
    it += [f'v_add_f32 v{s0}, v{s0}, v{s1}'] + red(s0) + [f'v_mul_f32 v{s0}, {hex(f2u(-1.0/448))}, v{s0}']
    for i in range(8): it += [f'v_add_f32 v{Lo+i}, v{Lo+i}, v{s0}', f'v_add_f32 v{X+i}, v{X+i}, v{s0}']
    it += [f'v_mul_f32 v{s1}, v{Lo}, v{Lo}', f'v_mul_f32 v{r1}, v{X}, v{X}']
    for i in range(1, 8): it += [f'v_fmac_f32 v{s1}, v{Lo+i}, v{Lo+i}', f'v_fmac_f32 v{r1}, v{X+i}, v{X+i}']
    it += ['s_mov_b32 vcc_lo, 0xf0000000', 's_mov_b32 vcc_hi, 0xf0000000', f'v_add_f32 v{r1}, v{r1}, v{s1}', f'v_cndmask_b32 v{r1}, v{r1}, 0, vcc']
    it += red(r1) + [f'v_mov_b32 v{s1}, {hex(f2u(1e-5))}', f'v_fmac_f32 v{s1}, {hex(f2u(1.0/448))}, v{r1}']
    it += [(f'buffer_store_dwordx2 v[{s0}:{s1}], v{vMB+1}, {srd(SW)}, s{sT2} offen sc1', 'stst')]
    return it

def prefetch1(k):
    o = k.opt
    r0 = 64*o.get('npf', 2)
    nl = -(-((448 - r0)*28) // 1024)
    k(f's_lshl_b32 s3, s{sWave}, 8\ns_add_u32 s3, s3, s2\nv_lshl_add_u32 v12, v0, 10, s3\nv_lshlrev_b32 v12, 7, v12')
    k(f'v_add_u32 v13, {r0*2688}, v12\nv_add_u32 v12, {r0*3584}, v12\ns_mov_b64 exec, {(1<<nl)-1}')
    k.vmem(f'buffer_load_dword v{vJ+1}, v12, {srd(SG)}, 0 offen', 'pf')
    k.vmem(f'buffer_load_dword v{vJ+2}, v12, {srd(SU)}, 0 offen', 'pf')
    k.vmem(f'buffer_load_dword v{vJ+3}, v13, {srd(SQ)}, 0 offen', 'pf')
    k('s_mov_b64 exec, -1')

def prefetch2():
    return [f's_lshl_b32 s3, s{sWave}, 8', 's_add_u32 s3, s3, s2', f'v_lshl_add_u32 v{vPA}, v{vL16}, 6, s3', f'v_lshlrev_b32 v{vPA}, 7, v{vPA}',
            's_mov_b64 exec, 0x1fff', (f'buffer_load_dword v{vJ}, v{vPA}, {srd(SD)}, 0 offen', 'pf'), (f'buffer_load_dword v{vJ+1}, v{vPA}, {srd(SO)}, 0 offen', 'pf'), 's_mov_b64 exec, -1']

ST_LOAD = lambda: f'buffer_load_dwordx2 v[{vST}:{vST+1}], v{vPA}, {srd(SW)}, s{sT2} offen sc1\nbuffer_load_dwordx2 v[{vST+2}:{vST+3}], v{vPA}, {srd(SW)}, s{sT2} offen offset:256 sc1'

def main_loop(k, typ):
    o = k.opt
    t0 = 'b0'; k.nb = 1
    k.vmem(f'buffer_load_dwordx4 {v(vWP,4)}, v22, {srd(SX)}, s{sT1} offen', 'srow')
    k.vmem(f'buffer_load_dwordx4 {v(vWP+4,4)}, v22, {srd(SX)}, s{sT1} offen offset:448', 'srow')
    if o.get('pf', 1): prefetch1(k)
    k.stamp(7, 5)
    pend, t1 = batch(k, typ, 1)
    for g in pend[:o.get('pre1', 4)]:
        for it in g: k.emit(it)
    pend = pend[o.get('pre1', 4):]
    k.stamp(1)
    k.wait(t0)
    k('s_barrier')
    k.stamp(2)
    for r in frag_reads(typ, 0, 0, 0): k(r)
    k(f's_and_b32 s3, s2, 1\ns_lshl_b32 s3, s3, 7\ns_cmp_eq_u32 s{sWave}, 0\ns_cselect_b32 s3, s3, {OOB}\nv_or_b32 v{vPA}, s3, v{vF0}')
    k.vmem(f'buffer_atomic_add v{vOne}, v{vPA}, {srd(SDBG)}, 0 offen', 'atom')
    tags = {0: t0, 1: t1}
    cs_pending = []; ctp = 0
    lazy = []
    c0 = -2*math.sqrt(2/math.pi)*math.log2(math.e)
    steps = [(s, ks) for s in range(7) for ks in range(4)] + [(7, 0)]
    order = list(range(5)) if typ == 'KV' else [1, 2, 3, 4, 0]
    for (s, ks) in steps:
        slot = s % 3
        b = (4*s + ks) & 1
        reads = []
        if s < 7:
            if ks == 3:
                if s < 6: reads = frag_reads(typ, b ^ 1, (s+1) % 3, 0)
                else: reads = [f'ds_read_b128 {a(fW(b^1,c),4)}, v{vU0} offset:{c*1024}' for c in order]
            else: reads = frag_reads(typ, b ^ 1, slot, ks+1)
        if s == 0 and ks == 0:
            g2, tags[2] = batch(k, typ, 2)
            g2.append([f's_and_b32 s{sC2}, s{sWave}, 1', f's_lshl_b32 s{sC2}, s{sC2}, 10', f's_add_u32 m0, s{sC2}, {L_PHI}',
                       f's_mul_i32 s{sB}, s{sJ}, 1568', f's_add_u32 s{sB}, s{sB}, s{sC2}', (f'buffer_load_dwordx4 v{vL16}, {srd(SPH)}, s{sB} offen lds', tags[2])])
            pend += g2
        if (s, ks) == tuple(o.get('statat', (1, 0))): lazy += stats_items(k)
        if (s, ks) == (4, 0):
            assert not lazy
            lazy += [f's_add_u32 s3, s{sG2}, s{sNb}', 's_and_b32 s3, s3, 3', 's_lshl_b32 s3, s3, 2', f's_lshr_b32 s{sT0}, 0x32103210, s3', f's_and_b32 s{sT0}, s{sT0}, 0xffff',
                     f's_and_b32 s3, s{sG2}, 3', f's_add_u32 s3, s3, s{sNb}', 's_lshl_b32 s3, s3, 1', 's_lshr_b32 s3, 0x124924, s3', 's_and_b32 s3, s3, 3', 's_lshl_b32 s3, s3, 2',
                     's_lshr_b32 s3, 0x654654, s3', 's_lshl_b32 s3, s3, 16', f's_or_b32 s{sT1}, s{sT0}, s3']
            if not o.get('rot2', 1): lazy = [f's_mov_b32 s{sT1}, 0x6543210']
        if (s, ks) == (5, 0) and typ == 'KV': lazy += kv_addr_items()
        cs_s, w = (s+1, 0) if ks == 3 else (s, ks+1)
        plan = (3,3,2,2)
        if cs_s == 0: plan = (0,4,3,3)
        if cs_s == 6: plan = (5,5,0,0)
        csr = []; newcs = []
        if cs_s <= 6:
            st0 = sum(plan[:w])
            for hI in range(st0, st0 + plan[w]):
                c, j2 = hI >> 1, hI & 1
                va, im = wread(typ, c, cs_s % 3, 0, j2, cs=True)
                tr = vCT + 2*(ctp % 10); ctp += 1
                csr.append(f'ds_read_b64_tr_b16 v[{tr}:{tr+1}], v{va} offset:{im}')
                newcs.append((c, tr))
        valu = []
        for (c, tr) in cs_pending:
            for e in range(2):
                valu += [f'v_lshlrev_b32 v{vU0}, 16, v{tr+e}', f'v_and_b32 v{vU1}, 0xffff0000, v{tr+e}',
                         f'v_add_f32 v{vCS+c}, v{vCS+c}, v{vU0}', f'v_add_f32 v{vCS+c}, v{vCS+c}, v{vU1}']
        cs_pending = newcs
        extra = []
        if (s, ks) == (4, 1):
            csr += [f'ds_read_b64_tr_b16 {pr(vWP+4*s_+2*j2)}, v{vMB} offset:{(16*s_+8*j2)*56}' for s_ in range(2) for j2 in range(2)]
        if (s, ks) == (4, 2):
            extra += [f'v_mov_b32_dpp v{vWP+i}, v{vWP+i} quad_perm:[2,3,2,3] row_mask:0xa bank_mask:0x8' for i in range(8)]
            extra += [f'v_cndmask_b32 v{vWP+i}, v{vWP+i}, 0, s[{sHm}:{sHm+1}]' for i in (6, 7)]
        if (s, ks) == tuple(o.get('pf2at', (1, 1))) and o.get('pf', 1):
            extra.append(lambda: [k.emit(x) for x in prefetch2()])
        if (s, ks) == (6, 2):
            extra += [f's_lshl_b32 s3, s{sWave}, 2', f's_add_u32 s3, s3, {L_CS}', f'v_add_u32 v{vU1}, s3, v{vL16}', f'v_add_u32 v{vU0}, {L_CS}, v{vL16}']
            for c in range(5): extra.append(f'v_cvt_pk_bf16_f32 v{vCT+c}, v{vCS+c}, v{vCS+c}')
            for c in range(5): extra.append(f'v_lshlrev_b32 v{vCT+c}, 16, v{vCT+c}')
            for c in range(5): extra.append(f'v_sub_f32 v{vCT+c}, v{vCS+c}, v{vCT+c}')
            for c in range(5): extra.append(f'v_cvt_pk_bf16_f32 v{vCT+c}, v{vCS+c}, v{vCT+c}')
            for c in range(5): extra.append(f'ds_write_b32 v{vU1}, v{vCT+c} offset:{c*1024}')
        if (s, ks) == (6, 3):
            extra.append(lambda: gate(k, 'L_st', 'stld', ST_LOAD(), f'v_min_u32 v{vU1}, v{vST+1}, v{vST+3}\nv_cmp_eq_u32 vcc, 0, v{vU1}', None))
            for tt in range(2): extra += [f'v_cvt_pk_bf16_f32 v{vMB+4*tt+i}, v{vST+2*tt}, v{vST+2*tt}' for i in range(4)]
        if s == 7:
            extra.append(lambda: k.wait('d0'))
            extra += dreads(0)
            for tt in range(2): extra.append(f'v_rsq_f32 v{vP3+2*tt}, v{vST+2*tt+1}')
            extra.append('s_nop 0')
            for tt in range(2):
                extra += [f'v_mul_f32 v{vU0}, v{vP3+2*tt}, v{vP3+2*tt}', f'v_mul_f32 v{vP2+2*tt}, {hex(f2u(c0))}, v{vP3+2*tt}', f'v_mul_f32 v{vP3+2*tt+1}, {hex(f2u(math.log2(math.e)))}, v{vP3+2*tt}',
                          f'v_mul_f32 v{vU0}, {hex(f2u(0.044715))}, v{vU0}', f'v_mul_f32 v{vP2+2*tt+1}, v{vP2+2*tt}, v{vU0}']
        k('s_waitcnt lgkmcnt(0)')
        mf = []
        for c in (order if s == 7 else range(5)):
            for tt in range(2):
                D = acc(c, tt); C = '0' if (s == 0 and ks == 0) else v(D, 16)
                B = a(fX(b,tt),4) if s < 7 else v(vMB+4*tt, 4)
                mf.append(f'v_mfma_f32_32x32x16_bf16 {v(D,16)}, {a(fW(b,c),4)}, {B}, {C}')
        gaps = [[] for _ in range(10)]
        if ks == 3:
            assert s == 6 or all(g[-1][1] != tags[s+1] for g in pend)
            def bar(s=s):
                if s < 6: k.wait(tags[s+1])
                k('s_barrier')
            gaps[0].append(bar)
            IL = f'buffer_load_dword v{vPoll}, v{vPA}, {srd(SDBG)}, 0 offen sc1'
            if s == 4: gaps[1] += [f'v_lshlrev_b32 v{vPA}, 3, v{vL16}', (IL, 'ipoll')]
            if s == 5:
                def chk():
                    gate(k, 'L_in', 'ipoll', IL, f'v_cmp_gt_u32 vcc, 128, v{vPoll}', 3)
                    k(f'v_bfe_u32 v{vPA}, v{vL16}, 1, 8\ns_lshl_b32 s3, s{sRb}, 2\ns_add_u32 s3, s3, s{sWave}\ns_lshl_b32 s3, s3, 9\ns_add_u32 s{sT2}, s3, {WS_ST}')
                    for l in ST_LOAD().split('\n'): k.vmem(l, 'stld')
                gaps[1].append(chk)
            if s + 3 <= 6:
                g_, tags[s+3] = batch(k, typ, s % 3); pend += g_
            else:
                g_ = dbatch(s - 4)
                if s == 4: g_[0] = [f's_mov_b32 s{sMu}, s{sT1}'] + g_[0]
                pend += g_
        rd = reads + csr
        gi = 1 if ks == 3 else 0
        while rd:
            gaps[gi] += rd[:3]; rd = rd[3:]; gi += 1
        remaining_ks = {3: 4, 0: 3, 1: 2, 2: 1}[ks]
        if (s, ks) == (6, 3): remaining_ks = 2
        if s == 7: remaining_ks = 1
        nd = min(-(-len(pend) // remaining_ks), o.get('rate', 4) if s < 7 else 5)
        pos = {0: [], 1: [5], 2: [3, 7], 3: [2, 5, 8], 4: [2, 4, 6, 8], 5: [1, 3, 5, 7, 9]}[nd]
        for p in pos: gaps[p] += pend.pop(0)
        rest = valu + extra
        cap = o.get('cap', 5)
        nz = max(o.get('lazymin', 8), sum(max(0, cap - len(gp)) for gp in gaps[1:]) - len(rest))
        rest += lazy[:nz]; lazy = lazy[nz:]
        while sum(max(0, cap - len(gp)) for gp in gaps[1:]) < len(rest): cap += 1
        gi = 1
        for it in rest:
            while len(gaps[gi]) >= cap: gi += 1
            gaps[gi].append(it)
        for i in range(10):
            k(mf[i])
            for it in gaps[i]: k.emit(it)
        if ks == 3: k.stamp(3 + s, grp=2)
    assert not pend and not lazy
    k.stamp(3)

def w2_background(k, wo_ok):
    GAP = k.opt.get('gap', 76)
    if k.opt.get('x_nobg'): return
    for i, g in enumerate(dbatch(3)): k.bg.append((GAP, g if i else ['s_waitcnt lgkmcnt(0)'] + g))
    k.lastbg = k.t
    for ci in (1, 2, 3):
        r = dreads(ci)
        k.bg.append((16, [lambda ci=ci: k.wait(f'd{ci}')] + r[:8]))
        k.bg.append((16, r[8:]))
        gs = dbatch(ci + 3)
        gs[0] = ['s_waitcnt lgkmcnt(0)'] + gs[0]
        for g in gs: k.bg.append((GAP, g))
    for i, g in enumerate(obatch()): k.bg.append((GAP, g, wo_ok) if i == 0 else (GAP, g))

def flag_later(k, tag, sreg):
    def fn():
        k.wait(tag)
        k.vmem(f'buffer_store_dword v{vOne}, v{vF0}, {srd(SW)}, s{sreg} offen sc1', 'flag')
        if tag in ('ost', 'kvst'): k.stamp(8, 4)
        else: k.stamp(3, 4)
    k.timed.append((k.t + k.opt.get('drain', 800), fn))

def ffn_unit(k, c, tt, seg):
    A_ = acc(c, tt); P1 = vST + 2*tt; P2 = vP2 + 2*tt; T = vCT
    for i in range(4): k.f(f'v_pk_mul_f32 {pr(T+2*i)}, {pr(A_+2*i)}, {pr(A_+2*i)}')
    for i in range(4): k.f(f'v_pk_fma_f32 {pr(T+2*i)}, {pr(T+2*i)}, {pr(P2)}, {pr(P2)} op_sel:[0,1,0] op_sel_hi:[1,1,0]')
    for i in range(4): k.f(f'v_pk_mul_f32 {pr(T+2*i)}, {pr(A_+2*i)}, {pr(T+2*i)}')
    for i in range(8): k.f(f'v_exp_f32 v{T+i}, v{T+i}')
    for i in range(4): k.f(f'v_pk_mul_f32 {pr(A_+2*i)}, {pr(A_+2*i)}, {pr(A_+8+2*i)}')
    for i in range(4): k.f(f'v_pk_fma_f32 {pr(T+2*i)}, {pr(T+2*i)}, {pr(P1)}, {pr(P1)} op_sel:[0,1,1] op_sel_hi:[1,1,1]')
    for i in range(8): k.f(f'v_rcp_f32 v{T+i}, v{T+i}')
    if tt == 0 and seg == 0: k.f(f's_lshl_b32 s{sC}, s{sKap}, 11\ns_add_u32 s{sC}, s{sC}, s{sHo}')
    elif tt == 0 and seg == 2: k.f(f's_add_u32 s{sC}, s{sC}, 4096')
    for i in range(4): k.f(f'v_pk_mul_f32 {pr(A_+2*i)}, {pr(A_+2*i)}, {pr(T+2*i)}')
    for i in range(4): k.f(f'v_cvt_pk_bf16_f32 v{A_+8+i}, v{A_+2*i}, v{A_+2*i+1}')
    k.vmem(f'buffer_store_dwordx4 {v(A_+8,4)}, v{vL16}, {srd(SW)}, s{sC} offen offset:{(seg&1)*2048+tt*1024} sc1', 'hst')
    k.lastbg = k.t - 30

def ffn_epilogue(k, typ):
    nat = 2 if typ == 'KV' else 1
    for c in range(nat, 5):
        for tt in range(2): ffn_unit(k, c, tt, c - nat)
    flag_later(k, 'hst', sFh)

def pack8(k, src, dst, n=8):
    for i in range(n): k.f(f'v_cvt_pk_bf16_f32 v{dst+i}, v{src+2*i}, v{src+2*i+1}')

def project(k, E):
    for tt in range(2): pack8(k, acc(0, tt), E + 8*tt)
    k('s_nop 1')
    for tt in range(2):
        P = acc(0, tt)
        k(f'v_mfma_f32_32x32x16_bf16 {v(P,16)}, {v(vWP,4)}, {v(E+8*tt,4)}, 0')
        k(f'v_mfma_f32_32x32x16_bf16 {v(P,16)}, {v(vWP+4,4)}, {v(E+8*tt+4,4)}, {v(P,16)}')

def softmaxes(k, M, F, after=None):
    T = [vT, vT + 4]; S = vCT
    R = range(2)
    P = [acc(0, 0), acc(0, 1)]
    for tt in R: k.f(f'v_max3_f32 v{T[tt]}, v{P[tt]}, v{P[tt]+1}, v{P[tt]+2}\nv_min3_f32 v{T[tt]+1}, v{P[tt]}, v{P[tt]+1}, v{P[tt]+2}')
    for i in range(3, 13, 2):
        for tt in R: k.f(f'v_max3_f32 v{T[tt]}, v{T[tt]}, v{P[tt]+i}, v{P[tt]+i+1}\nv_min3_f32 v{T[tt]+1}, v{T[tt]+1}, v{P[tt]+i}, v{P[tt]+i+1}')
    for tt in R: k.f(f'v_max_f32 v{T[tt]}, v{T[tt]}, v{P[tt]+13}\nv_min_f32 v{T[tt]+1}, v{T[tt]+1}, v{P[tt]+13}')
    for tt in R: k.f(f'v_mov_b32 v{T[tt]+2}, v{T[tt]}\nv_mov_b32 v{T[tt]+3}, v{T[tt]+1}')
    k.f('s_nop 0')
    for tt in R: k.f(f'v_permlane32_swap_b32 v{T[tt]}, v{T[tt]+2}\nv_permlane32_swap_b32 v{T[tt]+1}, v{T[tt]+3}')
    for tt in R: k.f(f'v_max_f32 v{T[tt]}, v{T[tt]}, v{T[tt]+2}\nv_min_f32 v{T[tt]+1}, v{T[tt]+1}, v{T[tt]+3}')
    for tt in R: k.f(f'v_pk_mul_f32 {pr(T[tt])}, {pr(T[tt])}, {pr(vP3+2*tt)} op_sel:[0,1] op_sel_hi:[1,1]')
    for tt in R:
        L = pr(vP3 + 2*tt); p = P[tt]; m = M[tt]; t = T[tt]; s_ = S + 4*tt
        for i in range(7): k.f(f'v_pk_fma_f32 {pr(m+2*i)}, {pr(p+2*i)}, {L}, {pr(t)} op_sel:[0,1,1] op_sel_hi:[1,1,1] neg_lo:[1,0,0] neg_hi:[1,0,0]')
        for i in range(7): k.f(f'v_pk_fma_f32 {pr(p+2*i)}, {pr(p+2*i)}, {L}, {pr(t)} op_sel:[0,1,0] op_sel_hi:[1,1,0] neg_lo:[0,0,1] neg_hi:[0,0,1]')
        for i in range(14): k.f(f'v_exp_f32 v{m+i}, v{m+i}')
        for i in range(14): k.f(f'v_exp_f32 v{p+i}, v{p+i}')
        k.f(f'v_pk_add_f32 {pr(s_+2)}, {pr(m)}, {pr(m+2)}\nv_pk_add_f32 {pr(s_)}, {pr(p)}, {pr(p+2)}')
        for i in range(2, 7): k.f(f'v_pk_add_f32 {pr(s_+2)}, {pr(s_+2)}, {pr(m+2*i)}\nv_pk_add_f32 {pr(s_)}, {pr(s_)}, {pr(p+2*i)}')
        k.f(f'v_add_f32 v{t+1}, v{s_+2}, v{s_+3}\nv_add_f32 v{t}, v{s_}, v{s_+1}\nv_add_f32 v{t+3}, v{s_+2}, v{s_+3}\nv_add_f32 v{t+2}, v{s_}, v{s_+1}')
        k.f(f's_waitcnt lgkmcnt(0)\nv_mov_b32 v{F[tt]+7}, 0')
        k.f(f'v_permlane32_swap_b32 v{t+1}, v{t+3}\nv_permlane32_swap_b32 v{t}, v{t+2}')
        k.f(f'v_pk_add_f32 {pr(t)}, {pr(t)}, {pr(t+2)}\nv_rcp_f32 v{t}, v{t}\nv_rcp_f32 v{t+1}, v{t+1}\nv_mov_b32 v{F[tt]+15}, 0')
        for i in range(7): k.f(f'v_pk_mul_f32 {pr(p+2*i)}, {pr(p+2*i)}, {pr(t)} op_sel_hi:[1,0]')
        for i in range(7): k.f(f'v_pk_mul_f32 {pr(m+2*i)}, {pr(m+2*i)}, {pr(t)} op_sel:[0,1] op_sel_hi:[1,1]')
        pack8(k, p, F[tt], 7); pack8(k, m, F[tt]+8, 7)
        if after: after(tt)

def kv_part(k):
    E = 192
    project(k, E)
    V = 168
    for tt in range(2):
        A_ = acc(1, tt)
        for i in range(16): k.f(f'v_mul_f32 v{A_+i}, v{A_+i}, v{vP3+2*tt}')
        k.f(f'v_cndmask_b32 v{A_+12}, v{A_+12}, 1.0, s[{sHm}:{sHm+1}]')
        k.f(f'v_cndmask_b32 v{A_+13}, v{A_+13}, 0, s[{sHm}:{sHm+1}]')
        pack8(k, A_, V + 8*tt)
        k.f(f'v_cndmask_b32 v{V+8*tt+7}, v{V+8*tt+7}, 0, s[{sHm}:{sHm+1}]')
        for q in range(2): k.f(f'ds_write_b128 v{vS0}, {v(V+8*tt+4*q,4)} offset:{tt*32*SP+128+16*q}')
    k.stamp(4, 3)
    def wr(tt):
        for sec in range(2):
            for q in range(2): k.f(f'ds_write_b128 v{vS0}, {v(168+8*sec+4*q,4)} offset:{tt*32*SP+64*sec+16*q}')
    softmaxes(k, [acc(1, 0), acc(1, 1)], [168, 168], after=wr)
    k.stamp(5, 3)
    k(f's_lshl_b32 s3, s{sJ}, 3\ns_add_u32 s3, s3, s{sRb}\ns_lshl_b32 s3, s3, 2\ns_add_u32 s3, s3, s{sWave}\ns_lshl_b32 s3, s3, 11\ns_add_u32 s{sC}, s3, {WS_KVP}')
    k('s_waitcnt lgkmcnt(0)\ns_barrier')
    k.stamp(6, 3)
    D = 208
    D = 204
    def rd(kk):
        base = 12*(kk % 5)
        for j2 in range(2):
            im = (32*kk + 2*j2)*SP
            k(f'ds_read_b64_tr_b16 {pr(base+2*j2)}, v{vS0+1} offset:{im}')
            for dt in range(2): k(f'ds_read_b64_tr_b16 {pr(base+4+4*dt+2*j2)}, v{vS0+2} offset:{im+128+16*dt}')
    rd(0); rd(1)
    for kk in range(8):
        if kk + 2 < 8: rd(kk + 2)
        k(f's_waitcnt lgkmcnt({min(12, 6*(7-kk))})')
        base = 12*(kk % 5)
        for dt in range(2):
            k(f'v_mfma_f32_16x16x32_bf16 {v(D+4*dt,4)}, {v(base,4)}, {v(base+4+4*dt,4)}, {"0" if kk == 0 else v(D+4*dt,4)}')
    k('s_barrier\ns_nop 6')
    k.scratch_free = True
    for dt in range(2): k.vmem(f'buffer_store_dwordx4 {v(D+4*dt,4)}, v{vS0+3}, {srd(SW)}, s{sC} offen offset:{256*dt} sc1', 'kvst')
    flag_later(k, 'kvst', sF2)

QF = [128, 144]
def q_part(k):
    project(k, 96)
    phase2_setup(k)
    k.f('s_nop 1')
    softmaxes(k, [64, 80], QF)

AC = 0; HB = 64
vOUT, vPK = 168, 169
vOA = 170
vRW, vRR = 174, 175
vKW, vKR = 177, 178
XR = 180
vPoll2, vPoll1, vPB = 188, 189, 190
vSum = 192
vN = 204
aOF, aKF = 224, 240

def phase2_setup(k):
    T = vT + 8
    k(f's_load_dwordx2 s[{SOUT}:{SOUT+1}], s[0:1], 64\ns_mov_b32 s{SOUT+2}, {2048*896}')
    k.f(f'''v_lshrrev_b32 v{T}, 7, v{vL16}
    v_mul_u32_u24 v{vOUT}, 896, v{T}
    v_and_b32 v{T+1}, 0x70, v{vL16}
    v_add_u32 v{vOUT}, v{vOUT}, v{T+1}
    v_mul_u32_u24 v{vRR}, {RP}, v{T}
    v_lshl_add_u32 v{vRR}, v{T+1}, 1, v{vRR}
    s_mul_i32 s3, s{sWave}, {16*RP}
    v_add_u32 v{vRR}, s3, v{vRR}
    v_add_u32 v{vRR+1}, {2*XW}, v{vRR}
    v_bfe_u32 v{T}, v{vL16}, 4, 5
    v_mul_u32_u24 v{vRW}, {RP}, v{T}
    v_lshrrev_b32 v{T}, 9, v{vL16}
    v_lshl_add_u32 v{vRW}, v{T}, 4, v{vRW}
    v_add_u32 v{vRW}, s{sMx}, v{vRW}
    s_mul_i32 s3, s{sWave}, {14*1024 - XW}
    s_add_u32 s3, s3, {WB}
    v_add_u32 v{vOA}, s3, v{vDA}
    v_add_u32 v{vOA+1}, s3, v{vDA+1}
    v_and_b32 v{T}, 0x200, v{vL16}
    v_sub_u32 v{vOA+2}, v{vOA}, v{T}
    v_sub_u32 v{vOA+3}, v{vOA+1}, v{T}
    v_cmp_gt_u32 vcc, {16*4}, v{vL16}
    v_lshlrev_b32 v{T}, 3, v{vL16}
    v_mov_b32 v{T+1}, {OOB}
    v_cndmask_b32 v{vPB}, v{T+1}, v{T}, vcc
    v_cmp_gt_u32 vcc, {16*8}, v{vL16}
    v_add_u32 v{vKR}, {KVF_OFF}, v{vL16}
    v_add_u32 v{vKR+1}, {2*XW}, v{vKR}
    v_add_u32 v{vKW}, s{sMx}, v{vKR}
    v_cndmask_b32 v{vPK}, v{T+1}, v{T}, vcc
    s_lshl_b32 s3, s{sG2}, 2
    s_add_u32 s3, s3, s{sWave}
    s_lshl_b32 s{sT1}, s3, 11
    s_add_u32 s{sT1}, s{sT1}, {WS_FL}
    s_mul_i32 s{sB}, s3, {16*896}
    s_lshl_b32 s3, s{sNb}, 7
    s_add_u32 s{sB}, s{sB}, s3
    s_add_u32 s{sB2}, s{sB}, {8*896}
    s_lshl_b32 s3, s{sJ}, 2
    s_add_u32 s3, s3, s{sWave}
    s_lshl_b32 s{sT2}, s3, 10
    s_add_u32 s{sT2}, s{sT2}, {WS_KF}''')

def o_steps(k):
    T = vT
    st = []
    st.append((0, [lambda: k.stamp(5, 4)] + [f'v_cvt_pk_bf16_f32 v{vSum+8+i}, v{vSum+2*i}, v{vSum+2*i+1}' for i in range(4)] + [f'ds_write_b128 v{vKW}, {v(vSum+8,4)}']))
    st.append((2, ['s_waitcnt lgkmcnt(0)', 's_barrier', lambda: k.stamp(6, 4)] + [f'ds_read_b128 {a(aKF+4*s_,4)}, v{vKR+(s_>>1)} offset:{(s_&1)*XW}' for s_ in range(4)]))
    mm = [f'v_mfma_f32_32x32x16_bf16 {v(vN+16*tt,16)}, {a(aKF+4*s_,4)}, {v(QF[tt]+4*s_,4)}, {"0" if s_ == 0 else v(vN+16*tt,16)}' for tt in range(2) for s_ in range(4)]
    st.append((3, ['s_waitcnt lgkmcnt(0)\n' + '\n'.join(mm), f's_lshl_b32 s{sC2}, s{sJ}, 12', f's_add_u32 s{sC2}, s{sC2}, s{sHo}', f's_add_u32 s{sC2}, s{sC2}, {112*2048}', 's_nop 3']))
    fin = []
    for tt in range(2):
        N = vN + 16*tt
        fin += [f'v_mov_b32 v{T}, v{N+12}', f'v_mov_b32 v{T+1}, v{N+12}', f'v_cndmask_b32 v{N+12}, v{N+12}, 0, s[{sHm}:{sHm+1}]', 's_nop 0', f'v_permlane32_swap_b32 v{T}, v{T+1}',
                f'v_add_f32 v{T}, {hex(f2u(1e-6))}, v{T+1}', f'v_rcp_f32 v{T}, v{T}', 's_nop 0']
        fin += [f'v_mul_f32 v{N+i}, v{N+i}, v{T}' for i in range(16)]
        fin += [f'v_cvt_pk_bf16_f32 v{N+i}, v{N+2*i}, v{N+2*i+1}' for i in range(8)]
        fin += [(f'buffer_store_dwordx4 {v(N+4*s_,4)}, v{vL16}, {srd(SW)}, s{sC2} offen offset:{2048*s_+1024*tt} sc1', 'ost') for s_ in range(2)]
    fin.append(lambda: (k.stamp(7, 4), flag_later(k, 'ost', sF2)))
    st.append((1, fin))
    return st

FL_LOAD = lambda i: f'buffer_load_dword v{vPoll1}, v{vPB}, {srd(SW)}, s{sT1} offen offset:{512*i} sc1'
KF_LOAD = f'buffer_load_dword v{vPoll2}, v{vPK}, {srd(SW)}, s{sT2} offen sc1'

def o_only(k):
    spin(k, 'L_kq', KF_LOAD, f'v_cmp_eq_u32 vcc, 0, v{vPoll2}', 0xff)
    k.vm = []
    k(f's_lshl_b32 s3, s{sJ}, 5\ns_add_u32 s3, s3, s{sWave}\ns_lshl_b32 s3, s3, 11\ns_add_u32 s{sC2}, s3, {WS_KVP}')
    for rb in range(8):
        for q in range(2): k.vmem(f'buffer_load_dwordx4 {v((8*rb if rb else vSum)+4*q,4)}, v{vL16}, {srd(SW)}, s{sC2} offen offset:{1024*q} sc1', f'kv{rb}')
        if rb < 7: k(f's_add_u32 s{sC2}, s{sC2}, 8192')
    for rb in range(1, 8):
        k.wait(f'kv{rb}')
        for i in range(4): k(f'v_pk_add_f32 {pr(vSum+2*i)}, {pr(vSum+2*i)}, {pr(8*rb+2*i)}')
    for d, items in o_steps(k):
        if d == 1: k('s_nop 7')
        for it in items: k.emit(it)
    k.flush_bg()

def phase2(k, typ):
    o = k.opt
    Lend = f'L_end{typ}'
    k.flush_bg(timed=False)
    if typ == 'Q':
        L = k.A.label('L_p2')
        k(f's_cmp_lg_u32 s{sNb}, 7\ns_cbranch_scc1 {L}')
        sv = (list(k.vm), list(k.timed), k.t)
        k.flush_bg()
        k('s_waitcnt vmcnt(0)')
        o_only(k)
        k(f's_branch {Lend}\n{L}:')
        k.vm, k.timed, k.t = sv
    NQ = 16 if typ == 'Q' else 24
    DEPTH = o.get('depth', 7)
    SAMP = o.get('samp', DEPTH)
    assert 2*(DEPTH + 1) <= NQ
    k.vmem(f'buffer_load_dwordx4 {v(XR,4)}, v{vOUT}, {srd(SX)}, s{sB} offen', 'xr')
    k.vmem(f'buffer_load_dwordx4 {v(XR+4,4)}, v{vOUT}, {srd(SX)}, s{sB2} offen', 'xr')
    k.flush_bg()
    k.stamp(5)
    spin(k, 'L_hp', FL_LOAD(0), f'v_cmp_eq_u32 vcc, 0, v{vPoll1}', 0xf)
    k.vm = []
    k.stamp(6)
    k(f's_mul_i32 s{sC}, s{sG2}, {144*2048}\ns_mul_i32 s3, s{sWave}, {28*2048}\ns_add_u32 s{sA2}, s{sC}, s3')
    k(f's_lshl_b32 s3, s{sWave}, 14\ns_add_u32 s{sC}, s{sC}, s3\ns_add_u32 s{sC}, s{sC}, {112*2048}')
    ent = [('h', i) for i in range(36)]
    if typ == 'Q':
        P = o.get('kvpos', 4)
        for rb in range(8): ent.insert(P + (2 if o.get('kvint', 0) else 1)*rb, ('kv', rb))
        k(f's_lshl_b32 s3, s{sJ}, 5\ns_add_u32 s3, s3, s{sWave}\ns_lshl_b32 s3, s3, 11\ns_add_u32 s{sC2}, s3, {WS_KVP}')
    gates = {ent.index(('h', 16)): ('L_g1', FL_LOAD(1), vPoll1, 0xf), ent.index(('h', 28)): ('L_g2', FL_LOAD(2), vPoll1, 0xf)}
    if typ == 'Q': gates[ent.index(('kv', 0))] = ('L_g3', KF_LOAD, vPoll2, 0xff)
    samples = {}
    for gi, g in gates.items(): samples.setdefault(max(0, gi - SAMP), []).append(gi)
    def load(e, half):
        kind, i = ent[e]
        if half == 0:
            for gi in samples.get(e, []): k.vmem(gates[gi][1], f'smp{gi}')
            if e in gates:
                nm, ld, reg, mask = gates[e]
                if (kind, i) == ('h', 28):
                    assert typ == 'KV' or done_kv[0]
                    while fill:
                        it = fill.popleft()
                        if not isinstance(it, int): k.emit(it)
                    k.flush_bg()
                gate(k, nm, f'smp{e}', ld, f'v_cmp_eq_u32 vcc, 0, v{reg}', mask)
                if kind == 'h':
                    k.stamp(7 if i == 16 else 8)
                    if i == 28: k.stamp(9, 4)
                else: k.stamp(4, 4)
            if kind == 'h':
                if i == 28: k(f's_mov_b32 s{sA}, s{sC}')
                elif i < 28 and i % 4 == 0: k(f's_bfe_u32 s{sA}, s{sMu}, {hex(0x40000 + i)}\ns_lshl_b32 s{sA}, s{sA}, 13\ns_add_u32 s{sA}, s{sA}, s{sA2}')
                elif i % 2 == 0: k(f's_add_u32 s{sA}, s{sA}, 4096')
            elif i: k(f's_add_u32 s{sC2}, s{sC2}, 8192')
        r = HB + 4*((2*e + half) % NQ)
        if kind == 'h': k.vmem(f'buffer_load_dwordx4 {v(r,4)}, v{vL16}, {srd(SW)}, s{sA} offen offset:{(i&1)*2048 + half*1024} sc1', f'e{e}')
        else: k.vmem(f'buffer_load_dwordx4 {v(r,4)}, v{vL16}, {srd(SW)}, s{sC2} offen offset:{half*1024} sc1', f'e{e}')
    def oreads(ko):
        jj, s_ = ko >> 1, ko & 1; r = []
        for n in range(2):
            for j2 in range(2):
                va = vOA + n + (2 if (s_ == 1 and j2 == 1) else 0)
                d = aOF + 8*(ko & 1) + 4*n + 2*j2
                r.append(f'ds_read_b64_tr_b16 a[{d}:{d+1}], v{va} offset:{(28*jj + 16*s_ + 8*j2)*128}')
        return r
    fill = deque(); hold = 0; done_kv = [False]
    nxt = 0
    def more(upto):
        nonlocal nxt
        while nxt < min(upto, 2*len(ent)):
            load(nxt >> 1, nxt & 1); nxt += 1
    more(2*DEPTH)
    for ci in (4, 5, 6):
        for r in dreads(ci): k(r)
    def drain_fill(n):
        nonlocal hold
        while fill and n > 0:
            if isinstance(fill[0], int):
                if hold < fill[0]: return
                fill.popleft(); continue
            it = fill.popleft(); k.emit(it); n -= 1; hold = 0
    for e, (kind, i) in enumerate(ent):
        r0 = HB + 4*((2*e) % NQ); r1 = HB + 4*((2*e + 1) % NQ)
        if kind == 'kv':
            k.wait(f'e{e}')
            adds = [(f'v_mov_b32 v{vSum+x}, v{(r0 if x < 4 else r1-4)+x}' if i == 0 else f'v_add_f32 v{vSum+x}, v{vSum+x}, v{(r0 if x < 4 else r1-4)+x}') for x in range(8)]
            for x in adds: k(x)
            if i == 7:
                for d, items in o_steps(k):
                    fill.append(d); fill.extend(items)
                hold = 0; done_kv[0] = True
            more(2*(e + DEPTH) + 2)
            if i == 7 and o.get('oblock'):
                while fill:
                    it = fill.popleft()
                    if not isinstance(it, int): k.emit(it)
            continue
        if i == 27:
            for r in oreads(0): k(r)
        k.wait(f'e{e}', extra='lgkmcnt(0)' if (i >= 28 or i == 0) else '')
        cnt = 0
        for tt in range(2):
            for n in range(2):
                D = AC + 32*n + 16*tt
                Af = a(8*i + 4*n, 4) if i < 28 else a(aOF + 8*((i-28) & 1) + 4*n, 4)
                k(f'v_mfma_f32_32x32x16_bf16 {v(D,16)}, {Af}, {v((r0, r1)[tt],4)}, {"0" if i == 0 else v(D,16)}')
                hold += 1
                if cnt == 0 and 28 <= i < 35:
                    for r in oreads(i - 27): k(r)
                if cnt == 1: more(2*(e + DEPTH) + 1)
                if cnt == 3: more(2*(e + DEPTH) + 2)
                drain_fill(5)
                k.tick()
                cnt += 1
    assert not fill and not k.timed, (len(fill), k.timed)
    k.stamp(9)
    k.wait('xr')
    for i in range(8): k(f'v_lshlrev_b32 v{128+2*i}, 16, v{XR+i}\nv_and_b32 v{128+2*i+1}, 0xffff0000, v{XR+i}')
    for tt in range(2):
        for n in range(2):
            for q in range(4): k(f'ds_write_b128 v{vRW}, {v(AC+32*n+16*tt+4*q,4)} offset:{tt*32*RP + n*128 + q*32}')
    k('s_waitcnt lgkmcnt(0)\ns_barrier')
    for it in range(2):
        for w in range(4):
            for hf in range(2):
                k(f'ds_read_b128 {v(64+32*it+8*w+4*hf,4)}, v{vRR+(w>>1)} offset:{(w&1)*XW + it*8*RP + 16*hf}')
    for it in range(2):
        for w in range(4):
            k(f's_waitcnt lgkmcnt({8*(1-it) + 2*(3-w)})')
            for i in range(4): k(f'v_pk_add_f32 {pr(128+8*it+2*i)}, {pr(128+8*it+2*i)}, {pr(64+32*it+8*w+2*i)}')
        for i in range(4): k(f'v_cvt_pk_bf16_f32 v{16+4*it+i}, v{128+8*it+2*i}, v{128+8*it+2*i+1}')
        k.vmem(f'buffer_store_dwordx4 {v(16+4*it,4)}, v{vOUT}, {srd(SOUT)}, s{sB2 if it else sB} offen {o.get("outfl", "")}', 'out')
    k(f'{Lend}:')
    if o.get('fixdur'):
        k(f'{Lend}f:\ns_memrealtime s[{sC}:{sC+1}]\ns_waitcnt lgkmcnt(0)\ns_sub_u32 s3, s{sC}, s100\ns_cmp_lt_u32 s3, {o["fixdur"]}\ns_cbranch_scc1 {Lend}f')
    if o.get('stamps'):
        k(f's_memtime s[{sA}:{sA+1}]\ns_memrealtime s[{sC}:{sC+1}]\ns_waitcnt lgkmcnt(0)')
        k(f's_lshl_b32 s3, s2, 2\ns_add_u32 s3, s3, s{sWave}\ns_lshl_b32 s3, s3, 6\ns_add_u32 s3, s3, {WS_STAMP}\nv_mov_b32 v40, s3\ns_mov_b64 exec, 1')
        k(f'v_mov_b32 v24, s100\nv_mov_b32 v25, s{sC}')
        for i in range(1, 10): k(f's_sub_u32 s3, s{STAMP0+2*i}, s{STAMP0}\nv_mov_b32 v{25+i}, s3')
        k(f's_sub_u32 s3, s{sA}, s{STAMP0}\nv_mov_b32 v35, s3')
        for q in range(3): k(f'buffer_store_dwordx4 {v(24+4*q,4)}, v40, {srd(SW)}, 0 offen offset:{16*q}')
    k('s_endpgm')

def body(k, typ):
    k.vm = list(k.vm0); k.bg = deque(); k.timed = []
    main_loop(k, typ)
    k.scratch_free = (typ == 'Q')
    w2_background(k, lambda: k.scratch_free)
    k.stamp(3, 3)
    if typ == 'Q':
        k('s_nop 3')
        ffn_epilogue(k, typ)
        k.stamp(4); k.stamp(4, 3)
        q_part(k)
        k.stamp(5, 3)
    else:
        k('s_nop 3')
        kv_part(k)
        k.stamp(7, 3)
        ffn_epilogue(k, typ)
        k.stamp(4); k.stamp(8, 3)
        phase2_setup(k)
    phase2(k, typ)

def generate(opt):
    k = K(opt); name = NAME + '_kernel'
    kernel_begin(k.A, name)
    prologue(k)
    k.vm0 = list(k.vm)
    body(k, 'KV')
    k('L_typeQ:')
    body(k, 'Q')
    k('L_codeend:')
    return assemble_file([(name, 256, 256, NLDS)], k.A.text(), [kernel_desc(name, 512, accum=256)])

if __name__ == '__main__':
    import json, hazard
    opt = json.loads(sys.argv[2]) if len(sys.argv) > 2 else {}
    txt = generate(opt)
    open(sys.argv[1], 'w').write(txt)
    e = hazard.check(txt)
    print(len(txt), 'bytes of text;', len(e), 'hazards')
```

```python
import sys, struct, math
from collections import deque
from asmgen import *

def f2u(x): return struct.unpack('<I', struct.pack('<f', x))[0]

WS_H    = 0
WS_KVP  = 10 << 20
WS_ST   = 12 << 20
WS_FL   = WS_ST + 32768
WS_KF   = WS_FL + 262144
WS_STAMP = 128 << 20
OOB = 0x40000000
XW = 24576
WB = 98304; WS_ = 20736
L_CS = WB + 57344
L_PHI = 163840 - 2048
KVF_OFF = 20480
SP = 208
RP = 272
NLDS = 163840

sA, sA2, sB, sB2, sC, sC2 = 4, 5, 6, 7, 8, 9
sMx, sMa, sMf = 10, 11, 12
sT0, sT1, sT2 = 13, 14, 15
sL = 16
sHm = 18
sG2, sNb, sDb, sHo = 20, 21, 22, 23
sSpin, sKap, sWave, sRb = 24, 25, 26, 27
SX, SQ, SG, SU, SD, SO, SW, SOUT, SDBG, SPH, SGU = 28, 32, 36, 40, 44, 48, 52, 56, 60, 64, 68
sG, sU, sJ, sCg, sSt, sXb, sQb, sFb = 72, 73, 74, 75, 76, 77, 78, 79
sFh, sF2 = 16, 17
SPF = 56
sMu = 76
STAMP0 = 80

def srd(n): return f's[{n}:{n+3}]'
def pr(r): return f'v[{r}:{r+1}]'

TRANS = ('v_exp_f32', 'v_rcp_f32', 'v_rsq_f32')
def cost(line):
    op = line.split()[0]
    if op.endswith(':') or op.startswith('.') or op.startswith(';'): return 0
    if op.startswith('v_mfma'): return 32 if '32x32' in op else 16
    if op in TRANS: return 8
    if op == 's_nop': return 4*(int(line.split()[1]) + 1)
    if op == 'ds_write_b128': return 16
    return 4

class K:
    def __init__(self, opt):
        self.A = Asm(); self.vm = []; self.opt = opt
        self.t = 0; self.bg = deque(); self.timed = []; self.lastbg = -10**9; self.inbg = False
    def raw(self, t):
        for l in t.strip('\n').split('\n'):
            l = l.strip()
            if l: self.A(l); self.t += cost(l)
    def __call__(self, t): self.raw(t)
    def f(self, t):
        for l in t.strip('\n').split('\n'):
            l = l.strip()
            if l: self.raw(l); self.tick()
    def tick(self):
        if self.inbg: return
        self.inbg = True
        for it in [x for x in self.timed if x[0] <= self.t]:
            self.timed.remove(it); it[1]()
        if self.bg and self.t - self.lastbg >= self.bg[0][0] and (len(self.bg[0]) < 3 or self.bg[0][2]()):
            g = self.bg.popleft()
            for it in g[1]: self.emit(it)
            self.lastbg = self.t
        self.inbg = False
    def flush_bg(self, timed=True):
        self.inbg = True
        while self.bg:
            g = self.bg.popleft()
            assert len(g) < 3 or g[2]()
            for it in g[1]: self.emit(it)
            for it in [x for x in self.timed if x[0] <= self.t]:
                self.timed.remove(it); it[1]()
            self.t += 60
        if timed:
            for it in list(self.timed): self.timed.remove(it); it[1]()
        self.inbg = False
    def vmem(self, t, tag):
        for key, srds in (('ntw', (SQ, SG, SU, SGU)), ('ntx', (SX,)), ('ntd', (SD, SO)), ('ntp', (SPF,))):
            if self.opt.get(key) and t.startswith('buffer_load') and any(srd(n) in t for n in srds):
                t = t.replace(' lds', ' nt lds') if t.endswith(' lds') else t + ' nt'
        self.raw(t); self.vm.append(tag)
    def wait(self, *tags, extra=''):
        last = max((i for i, x in enumerate(self.vm) if x in tags), default=None)
        if last is None:
            if extra: self.raw(f's_waitcnt {extra}')
            return
        n = len(self.vm) - 1 - last
        assert n <= 63, n
        self.raw(f's_waitcnt vmcnt({n}) {extra}')
        self.vm = self.vm[len(self.vm)-n:] if n else []
    def stamp(self, i, grp=1):
        pb = self.opt.get('probe')
        if pb:
            if i == 0: self.A('s_memtime s[96:97]\ns_mov_b32 s98, 0')
            if [i, grp] == pb[:2]: self.A('s_memrealtime s[98:99]' if pb[2] == 'rt' else 's_memtime s[98:99]')
        if self.opt.get('stamps') and (i <= 2 or self.opt.get('stamps') == grp): self.A(f's_memtime s[{STAMP0+2*i}:{STAMP0+2*i+1}]')
    def emit(self, item):
        if callable(item): item()
        elif isinstance(item, tuple): self.vmem(*item)
        else: self.raw(item)

vXP, vDP, vXA = 160, 164, 168
vAP, vAA, vCAA = 172, 173, 174
vFP, vFA, vCFA = 175, 178, 182
vCS = 186
vL16 = 191
vCT = 192
vU0, vU1 = 212, 213
vST = 214
vP2 = 218
vP3 = 222
vPoll, vPA = 226, 227
vWP = 228
vDA = 236
vF0, vOne = 238, 239
vT = 240
vJ = 252
vMB = 240
vS0 = 248
aFB = 200

def acc(c, tt): return 32*c + 16*tt
def fX(b, tt): return aFB + 28*b + 4*tt
def fW(b, c): return aFB + 28*b + 8 + 4*c

def spin(k, name, load, cmp_, mask):
    L = k.A.label(name)
    k(f's_mov_b32 s{sSpin}, 0\n{L}:\n{load}\ns_add_u32 s{sSpin}, s{sSpin}, 1\ns_waitcnt vmcnt(0)\n{cmp_}')
    if mask is None: k(f's_cbranch_vccz {L}_x')
    else: k(f's_and_b32 s3, vcc_lo, {mask}\ns_cbranch_scc0 {L}_x')
    if k.opt.get('sleep'): k(f's_sleep {k.opt["sleep"]}')
    k(f's_cmp_lt_u32 s{sSpin}, {k.opt.get("spin", 200000)}\ns_cbranch_scc1 {L}\n{L}_x:')

def gate(k, name, tag, load, cmp_, mask):
    k.wait(tag)
    L = k.A.label(name)
    k(cmp_)
    if mask is None: k(f's_cbranch_vccz {L}')
    else: k(f's_and_b32 s3, vcc_lo, {mask}\ns_cbranch_scc0 {L}')
    t = k.t
    spin(k, name + 's', load, cmp_, mask)
    k.t = t
    k(f'{L}:')

def iftype(k, fkv, fq):
    L = k.A.label('L_ty')
    k(f's_bitcmp1_b32 s{sU}, 0\ns_cbranch_scc1 {L}q')
    sv = (list(k.vm), k.t, k.nb)
    fkv()
    n = len(k.vm)
    k(f's_branch {L}j\n{L}q:')
    k.vm, k.t, k.nb = sv
    fq()
    assert len(k.vm) == n
    k(f'{L}j:')

def prologue(k):
    o = k.opt
    k.nb = 0
    k(f's_cmp_lt_u32 s2, 256\ns_cbranch_scc1 L_go\ns_endpgm\nL_go:')
    k.stamp(0)
    if o.get('stamps') or o.get('fixdur') or o.get('probe'): k('s_memrealtime s[100:101]')
    k(f'v_lshrrev_b32 v1, 6, v0\ns_getpc_b64 s[20:21]\nL_pc:\nv_readfirstlane_b32 s{sWave}, v1')
    k(f's_lshr_b32 s{sCg}, s2, 3\nv_lshrrev_b32 v2, 4, v0\nv_lshl_add_u32 v2, v2, 5, s{sCg}\nv_lshlrev_b32 v2, 7, v2\nv_min_u32 v2, L_codeend-L_pc-4, v2')
    k(f's_mov_b32 exec_lo, 0x10001\ns_mov_b32 exec_hi, 0x10001')
    k.vmem(f'global_load_dword v{vJ}, v2, s[20:21]', 'pf')
    k(f's_mov_b64 exec, -1\ns_lshl_b32 s3, s{sWave}, 3\ns_lshr_b32 s3, 0x08302800, s3\ns_and_b32 s3, s3, 0xff\ns_load_dwordx2 s[{SPF}:{SPF+1}], s[0:1], s3')
    for n, off in ((SQ, 8), (SX, 0), (SG, 40), (SU, 48), (SW, 80), (SD, 56), (SO, 24), (SDBG, 72), (SPH, 16)): k(f's_load_dwordx2 s[{n}:{n+1}], s[0:1], {off}')
    k('v_and_b32 v0, 63, v0')
    assert o.get('map', 'x4') == 'x4'
    k(f's_and_b32 s{sG}, s2, 3')
    P, B, S, R, M, Z = 4, 5, 6, 7, 8, 9
    k(f'''s_mul_i32 s{B}, s{sG}, 896
    s_lshr_b32 s3, s{B}, 2
    s_andn2_b32 s3, s3, 127
    s_cmp_eq_u32 s{sWave}, 3
    s_cselect_b32 s{B}, s3, s{B}
    s_movk_i32 s{P}, 3584
    s_cselect_b32 s{P}, 2688, s{P}
    s_movk_i32 s{S}, 512
    s_cselect_b32 s{S}, 896, s{S}
    s_mov_b32 s{M}, 0x007f007f
    s_cselect_b32 s{M}, 0x07770777, s{M}
    s_lshl_b32 s{R}, s{sCg}, 1
    s_lshl_b32 s{Z}, s{P}, 6
    s_mul_i32 s{SPF+2}, s{P}, 448
    s_and_b32 s3, s2, 4
    s_lshl_b32 s3, s3, 3
    s_add_u32 s3, s3, s{sCg}
    s_lshl_b32 s3, s3, 5
    s_cmp_eq_u32 s{sWave}, 0
    s_cselect_b32 s{R}, s3, s{R}
    s_cselect_b32 s{P}, 896, s{P}
    s_cselect_b32 s{B}, 0, s{B}
    s_cselect_b32 s{M}, -1, s{M}
    s_cselect_b32 s{Z}, 128, s{Z}
    s_cselect_b32 s{SPF+2}, {2048*896}, s{SPF+2}
    s_cselect_b32 s3, 0, 4
    s_cselect_b32 s{sT0}, 0, 15
    s_mov_b32 s{SPF+3}, 0x20000
    v_and_b32 v9, 31, v0
    v_lshrrev_b32 v2, s3, v9
    v_add_u32 v2, s{R}, v2
    v_mul_lo_u32 v2, v2, s{P}
    v_and_b32 v3, s{sT0}, v0
    v_lshrrev_b32 v4, 2, v3
    v_mad_u32_u24 v2, v4, s{S}, v2
    v_and_b32 v3, 3, v3
    v_lshl_add_u32 v2, v3, 7, v2
    v_add_u32 v2, s{B}, v2
    s_mov_b32 exec_lo, s{M}
    s_mov_b32 exec_hi, 0
    s_waitcnt lgkmcnt(0)''')
    k.stamp(3, 5)
    npf = o.get('npf', 2)
    for i in range(npf):
        if i: k(f'v_add_u32 v2, s{Z}, v2')
        k.vmem(f'buffer_load_dword v{vJ+1}, v2, {srd(SPF)}, 0 offen', 'pf')
    k('s_mov_b64 exec, -1')
    k(f's_and_b32 s{sRb}, s{sCg}, 3\ns_and_b32 s3, s2, 4\ns_or_b32 s{sRb}, s{sRb}, s3\ns_lshr_b32 s{sU}, s{sCg}, 2')
    k(f's_lshr_b32 s{sJ}, s{sU}, 1\ns_lshl_b32 s3, s{sG}, 2\ns_or_b32 s{sJ}, s{sJ}, s3')
    k(f's_lshl_b32 s{sCg}, s{sG}, 3\ns_or_b32 s{sCg}, s{sCg}, s{sU}\ns_mov_b32 s{sSt}, 0')
    k(f'''v_lshlrev_b32 v{vL16}, 4, v0
    v_lshrrev_b32 v1, 3, v0
    v_and_b32 v2, 7, v0
    v_mul_u32_u24 v3, 896, v1
    v_lshrrev_b32 v4, 1, v1
    v_xor_b32 v5, v2, v4
    v_lshl_add_u32 v{vXP}, v5, 4, v3
    v_xor_b32 v5, 4, v5
    v_lshl_add_u32 v{vXP+1}, v5, 4, v3
    v_add_u32 v{vXP+1}, 6144, v{vXP+1}
    v_add_u32 v{vXP+2}, {2*6144}, v{vXP}
    v_add_u32 v{vXP+3}, {2*6144}, v{vXP+1}
    v_lshrrev_b32 v6, 2, v0
    v_and_b32 v7, 3, v0
    v_mul_u32_u24 v6, 2688, v6
    v_lshlrev_b32 v8, 4, v7
    v_min_u32 v8, 40, v8
    v_add_u32 v{vAP}, v6, v8
    v_lshrrev_b32 v10, 5, v0
    v_mov_b32 v11, {OOB}''')
    k(f's_lshl_b32 s{sHo}, s{sRb}, 2\ns_add_u32 s{sHo}, s{sHo}, s{sWave}\ns_mul_i32 s{sXb}, s{sHo}, {64*896}')
    k(f's_mul_i32 s{sQb}, s{sWave}, {16*2688}\ns_mul_i32 s3, s{sJ}, 56\ns_add_u32 s{sQb}, s{sQb}, s3')
    for n, size in ((SX, 2048*896), (SW, 1 << 28), (SQ, 448*2688), (SG, 448*3584), (SU, 448*3584)):
        k(f's_mov_b32 s{n+2}, {size}\ns_mov_b32 s{n+3}, 0x20000')
    k(f's_mul_i32 s{sMx}, s{sWave}, {XW}\ns_lshl_b32 s{sMa}, s{sWave}, 10\ns_add_u32 s{sMa}, s{sMa}, {WB}')
    gx = batch(k, 'Q', 0, first=True)[0][5:]
    k.nb = 0
    nx0 = o.get('nx0', 4)
    for g in gx[:nx0]:
        for it in g: k.emit(it)
    k.stamp(4, 5)
    k(f'''v_mul_u32_u24 v22, 896, v10
    v_lshl_add_u32 v22, v9, 4, v22
    v_cmp_lt_u32 vcc, 27, v9
    s_lshl_b32 s3, s{sRb}, 7
    s_lshl_b32 s{sT0}, s{sCg}, 2
    v_cndmask_b32 v22, v22, v11, vcc
    s_add_u32 s3, s3, s{sT0}
    s_add_u32 s{sT2}, s3, s{sWave}
    s_mul_i32 s{sT1}, s{sT2}, {2*896}
    s_lshl_b32 s{sT2}, s{sT2}, 4
    s_add_u32 s{sT2}, s{sT2}, {WS_ST}
    v_cmp_eq_u32 vcc, 0, v9
    v_lshlrev_b32 v12, 3, v10
    s_lshl_b32 s3, s{sHo}, 2
    v_cndmask_b32 v{vMB+1}, v11, v12, vcc''')
    k(f's_add_u32 s3, s3, s{sG}\ns_lshl_b32 s3, s3, 4\ns_lshr_b32 s{sT0}, s{sU}, 1\ns_add_u32 s3, s3, s{sT0}\ns_lshl_b32 s{sFh}, s3, 7')
    common_setup2(k)
    iftype(k, lambda: type_setup(k, 'KV'), lambda: type_setup(k, 'Q'))
    k(f'''v_lshl_add_u32 v23, v0, 2, s{sT2}
    v_cmp_lt_u32 vcc, 5, v0
    v_writelane_b32 v23, s{sFh}, 4
    v_writelane_b32 v23, s{sF2}, 5
    v_mov_b32 v21, 0
    v_cndmask_b32 v23, v23, v11, vcc''')
    k.vmem(f'buffer_store_dword v21, v23, {srd(SW)}, 0 offen sc1', 'zero')
    k.stamp(5, 5)
    for g in gx[nx0:]:
        for it in g: k.emit(it)
    def w0(typ):
        for g in batch(k, typ, 0, first=True)[0][:5]:
            for it in g: k.emit(it)
    iftype(k, lambda: w0('KV'), lambda: w0('Q'))
    k.stamp(6, 5)
    k(f's_bitcmp1_b32 s{sU}, 0\ns_cbranch_scc1 L_typeQ')

def type_setup(k, typ):
    if typ == 'KV':
        k(f's_add_u32 s{sQb}, s{sQb}, 896')
        tbl = 0
        for j in range(16): tbl |= ([0,1,3,2][j & 3] if j < 8 else [1,0,2,3][j & 3]) << (2*j)
        k(f's_lshl_b32 s3, s{sJ}, 1\ns_lshr_b32 s3, {hex(tbl)}, s3\ns_and_b32 s3, s3, 3')
        k(f's_mul_i32 s{sKap}, s3, 3\ns_mul_i32 s{sT0}, s{sG}, 28\ns_add_u32 s{sKap}, s{sKap}, s{sT0}\ns_add_u32 s{sKap}, s{sKap}, 16')
        k(f's_and_b32 s3, s{sWave}, 1\ns_mul_i32 s{sFb}, s3, {32*3584}\ns_lshl_b32 s{sT0}, s{sKap}, 5\ns_add_u32 s{sFb}, s{sFb}, s{sT0}')
        k(f's_mul_i32 s{sMf}, s3, 3072\ns_lshr_b32 s3, s{sWave}, 1\ns_mul_i32 s3, s3, 6272\ns_add_u32 s{sMf}, s{sMf}, s3\ns_add_u32 s{sMf}, s{sMf}, {WB+8192}')
        for n in range(3):
            k(f'''v_add_u32 v12, {64*n}, v0
            v_mul_u32_u24 v19, 171, v12
            v_lshrrev_b32 v19, 10, v19
            v_mul_u32_u24 v20, 6, v19
            v_sub_u32 v20, v12, v20
            v_mul_u32_u24 v19, 3584, v19
            v_lshl_add_u32 v{vFP+n}, v20, 4, v19''')
            if n: k(f'v_subrev_u32 v{vFP+n}, {1024*n}, v{vFP+n}')
        k(f's_mov_b32 s{SGU+2}, {448*3584}\ns_mov_b32 s{SGU+3}, 0x20000')
        k(f's_cmp_lt_u32 s{sWave}, 2\ns_cselect_b32 s{SGU}, s{SG}, s{SU}\ns_cselect_b32 s{SGU+1}, s{SG+1}, s{SU+1}')
        k(f's_add_u32 s{sFh}, s{sFh}, {WS_FL+4*128}')
        k(f's_lshl_b32 s3, s{sJ}, 2\ns_add_u32 s3, s3, s{sWave}\ns_lshl_b32 s3, s3, 3\ns_add_u32 s3, s3, s{sRb}\ns_lshl_b32 s3, s3, 7\ns_add_u32 s{sF2}, s3, {WS_KF}')
        k(f'''v_mul_u32_u24 v19, 96, v16
        v_mul_u32_u24 v20, 6272, v15
        v_lshlrev_b32 v12, 3, v14
        v_add3_u32 v19, v19, v20, v12
        v_add_u32 v{vFA}, {WB+8192}, v19
        s_mul_i32 s3, s{sWave}, {16*96}
        v_add_u32 v{vCFA}, s3, v{vFA}''')
    else:
        k(f's_and_b32 s3, s{sJ}, 3\ns_lshl_b32 s{sKap}, s3, 2\ns_mul_i32 s{sT0}, s{sG}, 28\ns_add_u32 s{sKap}, s{sKap}, s{sT0}')
        k(f's_mul_i32 s{sFb}, s{sWave}, {16*3584}\ns_lshl_b32 s{sT0}, s{sKap}, 5\ns_add_u32 s{sFb}, s{sFb}, s{sT0}')
        k(f's_lshl_b32 s{sMf}, s{sWave}, 11\ns_add_u32 s{sMf}, s{sMf}, {WB+4096}')
        k(f'''v_and_b32 v12, 2, v1
        v_xor_b32 v12, v2, v12
        v_mul_u32_u24 v19, 3584, v1
        v_lshl_add_u32 v{vFP}, v12, 4, v19
        v_xor_b32 v12, 4, v12
        v_lshl_add_u32 v{vFP+1}, v12, 4, v19
        v_mov_b32 v{vFP+2}, 0''')
        k(f's_add_u32 s{sFh}, s{sFh}, {WS_FL}\ns_add_u32 s{sF2}, s{sFh}, {8*128}')
        k(f'''v_lshlrev_b32 v19, 7, v16
        v_lshlrev_b32 v20, 13, v15
        v_lshlrev_b32 v12, 3, v14
        v_add3_u32 v19, v19, v20, v12
        v_add_u32 v19, {WB+4096}, v19
        v_lshrrev_b32 v20, 1, v13
        v_lshl_add_u32 v20, v15, 1, v20
        s_lshl_b32 s3, s{sWave}, 11''')
        for seg in range(4):
            k(f'v_xor_b32 v12, {seg}, v20\nv_lshl_add_u32 v{vFA+seg}, v12, 5, v19\nv_add_u32 v{vCFA+seg}, s3, v{vFA+seg}')
        k(f's_mov_b32 s{SGU}, s{SG}\ns_mov_b32 s{SGU+1}, s{SG+1}\ns_mov_b32 s{SGU+2}, {448*3584}\ns_mov_b32 s{SGU+3}, 0x20000')

def batch(k, typ, slot, first=False):
    g = []; pre = []
    if not first:
        pre += [f's_add_u32 s{sSt}, s{sSt}, 1']
        if k.opt.get('rot'): pre += [f's_cmp_eq_u32 s{sSt}, 7', f's_cselect_b32 s{sSt}, 0, s{sSt}']
    tag = f'b{k.nb}'; k.nb += 1
    pre += [f's_mul_i32 s{sB}, s{sSt}, {64*2688}', f's_add_u32 s{sB}, s{sB}, s{sQb}', f's_add_u32 m0, s{sMa}, {slot*WS_}',
            f's_mul_i32 s{sC}, s{sSt}, {64*3584}']
    g.append(pre + [(f'buffer_load_dwordx4 v{vAP}, {srd(SQ)}, s{sB} offen lds', tag)])
    if typ == 'KV':
        g.append([f's_add_u32 m0, s{sMa}, {slot*WS_+4096}', f's_add_u32 s{sB2}, s{sB}, 896', (f'buffer_load_dwordx4 v{vAP}, {srd(SQ)}, s{sB2} offen lds', tag)])
        g.append([f's_add_u32 m0, s{sMf}, {slot*WS_}', f's_add_u32 s{sC}, s{sC}, s{sFb}', (f'buffer_load_dwordx4 v{vFP}, {srd(SGU)}, s{sC} offen lds', tag)])
        g.append([(f'buffer_load_dwordx4 v{vFP+1}, {srd(SGU)}, s{sC} offen offset:1024 lds', tag)])
        g.append([(f'buffer_load_dwordx4 v{vFP+2}, {srd(SGU)}, s{sC} offen offset:2048 lds', tag)])
    else:
        g.append([f's_add_u32 m0, s{sMf}, {slot*WS_}', f's_add_u32 s{sC}, s{sC}, s{sFb}', (f'buffer_load_dwordx4 v{vFP}, {srd(SG)}, s{sC} offen lds', tag)])
        g.append([f's_add_u32 s{sC2}, s{sC}, {8*3584-1024}', (f'buffer_load_dwordx4 v{vFP}, {srd(SG)}, s{sC2} offen offset:1024 lds', tag)])
        g.append([f's_add_u32 m0, s{sMf}, {slot*WS_+8192}', 's_nop 0', (f'buffer_load_dwordx4 v{vFP+1}, {srd(SU)}, s{sC} offen lds', tag)])
        g.append([(f'buffer_load_dwordx4 v{vFP+1}, {srd(SU)}, s{sC2} offen offset:1024 lds', tag)])
    for n in range(8):
        p = []
        if n == 0: p = [f's_add_u32 m0, s{sMx}, {slot*8192}', f's_lshl_b32 s{sA}, s{sSt}, 7', f's_add_u32 s{sA}, s{sA}, s{sXb}']
        if n == 4: p = [f's_add_u32 m0, s{sMx}, {slot*8192+4096}', f's_add_u32 s{sA}, s{sA}, {32*896}']
        g.append(p + [(f'buffer_load_dwordx4 v{vXP+(n&3)}, {srd(SX)}, s{sA} offen offset:{(n&3)*1024} lds', tag)])
    return g, tag

def dbatch(ci):
    slot = (7 + ci) % 3; tag = f'd{ci}'; g = []
    for n in range(8):
        p = []
        if n == 0: p = [f's_bfe_u32 s{sA}, s{sMu}, {hex(0x40000 + 4*ci)}', f's_mul_i32 s{sA}, s{sA}, {64*896}', f's_add_u32 m0, s{sMx}, {slot*8192}', f's_add_u32 s{sA}, s{sA}, s{sDb}']
        if n == 4: p = [f's_add_u32 m0, s{sMx}, {slot*8192+4096}', f's_add_u32 s{sA}, s{sA}, {32*896}']
        g.append(p + [(f'buffer_load_dwordx4 v{vDP+(n&3)}, {srd(SD)}, s{sA} offen offset:{(n&3)*1024} lds', tag)])
    return g

def obatch():
    g = []
    for n in range(14):
        p = []
        if n == 0:
            p = [f's_mul_i32 s{sA2}, s{sWave}, {14*1024}', f's_add_u32 s{sA2}, s{sA2}, {WB}', f's_mul_i32 s{sA}, s{sWave}, {(112-448)*896}', f's_mov_b32 m0, s{sA2}', f's_add_u32 s{sA}, s{sA}, s{sDb}']
        elif n % 4 == 0: p = [f's_add_u32 m0, s{sA2}, {n*1024}', f's_add_u32 s{sA}, s{sA}, {32*896}']
        g.append(p + [(f'buffer_load_dwordx4 v{vDP+(n&3)}, {srd(SO)}, s{sA} offen offset:{(n&3)*1024} lds', 'wo')])
    return g

def dreads(ci):
    slot = (7 + ci) % 3; r = []
    for kl in range(4):
        for n in range(2):
            for j2 in range(2):
                d = 8*(4*ci + kl) + 4*n + 2*j2
                r.append(f'ds_read_b64_tr_b16 a[{d}:{d+1}], v{vDA+n} offset:{slot*8192 + (16*kl + 8*j2)*128}')
    return r

def wread(typ, c, slot, ks, j2, cs=False):
    nat = 2 if typ == 'KV' else 1
    row = (0 if cs else 16*ks) + 4*j2
    if c < nat: return (vCAA if cs else vAA), slot*WS_ + c*4096 + row*64
    seg = c - nat
    if typ == 'KV': return (vCFA if cs else vFA), slot*WS_ + row*96 + seg*32
    return (vCFA if cs else vFA) + seg, slot*WS_ + row*128

def frag_reads(typ, b, slot, ks):
    r = [f'ds_read_b128 a[{fX(b,0)}:{fX(b,0)+3}], v{vXA+ks} offset:{slot*8192}']
    for c in range(5):
        for j2 in range(2):
            va, im = wread(typ, c, slot, ks, j2)
            r.append(f'ds_read_b64_tr_b16 a[{fW(b,c)+2*j2}:{fW(b,c)+2*j2+1}], v{va} offset:{im}')
        if c == 0: r.append(f'ds_read_b128 a[{fX(b,1)}:{fX(b,1)+3}], v{vXA+ks} offset:{slot*8192+4096}')
    return r

def common_setup2(k):
    for n, size in ((SD, 1792*896), (SO, 448*896), (SDBG, 256), (SPH, 16*1568)):
        k(f's_mov_b32 s{n+2}, {size}\ns_mov_b32 s{n+3}, 0x20000')
    k(f's_and_b32 s3, s2, 7\ns_lshl_b32 s{sG2}, s3, 2\ns_bfe_u32 s3, s2, 0x20003\ns_or_b32 s{sG2}, s{sG2}, s3\ns_lshr_b32 s{sNb}, s2, 5')
    k(f's_lshl_b32 s{sDb}, s{sNb}, 7\ns_mul_i32 s3, s{sWave}, {448*896}\ns_add_u32 s{sDb}, s{sDb}, s3')
    k(f's_mul_i32 s{sHo}, s{sHo}, {144*2048}\ns_mov_b32 s{sHm}, 0\ns_mov_b32 s{sHm+1}, -1')
    k(f'''v_bfe_u32 v18, v0, 1, 3
    v_lshlrev_b32 v12, 7, v9
    v_add_u32 v12, s{sMx}, v12''')
    for ks in range(4):
        k(f'v_or_b32 v13, {2*ks}, v10\nv_xor_b32 v13, v13, v18\nv_lshl_add_u32 v{vXA+ks}, v13, 4, v12')
    k(f'''v_bfe_u32 v13, v0, 2, 2
    v_and_b32 v14, 3, v0
    v_bfe_u32 v15, v0, 4, 1
    v_lshl_add_u32 v16, v10, 3, v13
    v_lshl_add_u32 v17, v15, 2, v14
    v_cmp_lt_u32 vcc, 5, v17
    v_xor_b32 v18, 1, v17
    v_lshlrev_b32 v19, 6, v16
    v_cndmask_b32 v18, v17, v18, vcc
    v_add_u32 v19, {WB}, v19
    v_lshl_add_u32 v{vAA}, v18, 3, v19
    s_lshl_b32 s3, s{sWave}, 10
    v_add_u32 v{vCAA}, s3, v{vAA}
    v_and_b32 v19, 2, v1
    v_lshlrev_b32 v19, 1, v19
    v_xor_b32 v19, v2, v19
    v_lshl_add_u32 v{vDP}, v19, 4, v3
    s_cmp_eq_u32 s{sNb}, 7
    s_cselect_b32 s3, {OOB}, 0
    v_add_u32 v{vDP}, s3, v{vDP}
    v_add_u32 v{vDP+1}, 6144, v{vDP}
    v_add_u32 v{vDP+2}, {2*6144}, v{vDP}
    v_add_u32 v{vDP+3}, {3*6144}, v{vDP}
    v_lshl_add_u32 v12, v10, 2, v13
    v_lshlrev_b32 v19, 7, v12
    v_lshl_add_u32 v19, v17, 3, v19
    v_add_u32 v19, s{sMx}, v19
    v_lshrrev_b32 v20, 1, v13
    v_lshl_add_u32 v{vDA}, v20, 6, v19
    v_xor_b32 v20, 1, v20
    v_lshl_add_u32 v{vDA+1}, v20, 6, v19
    v_mul_u32_u24 v12, 56, v12
    v_min_u32 v19, 6, v17
    v_lshl_add_u32 v12, v19, 3, v12
    v_add_u32 v{vMB}, {L_PHI}, v12
    v_cmp_eq_u32 vcc, 0, v0
    v_mov_b32 v{vOne}, 1
    v_mov_b32 v{vCS}, 0
    v_cndmask_b32 v{vF0}, v11, v0, vcc''')
    for i in range(1, 5): k(f'v_mov_b32 v{vCS+i}, 0')

def kv_addr_items():
    a_, b_, l = vMB+2, vMB+3, vMB+4
    return [x.replace('|', '\n') for x in f'''v_lshrrev_b32 v{l}, 4, v{vL16}
        v_and_b32 v{a_}, 31, v{l}
        v_mul_u32_u24 v{a_}, {SP}, v{a_}
        v_and_b32 v{b_}, 32, v{l}
        s_mul_i32 s3, s{sWave}, {64*SP}|s_add_u32 s3, s3, {WB}|v_add3_u32 v{vS0}, v{a_}, v{b_}, s3
        v_lshrrev_b32 v{a_}, 4, v{l}
        v_lshlrev_b32 v{a_}, 3, v{a_}
        v_bfe_u32 v{b_}, v{l}, 2, 1
        v_add_u32 v{a_}, v{a_}, v{b_}
        v_bfe_u32 v{b_}, v{l}, 3, 1
        v_lshl_add_u32 v{a_}, v{b_}, 2, v{a_}
        v_mul_u32_u24 v{a_}, {SP}, v{a_}
        v_and_b32 v{b_}, 1, v{l}
        v_lshl_add_u32 v{a_}, v{b_}, 5, v{a_}
        v_bfe_u32 v{b_}, v{l}, 1, 1
        v_lshl_add_u32 v{a_}, v{b_}, 3, v{a_}
        v_add_u32 v{vS0+2}, {WB}, v{a_}
        s_lshl_b32 s3, s{sWave}, 3|s_lshr_b32 s3, 0x50401000, s3|s_and_b32 s3, s3, 0xff|v_add_u32 v{vS0+1}, s3, v{vS0+2}
        v_lshrrev_b32 v{a_}, 4, v{l}
        v_lshlrev_b32 v{a_}, 9, v{a_}
        v_and_b32 v{b_}, 15, v{l}
        v_lshl_add_u32 v{vS0+3}, v{b_}, 4, v{a_}'''.split('\n')]

def stats_items(k):
    X = vWP; Lo = vST; s0, s1, r1, t = 222, 223, 224, 225
    it = [lambda: k.wait('srow')]
    for i in range(8): it += [f'v_lshlrev_b32 v{Lo+i}, 16, v{X+i}', f'v_and_b32 v{X+i}, 0xffff0000, v{X+i}']
    it += [f'v_add_f32 v{s0}, v{Lo}, v{X}', f'v_add_f32 v{s1}, v{Lo+1}, v{X+1}']
    for i in range(2, 8): it += [f'v_add_f32 v{s0}, v{s0}, v{Lo+i}', f'v_add_f32 v{s1}, v{s1}, v{X+i}']
    def red(r):
        o_ = []
        for m in ('quad_perm:[1,0,3,2]', 'quad_perm:[2,3,0,1]', 'row_half_mirror', 'row_mirror'):
            o_.append(f's_nop 1\nv_add_f32_dpp v{r}, v{r}, v{r} {m} row_mask:0xf bank_mask:0xf')
        o_ += [f'v_mov_b32 v{t}, v{r}', f's_nop 1\nv_permlane16_swap_b32 v{r}, v{t}', f'v_add_f32 v{r}, v{r}, v{t}']
        return o_
    it += [f'v_add_f32 v{s0}, v{s0}, v{s1}'] + red(s0) + [f'v_mul_f32 v{s0}, {hex(f2u(-1.0/448))}, v{s0}']
    for i in range(8): it += [f'v_add_f32 v{Lo+i}, v{Lo+i}, v{s0}', f'v_add_f32 v{X+i}, v{X+i}, v{s0}']
    it += [f'v_mul_f32 v{s1}, v{Lo}, v{Lo}', f'v_mul_f32 v{r1}, v{X}, v{X}']
    for i in range(1, 8): it += [f'v_fmac_f32 v{s1}, v{Lo+i}, v{Lo+i}', f'v_fmac_f32 v{r1}, v{X+i}, v{X+i}']
    it += ['s_mov_b32 vcc_lo, 0xf0000000', 's_mov_b32 vcc_hi, 0xf0000000', f'v_add_f32 v{r1}, v{r1}, v{s1}', f'v_cndmask_b32 v{r1}, v{r1}, 0, vcc']
    it += red(r1) + [f'v_mov_b32 v{s1}, {hex(f2u(1e-5))}', f'v_fmac_f32 v{s1}, {hex(f2u(1.0/448))}, v{r1}']
    it += [(f'buffer_store_dwordx2 v[{s0}:{s1}], v{vMB+1}, {srd(SW)}, s{sT2} offen sc1', 'stst')]
    return it

def prefetch1(k):
    o = k.opt
    r0 = 64*o.get('npf', 2)
    nl = -(-((448 - r0)*28) // 1024)
    k(f's_lshl_b32 s3, s{sWave}, 8\ns_add_u32 s3, s3, s2\nv_lshl_add_u32 v12, v0, 10, s3\nv_lshlrev_b32 v12, 7, v12')
    k(f'v_add_u32 v13, {r0*2688}, v12\nv_add_u32 v12, {r0*3584}, v12\ns_mov_b64 exec, {(1<<nl)-1}')
    k.vmem(f'buffer_load_dword v{vJ+1}, v12, {srd(SG)}, 0 offen', 'pf')
    k.vmem(f'buffer_load_dword v{vJ+2}, v12, {srd(SU)}, 0 offen', 'pf')
    k.vmem(f'buffer_load_dword v{vJ+3}, v13, {srd(SQ)}, 0 offen', 'pf')
    k('s_mov_b64 exec, -1')

def prefetch2():
    return [f's_lshl_b32 s3, s{sWave}, 8', 's_add_u32 s3, s3, s2', f'v_lshl_add_u32 v{vPA}, v{vL16}, 6, s3', f'v_lshlrev_b32 v{vPA}, 7, v{vPA}',
            's_mov_b64 exec, 0x1fff', (f'buffer_load_dword v{vJ}, v{vPA}, {srd(SD)}, 0 offen', 'pf'), (f'buffer_load_dword v{vJ+1}, v{vPA}, {srd(SO)}, 0 offen', 'pf'), 's_mov_b64 exec, -1']

ST_LOAD = lambda: f'buffer_load_dwordx2 v[{vST}:{vST+1}], v{vPA}, {srd(SW)}, s{sT2} offen sc1\nbuffer_load_dwordx2 v[{vST+2}:{vST+3}], v{vPA}, {srd(SW)}, s{sT2} offen offset:256 sc1'

def main_loop(k, typ):
    o = k.opt
    t0 = 'b0'; k.nb = 1
    k.vmem(f'buffer_load_dwordx4 {v(vWP,4)}, v22, {srd(SX)}, s{sT1} offen', 'srow')
    k.vmem(f'buffer_load_dwordx4 {v(vWP+4,4)}, v22, {srd(SX)}, s{sT1} offen offset:448', 'srow')
    if o.get('pf', 1): prefetch1(k)
    k.stamp(7, 5)
    pend, t1 = batch(k, typ, 1)
    for g in pend[:o.get('pre1', 4)]:
        for it in g: k.emit(it)
    pend = pend[o.get('pre1', 4):]
    k.stamp(1)
    k.wait(t0)
    k('s_barrier')
    k.stamp(2)
    for r in frag_reads(typ, 0, 0, 0): k(r)
    k(f's_and_b32 s3, s2, 1\ns_lshl_b32 s3, s3, 7\ns_cmp_eq_u32 s{sWave}, 0\ns_cselect_b32 s3, s3, {OOB}\nv_or_b32 v{vPA}, s3, v{vF0}')
    k.vmem(f'buffer_atomic_add v{vOne}, v{vPA}, {srd(SDBG)}, 0 offen', 'atom')
    tags = {0: t0, 1: t1}
    cs_pending = []; ctp = 0
    lazy = []
    c0 = -2*math.sqrt(2/math.pi)*math.log2(math.e)
    steps = [(s, ks) for s in range(7) for ks in range(4)] + [(7, 0)]
    order = list(range(5)) if typ == 'KV' else [1, 2, 3, 4, 0]
    for (s, ks) in steps:
        slot = s % 3
        b = (4*s + ks) & 1
        reads = []
        if s < 7:
            if ks == 3:
                if s < 6: reads = frag_reads(typ, b ^ 1, (s+1) % 3, 0)
                else: reads = [f'ds_read_b128 {a(fW(b^1,c),4)}, v{vU0} offset:{c*1024}' for c in order]
            else: reads = frag_reads(typ, b ^ 1, slot, ks+1)
        if s == 0 and ks == 0:
            g2, tags[2] = batch(k, typ, 2)
            g2.append([f's_and_b32 s{sC2}, s{sWave}, 1', f's_lshl_b32 s{sC2}, s{sC2}, 10', f's_add_u32 m0, s{sC2}, {L_PHI}',
                       f's_mul_i32 s{sB}, s{sJ}, 1568', f's_add_u32 s{sB}, s{sB}, s{sC2}', (f'buffer_load_dwordx4 v{vL16}, {srd(SPH)}, s{sB} offen lds', tags[2])])
            pend += g2
        if (s, ks) == tuple(o.get('statat', (1, 0))): lazy += stats_items(k)
        if (s, ks) == (4, 0):
            assert not lazy
            lazy += [f's_add_u32 s3, s{sG2}, s{sNb}', 's_and_b32 s3, s3, 3', 's_lshl_b32 s3, s3, 2', f's_lshr_b32 s{sT0}, 0x32103210, s3', f's_and_b32 s{sT0}, s{sT0}, 0xffff',
                     f's_and_b32 s3, s{sG2}, 3', f's_add_u32 s3, s3, s{sNb}', 's_lshl_b32 s3, s3, 1', 's_lshr_b32 s3, 0x124924, s3', 's_and_b32 s3, s3, 3', 's_lshl_b32 s3, s3, 2',
                     's_lshr_b32 s3, 0x654654, s3', 's_lshl_b32 s3, s3, 16', f's_or_b32 s{sT1}, s{sT0}, s3']
            if not o.get('rot2', 1): lazy = [f's_mov_b32 s{sT1}, 0x6543210']
        if (s, ks) == (5, 0) and typ == 'KV': lazy += kv_addr_items()
        cs_s, w = (s+1, 0) if ks == 3 else (s, ks+1)
        plan = (3,3,2,2)
        if cs_s == 0: plan = (0,4,3,3)
        if cs_s == 6: plan = (5,5,0,0)
        csr = []; newcs = []
        if cs_s <= 6:
            st0 = sum(plan[:w])
            for hI in range(st0, st0 + plan[w]):
                c, j2 = hI >> 1, hI & 1
                va, im = wread(typ, c, cs_s % 3, 0, j2, cs=True)
                tr = vCT + 2*(ctp % 10); ctp += 1
                csr.append(f'ds_read_b64_tr_b16 v[{tr}:{tr+1}], v{va} offset:{im}')
                newcs.append((c, tr))
        valu = []
        for (c, tr) in cs_pending:
            for e in range(2):
                valu += [f'v_lshlrev_b32 v{vU0}, 16, v{tr+e}', f'v_and_b32 v{vU1}, 0xffff0000, v{tr+e}',
                         f'v_add_f32 v{vCS+c}, v{vCS+c}, v{vU0}', f'v_add_f32 v{vCS+c}, v{vCS+c}, v{vU1}']
        cs_pending = newcs
        extra = []
        if (s, ks) == (4, 1):
            csr += [f'ds_read_b64_tr_b16 {pr(vWP+4*s_+2*j2)}, v{vMB} offset:{(16*s_+8*j2)*56}' for s_ in range(2) for j2 in range(2)]
        if (s, ks) == (4, 2):
            extra += [f'v_mov_b32_dpp v{vWP+i}, v{vWP+i} quad_perm:[2,3,2,3] row_mask:0xa bank_mask:0x8' for i in range(8)]
            extra += [f'v_cndmask_b32 v{vWP+i}, v{vWP+i}, 0, s[{sHm}:{sHm+1}]' for i in (6, 7)]
        if (s, ks) == tuple(o.get('pf2at', (1, 1))) and o.get('pf', 1):
            extra.append(lambda: [k.emit(x) for x in prefetch2()])
        if (s, ks) == (6, 2):
            extra += [f's_lshl_b32 s3, s{sWave}, 2', f's_add_u32 s3, s3, {L_CS}', f'v_add_u32 v{vU1}, s3, v{vL16}', f'v_add_u32 v{vU0}, {L_CS}, v{vL16}']
            for c in range(5): extra.append(f'v_cvt_pk_bf16_f32 v{vCT+c}, v{vCS+c}, v{vCS+c}')
            for c in range(5): extra.append(f'v_lshlrev_b32 v{vCT+c}, 16, v{vCT+c}')
            for c in range(5): extra.append(f'v_sub_f32 v{vCT+c}, v{vCS+c}, v{vCT+c}')
            for c in range(5): extra.append(f'v_cvt_pk_bf16_f32 v{vCT+c}, v{vCS+c}, v{vCT+c}')
            for c in range(5): extra.append(f'ds_write_b32 v{vU1}, v{vCT+c} offset:{c*1024}')
        if (s, ks) == (6, 3):
            extra.append(lambda: gate(k, 'L_st', 'stld', ST_LOAD(), f'v_min_u32 v{vU1}, v{vST+1}, v{vST+3}\nv_cmp_eq_u32 vcc, 0, v{vU1}', None))
            for tt in range(2): extra += [f'v_cvt_pk_bf16_f32 v{vMB+4*tt+i}, v{vST+2*tt}, v{vST+2*tt}' for i in range(4)]
        if s == 7:
            extra.append(lambda: k.wait('d0'))
            extra += dreads(0)
            for tt in range(2): extra.append(f'v_rsq_f32 v{vP3+2*tt}, v{vST+2*tt+1}')
            extra.append('s_nop 0')
            for tt in range(2):
                extra += [f'v_mul_f32 v{vU0}, v{vP3+2*tt}, v{vP3+2*tt}', f'v_mul_f32 v{vP2+2*tt}, {hex(f2u(c0))}, v{vP3+2*tt}', f'v_mul_f32 v{vP3+2*tt+1}, {hex(f2u(math.log2(math.e)))}, v{vP3+2*tt}',
                          f'v_mul_f32 v{vU0}, {hex(f2u(0.044715))}, v{vU0}', f'v_mul_f32 v{vP2+2*tt+1}, v{vP2+2*tt}, v{vU0}']
        k('s_waitcnt lgkmcnt(0)')
        mf = []
        for c in (order if s == 7 else range(5)):
            for tt in range(2):
                D = acc(c, tt); C = '0' if (s == 0 and ks == 0) else v(D, 16)
                B = a(fX(b,tt),4) if s < 7 else v(vMB+4*tt, 4)
                mf.append(f'v_mfma_f32_32x32x16_bf16 {v(D,16)}, {a(fW(b,c),4)}, {B}, {C}')
        gaps = [[] for _ in range(10)]
        if ks == 3:
            assert s == 6 or all(g[-1][1] != tags[s+1] for g in pend)
            def bar(s=s):
                if s < 6: k.wait(tags[s+1])
                k('s_barrier')
            gaps[0].append(bar)
            IL = f'buffer_load_dword v{vPoll}, v{vPA}, {srd(SDBG)}, 0 offen sc1'
            if s == 4: gaps[1] += [f'v_lshlrev_b32 v{vPA}, 3, v{vL16}', (IL, 'ipoll')]
            if s == 5:
                def chk():
                    gate(k, 'L_in', 'ipoll', IL, f'v_cmp_gt_u32 vcc, 128, v{vPoll}', 3)
                    k(f'v_bfe_u32 v{vPA}, v{vL16}, 1, 8\ns_lshl_b32 s3, s{sRb}, 2\ns_add_u32 s3, s3, s{sWave}\ns_lshl_b32 s3, s3, 9\ns_add_u32 s{sT2}, s3, {WS_ST}')
                    for l in ST_LOAD().split('\n'): k.vmem(l, 'stld')
                gaps[1].append(chk)
            if s + 3 <= 6:
                g_, tags[s+3] = batch(k, typ, s % 3); pend += g_
            else:
                g_ = dbatch(s - 4)
                if s == 4: g_[0] = [f's_mov_b32 s{sMu}, s{sT1}'] + g_[0]
                pend += g_
        rd = reads + csr
        gi = 1 if ks == 3 else 0
        while rd:
            gaps[gi] += rd[:3]; rd = rd[3:]; gi += 1
        remaining_ks = {3: 4, 0: 3, 1: 2, 2: 1}[ks]
        if (s, ks) == (6, 3): remaining_ks = 2
        if s == 7: remaining_ks = 1
        nd = min(-(-len(pend) // remaining_ks), o.get('rate', 4) if s < 7 else 5)
        pos = {0: [], 1: [5], 2: [3, 7], 3: [2, 5, 8], 4: [2, 4, 6, 8], 5: [1, 3, 5, 7, 9]}[nd]
        for p in pos: gaps[p] += pend.pop(0)
        rest = valu + extra
        cap = o.get('cap', 5)
        nz = max(o.get('lazymin', 8), sum(max(0, cap - len(gp)) for gp in gaps[1:]) - len(rest))
        rest += lazy[:nz]; lazy = lazy[nz:]
        while sum(max(0, cap - len(gp)) for gp in gaps[1:]) < len(rest): cap += 1
        gi = 1
        for it in rest:
            while len(gaps[gi]) >= cap: gi += 1
            gaps[gi].append(it)
        for i in range(10):
            k(mf[i])
            for it in gaps[i]: k.emit(it)
        if ks == 3: k.stamp(3 + s, grp=2)
    assert not pend and not lazy
    k.stamp(3)

def w2_background(k, wo_ok):
    GAP = k.opt.get('gap', 76)
    if k.opt.get('x_nobg'): return
    for i, g in enumerate(dbatch(3)): k.bg.append((GAP, g if i else ['s_waitcnt lgkmcnt(0)'] + g))
    k.lastbg = k.t
    for ci in (1, 2, 3):
        r = dreads(ci)
        k.bg.append((16, [lambda ci=ci: k.wait(f'd{ci}')] + r[:8]))
        k.bg.append((16, r[8:]))
        gs = dbatch(ci + 3)
        gs[0] = ['s_waitcnt lgkmcnt(0)'] + gs[0]
        for g in gs: k.bg.append((GAP, g))
    for i, g in enumerate(obatch()): k.bg.append((GAP, g, wo_ok) if i == 0 else (GAP, g))

def flag_later(k, tag, sreg):
    def fn():
        k.wait(tag)
        k.vmem(f'buffer_store_dword v{vOne}, v{vF0}, {srd(SW)}, s{sreg} offen sc1', 'flag')
        if tag in ('ost', 'kvst'): k.stamp(8, 4)
        else: k.stamp(3, 4)
    k.timed.append((k.t + k.opt.get('drain', 800), fn))

def ffn_unit(k, c, tt, seg):
    A_ = acc(c, tt); P1 = vST + 2*tt; P2 = vP2 + 2*tt; T = vCT
    for i in range(4): k.f(f'v_pk_mul_f32 {pr(T+2*i)}, {pr(A_+2*i)}, {pr(A_+2*i)}')
    for i in range(4): k.f(f'v_pk_fma_f32 {pr(T+2*i)}, {pr(T+2*i)}, {pr(P2)}, {pr(P2)} op_sel:[0,1,0] op_sel_hi:[1,1,0]')
    for i in range(4): k.f(f'v_pk_mul_f32 {pr(T+2*i)}, {pr(A_+2*i)}, {pr(T+2*i)}')
    for i in range(8): k.f(f'v_exp_f32 v{T+i}, v{T+i}')
    for i in range(4): k.f(f'v_pk_mul_f32 {pr(A_+2*i)}, {pr(A_+2*i)}, {pr(A_+8+2*i)}')
    for i in range(4): k.f(f'v_pk_fma_f32 {pr(T+2*i)}, {pr(T+2*i)}, {pr(P1)}, {pr(P1)} op_sel:[0,1,1] op_sel_hi:[1,1,1]')
    for i in range(8): k.f(f'v_rcp_f32 v{T+i}, v{T+i}')
    if tt == 0 and seg == 0: k.f(f's_lshl_b32 s{sC}, s{sKap}, 11\ns_add_u32 s{sC}, s{sC}, s{sHo}')
    elif tt == 0 and seg == 2: k.f(f's_add_u32 s{sC}, s{sC}, 4096')
    for i in range(4): k.f(f'v_pk_mul_f32 {pr(A_+2*i)}, {pr(A_+2*i)}, {pr(T+2*i)}')
    for i in range(4): k.f(f'v_cvt_pk_bf16_f32 v{A_+8+i}, v{A_+2*i}, v{A_+2*i+1}')
    k.vmem(f'buffer_store_dwordx4 {v(A_+8,4)}, v{vL16}, {srd(SW)}, s{sC} offen offset:{(seg&1)*2048+tt*1024} sc1', 'hst')
    k.lastbg = k.t - 30

def ffn_epilogue(k, typ):
    nat = 2 if typ == 'KV' else 1
    for c in range(nat, 5):
        for tt in range(2): ffn_unit(k, c, tt, c - nat)
    flag_later(k, 'hst', sFh)

def pack8(k, src, dst, n=8):
    for i in range(n): k.f(f'v_cvt_pk_bf16_f32 v{dst+i}, v{src+2*i}, v{src+2*i+1}')

def project(k, E):
    for tt in range(2): pack8(k, acc(0, tt), E + 8*tt)
    k('s_nop 1')
    for tt in range(2):
        P = acc(0, tt)
        k(f'v_mfma_f32_32x32x16_bf16 {v(P,16)}, {v(vWP,4)}, {v(E+8*tt,4)}, 0')
        k(f'v_mfma_f32_32x32x16_bf16 {v(P,16)}, {v(vWP+4,4)}, {v(E+8*tt+4,4)}, {v(P,16)}')

def softmaxes(k, M, F, after=None):
    T = [vT, vT + 4]; S = vCT
    R = range(2)
    P = [acc(0, 0), acc(0, 1)]
    for tt in R: k.f(f'v_max3_f32 v{T[tt]}, v{P[tt]}, v{P[tt]+1}, v{P[tt]+2}\nv_min3_f32 v{T[tt]+1}, v{P[tt]}, v{P[tt]+1}, v{P[tt]+2}')
    for i in range(3, 13, 2):
        for tt in R: k.f(f'v_max3_f32 v{T[tt]}, v{T[tt]}, v{P[tt]+i}, v{P[tt]+i+1}\nv_min3_f32 v{T[tt]+1}, v{T[tt]+1}, v{P[tt]+i}, v{P[tt]+i+1}')
    for tt in R: k.f(f'v_max_f32 v{T[tt]}, v{T[tt]}, v{P[tt]+13}\nv_min_f32 v{T[tt]+1}, v{T[tt]+1}, v{P[tt]+13}')
    for tt in R: k.f(f'v_mov_b32 v{T[tt]+2}, v{T[tt]}\nv_mov_b32 v{T[tt]+3}, v{T[tt]+1}')
    k.f('s_nop 0')
    for tt in R: k.f(f'v_permlane32_swap_b32 v{T[tt]}, v{T[tt]+2}\nv_permlane32_swap_b32 v{T[tt]+1}, v{T[tt]+3}')
    for tt in R: k.f(f'v_max_f32 v{T[tt]}, v{T[tt]}, v{T[tt]+2}\nv_min_f32 v{T[tt]+1}, v{T[tt]+1}, v{T[tt]+3}')
    for tt in R: k.f(f'v_pk_mul_f32 {pr(T[tt])}, {pr(T[tt])}, {pr(vP3+2*tt)} op_sel:[0,1] op_sel_hi:[1,1]')
    for tt in R:
        L = pr(vP3 + 2*tt); p = P[tt]; m = M[tt]; t = T[tt]; s_ = S + 4*tt
        for i in range(7): k.f(f'v_pk_fma_f32 {pr(m+2*i)}, {pr(p+2*i)}, {L}, {pr(t)} op_sel:[0,1,1] op_sel_hi:[1,1,1] neg_lo:[1,0,0] neg_hi:[1,0,0]')
        for i in range(7): k.f(f'v_pk_fma_f32 {pr(p+2*i)}, {pr(p+2*i)}, {L}, {pr(t)} op_sel:[0,1,0] op_sel_hi:[1,1,0] neg_lo:[0,0,1] neg_hi:[0,0,1]')
        for i in range(14): k.f(f'v_exp_f32 v{m+i}, v{m+i}')
        for i in range(14): k.f(f'v_exp_f32 v{p+i}, v{p+i}')
        k.f(f'v_pk_add_f32 {pr(s_+2)}, {pr(m)}, {pr(m+2)}\nv_pk_add_f32 {pr(s_)}, {pr(p)}, {pr(p+2)}')
        for i in range(2, 7): k.f(f'v_pk_add_f32 {pr(s_+2)}, {pr(s_+2)}, {pr(m+2*i)}\nv_pk_add_f32 {pr(s_)}, {pr(s_)}, {pr(p+2*i)}')
        k.f(f'v_add_f32 v{t+1}, v{s_+2}, v{s_+3}\nv_add_f32 v{t}, v{s_}, v{s_+1}\nv_add_f32 v{t+3}, v{s_+2}, v{s_+3}\nv_add_f32 v{t+2}, v{s_}, v{s_+1}')
        k.f(f's_waitcnt lgkmcnt(0)\nv_mov_b32 v{F[tt]+7}, 0')
        k.f(f'v_permlane32_swap_b32 v{t+1}, v{t+3}\nv_permlane32_swap_b32 v{t}, v{t+2}')
        k.f(f'v_pk_add_f32 {pr(t)}, {pr(t)}, {pr(t+2)}\nv_rcp_f32 v{t}, v{t}\nv_rcp_f32 v{t+1}, v{t+1}\nv_mov_b32 v{F[tt]+15}, 0')
        for i in range(7): k.f(f'v_pk_mul_f32 {pr(p+2*i)}, {pr(p+2*i)}, {pr(t)} op_sel_hi:[1,0]')
        for i in range(7): k.f(f'v_pk_mul_f32 {pr(m+2*i)}, {pr(m+2*i)}, {pr(t)} op_sel:[0,1] op_sel_hi:[1,1]')
        pack8(k, p, F[tt], 7); pack8(k, m, F[tt]+8, 7)
        if after: after(tt)

def kv_part(k):
    E = 192
    project(k, E)
    V = 168
    for tt in range(2):
        A_ = acc(1, tt)
        for i in range(16): k.f(f'v_mul_f32 v{A_+i}, v{A_+i}, v{vP3+2*tt}')
        k.f(f'v_cndmask_b32 v{A_+12}, v{A_+12}, 1.0, s[{sHm}:{sHm+1}]')
        k.f(f'v_cndmask_b32 v{A_+13}, v{A_+13}, 0, s[{sHm}:{sHm+1}]')
        pack8(k, A_, V + 8*tt)
        k.f(f'v_cndmask_b32 v{V+8*tt+7}, v{V+8*tt+7}, 0, s[{sHm}:{sHm+1}]')
        for q in range(2): k.f(f'ds_write_b128 v{vS0}, {v(V+8*tt+4*q,4)} offset:{tt*32*SP+128+16*q}')
    k.stamp(4, 3)
    def wr(tt):
        for sec in range(2):
            for q in range(2): k.f(f'ds_write_b128 v{vS0}, {v(168+8*sec+4*q,4)} offset:{tt*32*SP+64*sec+16*q}')
    softmaxes(k, [acc(1, 0), acc(1, 1)], [168, 168], after=wr)
    k.stamp(5, 3)
    k(f's_lshl_b32 s3, s{sJ}, 3\ns_add_u32 s3, s3, s{sRb}\ns_lshl_b32 s3, s3, 2\ns_add_u32 s3, s3, s{sWave}\ns_lshl_b32 s3, s3, 11\ns_add_u32 s{sC}, s3, {WS_KVP}')
    k('s_waitcnt lgkmcnt(0)\ns_barrier')
    k.stamp(6, 3)
    D = 208
    D = 204
    def rd(kk):
        base = 12*(kk % 5)
        for j2 in range(2):
            im = (32*kk + 2*j2)*SP
            k(f'ds_read_b64_tr_b16 {pr(base+2*j2)}, v{vS0+1} offset:{im}')
            for dt in range(2): k(f'ds_read_b64_tr_b16 {pr(base+4+4*dt+2*j2)}, v{vS0+2} offset:{im+128+16*dt}')
    rd(0); rd(1)
    for kk in range(8):
        if kk + 2 < 8: rd(kk + 2)
        k(f's_waitcnt lgkmcnt({min(12, 6*(7-kk))})')
        base = 12*(kk % 5)
        for dt in range(2):
            k(f'v_mfma_f32_16x16x32_bf16 {v(D+4*dt,4)}, {v(base,4)}, {v(base+4+4*dt,4)}, {"0" if kk == 0 else v(D+4*dt,4)}')
    k('s_barrier\ns_nop 6')
    k.scratch_free = True
    for dt in range(2): k.vmem(f'buffer_store_dwordx4 {v(D+4*dt,4)}, v{vS0+3}, {srd(SW)}, s{sC} offen offset:{256*dt} sc1', 'kvst')
    flag_later(k, 'kvst', sF2)

QF = [128, 144]
def q_part(k):
    project(k, 96)
    phase2_setup(k)
    k.f('s_nop 1')
    softmaxes(k, [64, 80], QF)

AC = 0; HB = 64
vOUT, vPK = 168, 169
vOA = 170
vRW, vRR = 174, 175
vKW, vKR = 177, 178
XR = 180
vPoll2, vPoll1, vPB = 188, 189, 190
vSum = 192
vN = 204
aOF, aKF = 224, 240

def phase2_setup(k):
    T = vT + 8
    k(f's_load_dwordx2 s[{SOUT}:{SOUT+1}], s[0:1], 64\ns_mov_b32 s{SOUT+2}, {2048*896}')
    k.f(f'''v_lshrrev_b32 v{T}, 7, v{vL16}
    v_mul_u32_u24 v{vOUT}, 896, v{T}
    v_and_b32 v{T+1}, 0x70, v{vL16}
    v_add_u32 v{vOUT}, v{vOUT}, v{T+1}
    v_mul_u32_u24 v{vRR}, {RP}, v{T}
    v_lshl_add_u32 v{vRR}, v{T+1}, 1, v{vRR}
    s_mul_i32 s3, s{sWave}, {16*RP}
    v_add_u32 v{vRR}, s3, v{vRR}
    v_add_u32 v{vRR+1}, {2*XW}, v{vRR}
    v_bfe_u32 v{T}, v{vL16}, 4, 5
    v_mul_u32_u24 v{vRW}, {RP}, v{T}
    v_lshrrev_b32 v{T}, 9, v{vL16}
    v_lshl_add_u32 v{vRW}, v{T}, 4, v{vRW}
    v_add_u32 v{vRW}, s{sMx}, v{vRW}
    s_mul_i32 s3, s{sWave}, {14*1024 - XW}
    s_add_u32 s3, s3, {WB}
    v_add_u32 v{vOA}, s3, v{vDA}
    v_add_u32 v{vOA+1}, s3, v{vDA+1}
    v_and_b32 v{T}, 0x200, v{vL16}
    v_sub_u32 v{vOA+2}, v{vOA}, v{T}
    v_sub_u32 v{vOA+3}, v{vOA+1}, v{T}
    v_cmp_gt_u32 vcc, {16*4}, v{vL16}
    v_lshlrev_b32 v{T}, 3, v{vL16}
    v_mov_b32 v{T+1}, {OOB}
    v_cndmask_b32 v{vPB}, v{T+1}, v{T}, vcc
    v_cmp_gt_u32 vcc, {16*8}, v{vL16}
    v_add_u32 v{vKR}, {KVF_OFF}, v{vL16}
    v_add_u32 v{vKR+1}, {2*XW}, v{vKR}
    v_add_u32 v{vKW}, s{sMx}, v{vKR}
    v_cndmask_b32 v{vPK}, v{T+1}, v{T}, vcc
    s_lshl_b32 s3, s{sG2}, 2
    s_add_u32 s3, s3, s{sWave}
    s_lshl_b32 s{sT1}, s3, 11
    s_add_u32 s{sT1}, s{sT1}, {WS_FL}
    s_mul_i32 s{sB}, s3, {16*896}
    s_lshl_b32 s3, s{sNb}, 7
    s_add_u32 s{sB}, s{sB}, s3
    s_add_u32 s{sB2}, s{sB}, {8*896}
    s_lshl_b32 s3, s{sJ}, 2
    s_add_u32 s3, s3, s{sWave}
    s_lshl_b32 s{sT2}, s3, 10
    s_add_u32 s{sT2}, s{sT2}, {WS_KF}''')

def o_steps(k):
    T = vT
    st = []
    st.append((0, [lambda: k.stamp(5, 4)] + [f'v_cvt_pk_bf16_f32 v{vSum+8+i}, v{vSum+2*i}, v{vSum+2*i+1}' for i in range(4)] + [f'ds_write_b128 v{vKW}, {v(vSum+8,4)}']))
    st.append((2, ['s_waitcnt lgkmcnt(0)', 's_barrier', lambda: k.stamp(6, 4)] + [f'ds_read_b128 {a(aKF+4*s_,4)}, v{vKR+(s_>>1)} offset:{(s_&1)*XW}' for s_ in range(4)]))
    mm = [f'v_mfma_f32_32x32x16_bf16 {v(vN+16*tt,16)}, {a(aKF+4*s_,4)}, {v(QF[tt]+4*s_,4)}, {"0" if s_ == 0 else v(vN+16*tt,16)}' for tt in range(2) for s_ in range(4)]
    st.append((3, ['s_waitcnt lgkmcnt(0)\n' + '\n'.join(mm), f's_lshl_b32 s{sC2}, s{sJ}, 12', f's_add_u32 s{sC2}, s{sC2}, s{sHo}', f's_add_u32 s{sC2}, s{sC2}, {112*2048}', 's_nop 4']))
    fin = []
    for tt in range(2):
        N = vN + 16*tt
        fin += [f'v_mov_b32 v{T}, v{N+12}', f'v_mov_b32 v{T+1}, v{N+12}', f'v_cndmask_b32 v{N+12}, v{N+12}, 0, s[{sHm}:{sHm+1}]', 's_nop 0', f'v_permlane32_swap_b32 v{T}, v{T+1}',
                f'v_add_f32 v{T}, {hex(f2u(1e-6))}, v{T+1}', f'v_rcp_f32 v{T}, v{T}', 's_nop 0']
        fin += [f'v_mul_f32 v{N+i}, v{N+i}, v{T}' for i in range(16)]
        fin += [f'v_cvt_pk_bf16_f32 v{N+i}, v{N+2*i}, v{N+2*i+1}' for i in range(8)]
        fin += [(f'buffer_store_dwordx4 {v(N+4*s_,4)}, v{vL16}, {srd(SW)}, s{sC2} offen offset:{2048*s_+1024*tt} sc1', 'ost') for s_ in range(2)]
    fin.append(lambda: (k.stamp(7, 4), flag_later(k, 'ost', sF2)))
    st.append((1, fin))
    return st

FL_LOAD = lambda i: f'buffer_load_dword v{vPoll1}, v{vPB}, {srd(SW)}, s{sT1} offen offset:{512*i} sc1'
KF_LOAD = f'buffer_load_dword v{vPoll2}, v{vPK}, {srd(SW)}, s{sT2} offen sc1'

def o_only(k):
    spin(k, 'L_kq', KF_LOAD, f'v_cmp_eq_u32 vcc, 0, v{vPoll2}', 0xff)
    k.vm = []
    k(f's_lshl_b32 s3, s{sJ}, 5\ns_add_u32 s3, s3, s{sWave}\ns_lshl_b32 s3, s3, 11\ns_add_u32 s{sC2}, s3, {WS_KVP}')
    for rb in range(8):
        for q in range(2): k.vmem(f'buffer_load_dwordx4 {v((8*rb if rb else vSum)+4*q,4)}, v{vL16}, {srd(SW)}, s{sC2} offen offset:{1024*q} sc1', f'kv{rb}')
        if rb < 7: k(f's_add_u32 s{sC2}, s{sC2}, 8192')
    for rb in range(1, 8):
        k.wait(f'kv{rb}')
        for i in range(4): k(f'v_pk_add_f32 {pr(vSum+2*i)}, {pr(vSum+2*i)}, {pr(8*rb+2*i)}')
    for d, items in o_steps(k):
        if d == 1: k('s_nop 7')
        for it in items: k.emit(it)
    k.flush_bg()

def phase2(k, typ):
    o = k.opt
    Lend = f'L_end{typ}'
    k.flush_bg(timed=False)
    if typ == 'Q':
        L = k.A.label('L_p2')
        k(f's_cmp_lg_u32 s{sNb}, 7\ns_cbranch_scc1 {L}')
        sv = (list(k.vm), list(k.timed), k.t)
        k.flush_bg()
        k('s_waitcnt vmcnt(0)')
        o_only(k)
        k(f's_branch {Lend}\n{L}:')
        k.vm, k.timed, k.t = sv
    NQ = 16 if typ == 'Q' else 24
    DEPTH = o.get('depth', 7)
    SAMP = o.get('samp', DEPTH)
    assert 2*(DEPTH + 1) <= NQ
    k.vmem(f'buffer_load_dwordx4 {v(XR,4)}, v{vOUT}, {srd(SX)}, s{sB} offen', 'xr')
    k.vmem(f'buffer_load_dwordx4 {v(XR+4,4)}, v{vOUT}, {srd(SX)}, s{sB2} offen', 'xr')
    k.flush_bg()
    k.stamp(5)
    spin(k, 'L_hp', FL_LOAD(0), f'v_cmp_eq_u32 vcc, 0, v{vPoll1}', 0xf)
    k.vm = []
    k.stamp(6)
    k(f's_mul_i32 s{sC}, s{sG2}, {144*2048}\ns_mul_i32 s3, s{sWave}, {28*2048}\ns_add_u32 s{sA2}, s{sC}, s3')
    k(f's_lshl_b32 s3, s{sWave}, 14\ns_add_u32 s{sC}, s{sC}, s3\ns_add_u32 s{sC}, s{sC}, {112*2048}')
    ent = [('h', i) for i in range(36)]
    if typ == 'Q':
        P = o.get('kvpos', 4)
        for rb in range(8): ent.insert(P + (2 if o.get('kvint', 0) else 1)*rb, ('kv', rb))
        k(f's_lshl_b32 s3, s{sJ}, 5\ns_add_u32 s3, s3, s{sWave}\ns_lshl_b32 s3, s3, 11\ns_add_u32 s{sC2}, s3, {WS_KVP}')
    gates = {ent.index(('h', 16)): ('L_g1', FL_LOAD(1), vPoll1, 0xf), ent.index(('h', 28)): ('L_g2', FL_LOAD(2), vPoll1, 0xf)}
    if typ == 'Q': gates[ent.index(('kv', 0))] = ('L_g3', KF_LOAD, vPoll2, 0xff)
    samples = {}
    for gi, g in gates.items(): samples.setdefault(max(0, gi - SAMP), []).append(gi)
    def load(e, half):
        kind, i = ent[e]
        if half == 0:
            for gi in samples.get(e, []): k.vmem(gates[gi][1], f'smp{gi}')
            if e in gates:
                nm, ld, reg, mask = gates[e]
                if (kind, i) == ('h', 28):
                    assert typ == 'KV' or done_kv[0]
                    while fill:
                        it = fill.popleft()
                        if not isinstance(it, int): k.emit(it)
                    k.flush_bg()
                gate(k, nm, f'smp{e}', ld, f'v_cmp_eq_u32 vcc, 0, v{reg}', mask)
                if kind == 'h':
                    k.stamp(7 if i == 16 else 8)
                    if i == 28: k.stamp(9, 4)
                else: k.stamp(4, 4)
            if kind == 'h':
                if i == 28: k(f's_mov_b32 s{sA}, s{sC}')
                elif i < 28 and i % 4 == 0: k(f's_bfe_u32 s{sA}, s{sMu}, {hex(0x40000 + i)}\ns_lshl_b32 s{sA}, s{sA}, 13\ns_add_u32 s{sA}, s{sA}, s{sA2}')
                elif i % 2 == 0: k(f's_add_u32 s{sA}, s{sA}, 4096')
            elif i: k(f's_add_u32 s{sC2}, s{sC2}, 8192')
        r = HB + 4*((2*e + half) % NQ)
        if kind == 'h': k.vmem(f'buffer_load_dwordx4 {v(r,4)}, v{vL16}, {srd(SW)}, s{sA} offen offset:{(i&1)*2048 + half*1024} sc1', f'e{e}')
        else: k.vmem(f'buffer_load_dwordx4 {v(r,4)}, v{vL16}, {srd(SW)}, s{sC2} offen offset:{half*1024} sc1', f'e{e}')
    def oreads(ko):
        jj, s_ = ko >> 1, ko & 1; r = []
        for n in range(2):
            for j2 in range(2):
                va = vOA + n + (2 if (s_ == 1 and j2 == 1) else 0)
                d = aOF + 8*(ko & 1) + 4*n + 2*j2
                r.append(f'ds_read_b64_tr_b16 a[{d}:{d+1}], v{va} offset:{(28*jj + 16*s_ + 8*j2)*128}')
        return r
    fill = deque(); hold = 0; done_kv = [False]
    nxt = 0
    def more(upto):
        nonlocal nxt
        while nxt < min(upto, 2*len(ent)):
            load(nxt >> 1, nxt & 1); nxt += 1
    more(2*DEPTH)
    for ci in (4, 5, 6):
        for r in dreads(ci): k(r)
    def drain_fill(n):
        nonlocal hold
        while fill and n > 0:
            if isinstance(fill[0], int):
                if hold < fill[0]: return
                fill.popleft(); continue
            it = fill.popleft(); k.emit(it); n -= 1; hold = 0
    for e, (kind, i) in enumerate(ent):
        r0 = HB + 4*((2*e) % NQ); r1 = HB + 4*((2*e + 1) % NQ)
        if kind == 'kv':
            k.wait(f'e{e}')
            adds = [(f'v_mov_b32 v{vSum+x}, v{(r0 if x < 4 else r1-4)+x}' if i == 0 else f'v_add_f32 v{vSum+x}, v{vSum+x}, v{(r0 if x < 4 else r1-4)+x}') for x in range(8)]
            for x in adds: k(x)
            if i == 7:
                for d, items in o_steps(k):
                    fill.append(d); fill.extend(items)
                hold = 0; done_kv[0] = True
            more(2*(e + DEPTH) + 2)
            if i == 7 and o.get('oblock'):
                while fill:
                    it = fill.popleft()
                    if not isinstance(it, int): k.emit(it)
            continue
        if i == 27:
            for r in oreads(0): k(r)
        k.wait(f'e{e}', extra='lgkmcnt(0)' if (i >= 28 or i == 0) else '')
        cnt = 0
        for tt in range(2):
            for n in range(2):
                D = AC + 32*n + 16*tt
                Af = a(8*i + 4*n, 4) if i < 28 else a(aOF + 8*((i-28) & 1) + 4*n, 4)
                k(f'v_mfma_f32_32x32x16_bf16 {v(D,16)}, {Af}, {v((r0, r1)[tt],4)}, {"0" if i == 0 else v(D,16)}')
                hold += 1
                if cnt == 0 and 28 <= i < 35:
                    for r in oreads(i - 27): k(r)
                if cnt == 1: more(2*(e + DEPTH) + 1)
                if cnt == 3: more(2*(e + DEPTH) + 2)
                drain_fill(5)
                k.tick()
                cnt += 1
    assert not fill and not k.timed, (len(fill), k.timed)
    k.stamp(9)
    k.wait('xr')
    for i in range(8): k(f'v_lshlrev_b32 v{128+2*i}, 16, v{XR+i}\nv_and_b32 v{128+2*i+1}, 0xffff0000, v{XR+i}')
    for tt in range(2):
        for n in range(2):
            for q in range(4): k(f'ds_write_b128 v{vRW}, {v(AC+32*n+16*tt+4*q,4)} offset:{tt*32*RP + n*128 + q*32}')
    k('s_waitcnt lgkmcnt(0)\ns_barrier')
    for it in range(2):
        for w in range(4):
            for hf in range(2):
                k(f'ds_read_b128 {v(64+32*it+8*w+4*hf,4)}, v{vRR+(w>>1)} offset:{(w&1)*XW + it*8*RP + 16*hf}')
    for it in range(2):
        for w in range(4):
            k(f's_waitcnt lgkmcnt({8*(1-it) + 2*(3-w)})')
            for i in range(4): k(f'v_pk_add_f32 {pr(128+8*it+2*i)}, {pr(128+8*it+2*i)}, {pr(64+32*it+8*w+2*i)}')
        for i in range(4): k(f'v_cvt_pk_bf16_f32 v{16+4*it+i}, v{128+8*it+2*i}, v{128+8*it+2*i+1}')
        k.vmem(f'buffer_store_dwordx4 {v(16+4*it,4)}, v{vOUT}, {srd(SOUT)}, s{sB2 if it else sB} offen {o.get("outfl", "")}', 'out')
    k(f'{Lend}:')
    if o.get('probe'):
        k.stamp(10)
        k('s_waitcnt lgkmcnt(0)')
        if o['probe'][2] == 'rt': k('s_cmp_eq_u32 s98, 0\ns_cselect_b32 s98, s100, s98\ns_sub_u32 s98, s98, s100\ns_lshl_b32 s98, s98, 1')
        else: k('s_cmp_eq_u32 s98, 0\ns_cselect_b32 s98, s96, s98\ns_sub_u32 s98, s98, s96\ns_lshr_b32 s98, s98, 3')
        k(f's_add_u32 s98, s98, 3000\n{Lend}f:\ns_memrealtime s[{sC}:{sC+1}]\ns_waitcnt lgkmcnt(0)\ns_sub_u32 s3, s{sC}, s100\ns_cmp_lt_u32 s3, s98\ns_cbranch_scc1 {Lend}f')
    if o.get('fixdur'):
        k(f'{Lend}f:\ns_memrealtime s[{sC}:{sC+1}]\ns_waitcnt lgkmcnt(0)\ns_sub_u32 s3, s{sC}, s100\ns_cmp_lt_u32 s3, {o["fixdur"]}\ns_cbranch_scc1 {Lend}f')
    if o.get('stamps'):
        k(f's_memtime s[{sA}:{sA+1}]\ns_memrealtime s[{sC}:{sC+1}]\ns_waitcnt lgkmcnt(0)')
        k(f's_lshl_b32 s3, s2, 2\ns_add_u32 s3, s3, s{sWave}\ns_lshl_b32 s3, s3, 6\ns_add_u32 s3, s3, {WS_STAMP}\nv_mov_b32 v40, s3\ns_mov_b64 exec, 1')
        k(f'v_mov_b32 v24, s100\nv_mov_b32 v25, s{sC}')
        for i in range(1, 10): k(f's_sub_u32 s3, s{STAMP0+2*i}, s{STAMP0}\nv_mov_b32 v{25+i}, s3')
        k(f's_sub_u32 s3, s{sA}, s{STAMP0}\nv_mov_b32 v35, s3')
        for q in range(3): k(f'buffer_store_dwordx4 {v(24+4*q,4)}, v40, {srd(SW)}, 0 offen offset:{16*q}')
    k('s_endpgm')

def body(k, typ):
    k.vm = list(k.vm0); k.bg = deque(); k.timed = []
    main_loop(k, typ)
    k.scratch_free = (typ == 'Q')
    w2_background(k, lambda: k.scratch_free)
    k.stamp(3, 3)
    if typ == 'Q':
        k('s_nop 3')
        ffn_epilogue(k, typ)
        k.stamp(4); k.stamp(4, 3)
        q_part(k)
        k.stamp(5, 3)
    else:
        k('s_nop 3')
        kv_part(k)
        k.stamp(7, 3)
        ffn_epilogue(k, typ)
        k.stamp(4); k.stamp(8, 3)
        phase2_setup(k)
    phase2(k, typ)

def generate(opt):
    k = K(opt); name = NAME + '_kernel'
    kernel_begin(k.A, name)
    prologue(k)
    k.vm0 = list(k.vm)
    body(k, 'KV')
    k('L_typeQ:')
    body(k, 'Q')
    k('L_codeend:')
    return assemble_file([(name, 256, 256, NLDS)], k.A.text(), [kernel_desc(name, 512, accum=256)])

if __name__ == '__main__':
    import json, hazard
    opt = json.loads(sys.argv[2]) if len(sys.argv) > 2 else {}
    txt = generate(opt)
    open(sys.argv[1], 'w').write(txt)
    e = hazard.check(txt)
    print(len(txt), 'bytes of text;', len(e), 'hazards')
```

```python
import sys, struct, math
from collections import deque
from asmgen import *

def f2u(x): return struct.unpack('<I', struct.pack('<f', x))[0]

WS_H    = 0
WS_KVP  = 10 << 20
WS_ST   = 12 << 20
WS_FL   = WS_ST + 32768
WS_KF   = WS_FL + 262144
WS_CS   = WS_KF + 65536
WS_STAMP = 128 << 20
OOB = 0x40000000
XW = 24576
WB = 98304; WS_ = 20736
L_KVF = WB + 57344
L_PHI = 163840 - 2048
SP = 208
RP = 272
NLDS = 163840

sA, sA2, sB, sB2, sC, sC2 = 4, 5, 6, 7, 8, 9
sMx, sMa, sMf = 10, 11, 12
sT0, sT1, sT2 = 13, 14, 15
sL = 16
sHm = 18
sG2, sNb, sDb, sHo = 20, 21, 22, 23
sSpin, sKap, sWave, sRb = 24, 25, 26, 27
SX, SQ, SG, SU, SD, SO, SW, SOUT, SDBG, SPH, SGU = 28, 32, 36, 40, 44, 48, 52, 56, 60, 64, 68
sG, sU, sJ, sCg, sSt, sXb, sQb, sFb = 72, 73, 74, 75, 76, 77, 78, 79
sFh, sF2 = 16, 17
sP = 9
sWo, sWg = 72, 73
sH, sH0, sOb, sKb, sKc = 77, 78, 79, 11, 12
sMu = 76
STAMP0 = 80

def srd(n): return f's[{n}:{n+3}]'
def pr(r): return f'v[{r}:{r+1}]'

TRANS = ('v_exp_f32', 'v_rcp_f32', 'v_rsq_f32')
def cost(line):
    op = line.split()[0]
    if op.endswith(':') or op.startswith('.') or op.startswith(';'): return 0
    if op.startswith('v_mfma'): return 32 if '32x32' in op else 16
    if op in TRANS: return 8
    if op == 's_nop': return 4*(int(line.split()[1]) + 1)
    if op == 'ds_write_b128': return 16
    return 4

class K:
    def __init__(self, opt):
        self.A = Asm(); self.vm = []; self.opt = opt
        self.t = 0; self.credit = 0; self.tail = []
        self.reset_bg()
    def reset_bg(self):
        self.bg = deque(); self.bg2 = deque(); self.timed = []; self.lastbg = -10**9; self.inbg = False; self.done = {}
    def raw(self, t):
        for l in t.strip('\n').split('\n'):
            l = l.strip()
            if not l: continue
            self.A(l); c = cost(l)
            if l.startswith('v_mfma'): self.t += c; self.credit = c - 8
            else:
                u = min(c, self.credit); self.credit -= u; self.t += c - u
    def __call__(self, t): self.raw(t)
    def f(self, t):
        for l in t.strip('\n').split('\n'):
            l = l.strip()
            if l: self.raw(l); self.tick()
    def run_timed(self, force=None):
        for it in [x for x in self.timed if x[0] <= self.t or force == 'all' or x[2] == force]:
            self.timed.remove(it); it[1]()
    def pop_bg(self, q):
        g = q.popleft()
        for it in g[1]: self.emit(it)
        self.lastbg = self.t
    def tick(self):
        if self.inbg: return
        self.inbg = True
        self.run_timed()
        for q in (self.bg, self.bg2):
            if q and q[0][2]():
                if self.t - self.lastbg >= q[0][0]: self.pop_bg(q)
                break
        self.inbg = False
    def force(self, key):
        self.inbg = True
        while key not in self.done:
            self.pop_bg(self.bg2 if key == 'wo' else self.bg)
        self.inbg = False
    def mark(self, key): return lambda: self.done.__setitem__(key, self.t)
    def vmem(self, t, tag):
        for key, srds in (('ntw', (SQ, SG, SU, SGU)), ('ntx', (SX,)), ('ntd', (SD, SO))):
            if self.opt.get(key) and t.startswith('buffer_load') and any(srd(n) in t for n in srds):
                t = t.replace(' lds', ' nt lds') if t.endswith(' lds') else t + ' nt'
        self.raw(t); self.vm.append(tag)
    def wait(self, *tags, extra=''):
        last = max((i for i, x in enumerate(self.vm) if x in tags), default=None)
        if last is None:
            if extra: self.raw(f's_waitcnt {extra}')
            return
        n = len(self.vm) - 1 - last
        assert n <= 63, n
        self.raw(f's_waitcnt vmcnt({n}) {extra}')
        self.vm = self.vm[len(self.vm)-n:] if n else []
    def stamp(self, i, grp=1):
        pb = self.opt.get('probe')
        if pb:
            if i == 0: self.A('s_memtime s[96:97]\ns_mov_b32 s98, 0')
            if [i, grp] == pb[:2]: self.A('s_memrealtime s[98:99]' if pb[2] == 'rt' else 's_memtime s[98:99]')
        if self.opt.get('stamps') and (i <= 2 or self.opt.get('stamps') == grp): self.A(f'{"s_memrealtime" if self.opt.get("rt") else "s_memtime"} s[{STAMP0+2*i}:{STAMP0+2*i+1}]')
    def emit(self, item):
        if callable(item): item()
        elif isinstance(item, tuple): self.vmem(*item)
        else: self.raw(item)

vXP, vDP, vXA = 160, 164, 168
vAP, vAA = 172, 173
vFP, vFA = 175, 178
vCA = 182
vZ = 184
vL16 = 191
vCT = 192
vU0, vU1 = 212, 213
vST = 214
vP2 = 218
vP3 = 222
vPoll, vPA = 226, 227
vWP = 228
vDA = 236
vF0, vOne = 238, 239
vT = 240
vJ = 252
vMB = 240
vS0 = 248
aFB = 200

def acc(c, tt): return 32*c + 16*tt
def fX(b, tt): return aFB + 28*b + 4*tt
def fW(b, c): return aFB + 28*b + 8 + 4*c

def spin(k, name, load, cmp_, mask):
    L = k.A.label(name)
    k(f's_mov_b32 s{sSpin}, 0\n{L}:\n{load}\ns_add_u32 s{sSpin}, s{sSpin}, 1\ns_waitcnt vmcnt(0)\n{cmp_}')
    if mask is None: k(f's_cbranch_vccz {L}_x')
    else: k(f's_and_b32 s3, vcc_lo, {mask}\ns_cbranch_scc0 {L}_x')
    if k.opt.get('sleep'): k(f's_sleep {k.opt["sleep"]}')
    k(f's_cmp_lt_u32 s{sSpin}, {k.opt.get("spin", 200000)}\ns_cbranch_scc1 {L}\n{L}_x:')

def gate(k, name, tag, load, cmp_, mask):
    k.wait(tag)
    L = k.A.label(name)
    k(cmp_)
    if mask is None: k(f's_cbranch_vccz {L}')
    else: k(f's_and_b32 s3, vcc_lo, {mask}\ns_cbranch_scc0 {L}')
    t = k.t
    spin(k, name + 's', load, cmp_, mask)
    k.t = t
    k(f'{L}:')

def iftype(k, fkv, fq):
    L = k.A.label('L_ty')
    k(f's_bitcmp1_b32 s{sU}, 0\ns_cbranch_scc1 {L}q')
    sv = (list(k.vm), k.t, k.nb)
    fkv()
    n = len(k.vm)
    k(f's_branch {L}j\n{L}q:')
    k.vm, k.t, k.nb = sv
    fq()
    assert len(k.vm) == n
    k(f'{L}j:')

def items(t): return [x.strip().replace('|', '\n') for x in t.strip().split('\n')]

def prologue(k):
    o = k.opt
    k.nb = 0
    k(f's_cmp_lt_u32 s2, 256\ns_cbranch_scc1 L_go\ns_endpgm\nL_go:')
    k.stamp(0)
    if o.get('stamps') or o.get('fixdur') or o.get('probe'): k('s_memrealtime s[100:101]')
    for n, off in ((SX, 0), (SQ, 8), (SG, 40), (SU, 48)): k(f's_load_dwordx2 s[{n}:{n+1}], s[0:1], {off}')
    k(f'v_lshrrev_b32 v1, 6, v0\ns_getpc_b64 s[20:21]\nL_pc:\nv_readfirstlane_b32 s{sWave}, v1')
    k(f's_lshr_b32 s{sCg}, s2, 3\nv_lshrrev_b32 v2, 4, v0\nv_lshl_add_u32 v2, v2, 5, s{sCg}\nv_lshlrev_b32 v2, 7, v2\nv_min_u32 v2, L_codeend-L_pc-4, v2')
    k(f's_mov_b32 exec_lo, 0x10001\ns_mov_b32 exec_hi, 0x10001')
    k.vmem(f'global_load_dword v{vJ}, v2, s[20:21]', 'pf')
    k('s_mov_b64 exec, -1')
    for n, off in ((SW, 80), (SD, 56), (SO, 24), (SDBG, 72), (SPH, 16), (SOUT, 64)): k(f's_load_dwordx2 s[{n}:{n+1}], s[0:1], {off}')
    k(f'v_and_b32 v0, 63, v0\ns_and_b32 s{sG}, s2, 3')
    k(f's_and_b32 s{sRb}, s{sCg}, 3\ns_and_b32 s3, s2, 4\ns_or_b32 s{sRb}, s{sRb}, s3\ns_lshr_b32 s{sU}, s{sCg}, 2')
    k(f's_cmp_eq_u32 s{sRb}, 7\ns_cselect_b32 s{sSt}, 0, s{sRb}')
    k(f'''v_lshrrev_b32 v1, 3, v0
    v_and_b32 v2, 7, v0
    v_mul_u32_u24 v3, 896, v1
    v_lshrrev_b32 v4, 1, v1
    v_xor_b32 v5, v2, v4
    v_lshl_add_u32 v{vXP}, v5, 4, v3
    v_xor_b32 v5, 4, v5
    v_lshl_add_u32 v{vXP+1}, v5, 4, v3
    v_add_u32 v{vXP+1}, 6144, v{vXP+1}
    v_add_u32 v{vXP+2}, {2*6144}, v{vXP}
    v_add_u32 v{vXP+3}, {2*6144}, v{vXP+1}''')
    k(f's_lshl_b32 s{sHo}, s{sRb}, 2\ns_add_u32 s{sHo}, s{sHo}, s{sWave}\ns_mul_i32 s{sXb}, s{sHo}, {64*896}')
    k(f's_mov_b32 s{SX+2}, {2048*896}\ns_mov_b32 s{SX+3}, 0x20000\ns_mul_i32 s{sMx}, s{sWave}, {XW}')
    rest = items(f'''s_lshr_b32 s{sJ}, s{sU}, 1|s_lshl_b32 s3, s{sG}, 2|s_or_b32 s{sJ}, s{sJ}, s3
    s_lshl_b32 s{sCg}, s{sG}, 3|s_or_b32 s{sCg}, s{sCg}, s{sU}
    v_lshrrev_b32 v6, 2, v0|v_and_b32 v14, 3, v0|v_mul_u32_u24 v6, 2688, v6
    v_lshlrev_b32 v8, 4, v14|v_min_u32 v8, 40, v8|v_add_u32 v{vAP}, v6, v8
    s_mul_i32 s{sQb}, s{sWave}, {16*2688}|s_mul_i32 s3, s{sJ}, 56|s_add_u32 s{sQb}, s{sQb}, s3
    s_mov_b32 s{SQ+2}, {448*2688}|s_mov_b32 s{SQ+3}, 0x20000|s_mov_b32 s{SG+2}, {448*3584}|s_mov_b32 s{SG+3}, 0x20000
    s_mov_b32 s{SU+2}, {448*3584}|s_mov_b32 s{SU+3}, 0x20000|s_mov_b32 s{SGU+2}, {448*3584}|s_mov_b32 s{SGU+3}, 0x20000
    s_lshl_b32 s{sMa}, s{sWave}, 10|s_add_u32 s{sMa}, s{sMa}, {WB}|s_mul_i32 s{sKap}, s{sG}, 28|v_lshlrev_b32 v{vL16}, 4, v0''')
    npre = o.get('npre', 4)
    for x in rest[:npre]: k(x)
    rest = rest[npre:]
    k('s_waitcnt lgkmcnt(0)')
    k.stamp(3, 5)
    for g in batch(k, 'Q', 0, first=True)[0][5:]:
        for it in g: k.emit(it)
        if rest: k(rest.pop(0))
    assert not rest
    k.nb = 0
    k(f's_cmp_lt_u32 s{sWave}, 2\ns_cselect_b32 s{SGU}, s{SG}, s{SU}\ns_cselect_b32 s{SGU+1}, s{SG+1}, s{SU+1}')
    k.stamp(4, 5)
    def w0(typ):
        gs = batch(k, typ, 0, first=True)[0][:5]
        if typ == 'KV': k(f's_add_u32 s{sQb}, s{sQb}, 896')
        na = 2 if typ == 'KV' else 1
        for g in gs[:na]:
            for it in g: k.emit(it)
        dma_setup(k, typ)
        for g in gs[na:]:
            for it in g: k.emit(it)
    iftype(k, lambda: w0('KV'), lambda: w0('Q'))
    k.stamp(5, 5)
    k(f'''v_and_b32 v9, 31, v0
    v_lshrrev_b32 v10, 5, v0
    v_bfe_u32 v18, v0, 1, 3
    v_lshlrev_b32 v12, 7, v9
    v_add_u32 v12, s{sMx}, v12''')
    for ks in range(4):
        k(f'v_or_b32 v13, {2*ks}, v10\nv_xor_b32 v13, v13, v18\nv_lshl_add_u32 v{vXA+ks}, v13, 4, v12')
    k(f'''v_bfe_u32 v13, v0, 2, 2
    v_bfe_u32 v15, v0, 4, 1
    v_lshl_add_u32 v16, v10, 3, v13
    v_lshl_add_u32 v17, v15, 2, v14
    v_cmp_lt_u32 vcc, 5, v17
    v_xor_b32 v18, 1, v17
    v_lshlrev_b32 v19, 6, v16
    v_cndmask_b32 v18, v17, v18, vcc
    v_add_u32 v19, {WB}, v19
    v_lshl_add_u32 v{vAA}, v18, 3, v19''')
    k(f's_bitcmp1_b32 s{sU}, 0\ns_cbranch_scc1 L_typeQ')

def dma_setup(k, typ):
    if typ == 'KV':
        tbl = 0
        for j in range(16): tbl |= ([0,1,3,2][j & 3] if j < 8 else [1,0,2,3][j & 3]) << (2*j)
        k(f's_lshl_b32 s3, s{sJ}, 1\ns_lshr_b32 s3, {hex(tbl)}, s3\ns_and_b32 s3, s3, 3')
        k(f's_mul_i32 s3, s3, 3\ns_add_u32 s{sKap}, s{sKap}, s3\ns_add_u32 s{sKap}, s{sKap}, 16')
        k(f's_and_b32 s3, s{sWave}, 1\ns_mul_i32 s{sFb}, s3, {32*3584}\ns_lshl_b32 s{sT0}, s{sKap}, 5\ns_add_u32 s{sFb}, s{sFb}, s{sT0}')
        k(f's_mul_i32 s{sMf}, s3, 3072\ns_lshr_b32 s3, s{sWave}, 1\ns_mul_i32 s3, s3, 6272\ns_add_u32 s{sMf}, s{sMf}, s3\ns_add_u32 s{sMf}, s{sMf}, {WB+8192}')
        k(f's_movk_i32 s3, {3584-96}')
        for n in range(3):
            k(f'''v_add_u32 v12, {64*n}, v0
            v_mul_u32_u24 v19, 171, v12
            v_lshrrev_b32 v19, 10, v19
            v_mad_u32_u24 v{vFP+n}, v19, s3, v{vL16}''')
    else:
        k(f's_and_b32 s3, s{sJ}, 3\ns_lshl_b32 s3, s3, 2\ns_add_u32 s{sKap}, s{sKap}, s3')
        k(f's_mul_i32 s{sFb}, s{sWave}, {16*3584}\ns_lshl_b32 s{sT0}, s{sKap}, 5\ns_add_u32 s{sFb}, s{sFb}, s{sT0}')
        k(f's_lshl_b32 s{sMf}, s{sWave}, 11\ns_add_u32 s{sMf}, s{sMf}, {WB+4096}')
        k(f'''v_and_b32 v12, 2, v1
        v_xor_b32 v12, v2, v12
        v_mul_u32_u24 v19, 3584, v1
        v_lshl_add_u32 v{vFP}, v12, 4, v19
        v_xor_b32 v12, 4, v12
        v_lshl_add_u32 v{vFP+1}, v12, 4, v19
        v_mov_b32 v{vFP+2}, 0''')

def read_setup(typ):
    if typ == 'KV':
        return items(f'''v_mul_u32_u24 v19, 96, v16|v_mul_u32_u24 v20, 6272, v15|v_lshlrev_b32 v12, 3, v14
        v_add3_u32 v19, v19, v20, v12|v_add_u32 v{vFA}, {WB+8192}, v19
        s_min_u32 s3, s{sWave}, 2|s_lshl_b32 s3, s3, 5|v_add_u32 v{vCA}, s3, v{vFA}
        s_and_b32 s3, s{sWave}, 1|s_lshl_b32 s3, s3, 12|v_add_u32 v{vCA+1}, s3, v{vAA}''')
    r = items(f'''v_lshlrev_b32 v19, 7, v16|v_lshlrev_b32 v20, 13, v15|v_lshlrev_b32 v12, 3, v14
        v_add3_u32 v19, v19, v20, v12|v_add_u32 v19, {WB+4096}, v19|v_lshrrev_b32 v20, 1, v13|v_lshl_add_u32 v20, v15, 1, v20''')
    for seg in range(4): r.append(f'v_xor_b32 v12, {seg}, v20\nv_lshl_add_u32 v{vFA+seg}, v12, 5, v19')
    r.append(f'v_xor_b32 v12, s{sWave}, v20\nv_lshl_add_u32 v{vCA}, v12, 5, v19\nv_mov_b32 v{vCA+1}, v{vAA}')
    return r

def batch(k, typ, slot, first=False):
    g = []; pre = []
    if not first:
        pre += [f's_add_u32 s{sSt}, s{sSt}, 1']
        pre += [f's_cmp_eq_u32 s{sSt}, 7', f's_cselect_b32 s{sSt}, 0, s{sSt}']
    tag = f'b{k.nb}'; k.nb += 1
    pre += [f's_mul_i32 s{sB}, s{sSt}, {64*2688}', f's_add_u32 s{sB}, s{sB}, s{sQb}', f's_add_u32 m0, s{sMa}, {slot*WS_}',
            f's_mul_i32 s{sC}, s{sSt}, {64*3584}']
    g.append(pre + [(f'buffer_load_dwordx4 v{vAP}, {srd(SQ)}, s{sB} offen lds', tag)])
    if typ == 'KV':
        g.append([f's_add_u32 m0, s{sMa}, {slot*WS_+4096}', f's_add_u32 s{sB2}, s{sB}, 896', (f'buffer_load_dwordx4 v{vAP}, {srd(SQ)}, s{sB2} offen lds', tag)])
        g.append([f's_add_u32 m0, s{sMf}, {slot*WS_}', f's_add_u32 s{sC}, s{sC}, s{sFb}', (f'buffer_load_dwordx4 v{vFP}, {srd(SGU)}, s{sC} offen lds', tag)])
        g.append([(f'buffer_load_dwordx4 v{vFP+1}, {srd(SGU)}, s{sC} offen offset:1024 lds', tag)])
        g.append([(f'buffer_load_dwordx4 v{vFP+2}, {srd(SGU)}, s{sC} offen offset:2048 lds', tag)])
    else:
        g.append([f's_add_u32 m0, s{sMf}, {slot*WS_}', f's_add_u32 s{sC}, s{sC}, s{sFb}', (f'buffer_load_dwordx4 v{vFP}, {srd(SG)}, s{sC} offen lds', tag)])
        g.append([f's_add_u32 s{sC2}, s{sC}, {8*3584-1024}', (f'buffer_load_dwordx4 v{vFP}, {srd(SG)}, s{sC2} offen offset:1024 lds', tag)])
        g.append([f's_add_u32 m0, s{sMf}, {slot*WS_+8192}', 's_nop 0', (f'buffer_load_dwordx4 v{vFP+1}, {srd(SU)}, s{sC} offen lds', tag)])
        g.append([(f'buffer_load_dwordx4 v{vFP+1}, {srd(SU)}, s{sC2} offen offset:1024 lds', tag)])
    for n in range(8):
        p = []
        if n == 0: p = [f's_add_u32 m0, s{sMx}, {slot*8192}', f's_lshl_b32 s{sA}, s{sSt}, 7', f's_add_u32 s{sA}, s{sA}, s{sXb}']
        if n == 4: p = [f's_add_u32 m0, s{sMx}, {slot*8192+4096}', f's_add_u32 s{sA}, s{sA}, {32*896}']
        g.append(p + [(f'buffer_load_dwordx4 v{vXP+(n&3)}, {srd(SX)}, s{sA} offen offset:{(n&3)*1024} lds', tag)])
    return g, tag

def dbatch(ci):
    slot = (7 + ci) % 3; tag = f'd{ci}'; g = []
    for n in range(8):
        p = []
        if n == 0: p = [f's_bfe_u32 s{sA}, s{sMu}, {hex(0x40000 + 4*ci)}', f's_mul_i32 s{sA}, s{sA}, {64*896}', f's_add_u32 m0, s{sMx}, {slot*8192}', f's_add_u32 s{sA}, s{sA}, s{sDb}']
        if n == 4: p = [f's_add_u32 m0, s{sMx}, {slot*8192+4096}', f's_add_u32 s{sA}, s{sA}, {32*896}']
        g.append(p + [(f'buffer_load_dwordx4 v{vDP+(n&3)}, {srd(SD)}, s{sA} offen offset:{(n&3)*1024} lds', tag)])
    return g

def obatch():
    g = []
    for n in range(14):
        g.append([f's_add_u32 m0, s{sWo}, {(n & ~3)*1024}', f's_add_u32 s{sA2}, s{sWg}, {(n >> 2)*32*896}',
                  (f'buffer_load_dwordx4 v{vDP+(n&3)}, {srd(SO)}, s{sA2} offen offset:{(n&3)*1024} lds', 'wo')])
    return g

def dreads(ci):
    slot = (7 + ci) % 3; r = []
    for kl in range(4):
        for n in range(2):
            for j2 in range(2):
                d = 8*(4*ci + kl) + 4*n + 2*j2
                r.append(f'ds_read_b64_tr_b16 a[{d}:{d+1}], v{vDA+n} offset:{slot*8192 + (16*kl + 8*j2)*128}')
    return r

def wread(typ, c, slot, ks, j2):
    nat = 2 if typ == 'KV' else 1
    row = 16*ks + 4*j2
    if c < nat: return vAA, slot*WS_ + c*4096 + row*64
    seg = c - nat
    if typ == 'KV': return vFA, slot*WS_ + row*96 + seg*32
    return vFA + seg, slot*WS_ + row*128

def frag_reads(typ, b, slot, ks):
    r = [f'ds_read_b128 a[{fX(b,0)}:{fX(b,0)+3}], v{vXA+ks} offset:{slot*8192}']
    for c in range(5):
        for j2 in range(2):
            va, im = wread(typ, c, slot, ks, j2)
            r.append(f'ds_read_b64_tr_b16 a[{fW(b,c)+2*j2}:{fW(b,c)+2*j2+1}], v{va} offset:{im}')
        if c == 0: r.append(f'ds_read_b128 a[{fX(b,1)}:{fX(b,1)+3}], v{vXA+ks} offset:{slot*8192+4096}')
    return r

vCR = 192
vCSt = 174
def cs_reads(typ):
    p = 96 if typ == 'KV' else 128
    return [f'ds_read_b64_tr_b16 {pr(vCR+16*r+4*ks+2*j2)}, v{vCA+r} offset:{(16*ks+4*j2)*(64 if r else p)}' for r in range(2) for ks in range(4) for j2 in range(2)]

def init_items(k, typ):
    l, t, h, z0, z1, oob = vZ, vZ+1, vZ+2, vZ+3, vZ+4, vZ+5
    nat = 2 if typ == 'KV' else 1
    wsb = k.opt.get('wsbase', 0) << 20
    it = ([f's_add_u32 s{SW}, s{SW}, {wsb}\ns_addc_u32 s{SW+1}, s{SW+1}, 0'] if wsb else []) + items(f'''s_mov_b32 s{SW+2}, {(1 << 28) - wsb}
    s_mov_b32 s{SW+3}, 0x20000
    v_lshrrev_b32 v{l}, 4, v{vL16}
    v_mov_b32 v{oob}, {OOB}
    v_and_b32 v{t}, 31, v{l}
    v_lshrrev_b32 v{h}, 5, v{l}
    s_lshl_b32 s{sT2}, s{sRb}, 5
    s_add_u32 s{sT2}, s{sT2}, s{sCg}
    s_lshl_b32 s{sT2}, s{sT2}, 2
    s_add_u32 s{sT2}, s{sT2}, s{sWave}
    s_mul_i32 s{sT1}, s{sT2}, {2*896}
    v_mul_u32_u24 v{z0}, 896, v{h}
    v_lshl_add_u32 v{z0}, v{t}, 4, v{z0}
    v_cmp_lt_u32 vcc, 27, v{t}|s_lshl_b32 s{sT2}, s{sT2}, 4|s_add_u32 s{sT2}, s{sT2}, {WS_ST}|v_cndmask_b32 v{z0}, v{z0}, v{oob}, vcc''')
    it += [(f'buffer_load_dwordx4 {v(vWP,4)}, v{z0}, {srd(SX)}, s{sT1} offen', 'srow'), (f'buffer_load_dwordx4 {v(vWP+4,4)}, v{z0}, {srd(SX)}, s{sT1} offen offset:448', 'srow')]
    it += items(f'''s_lshl_b32 s{sFh}, s{sHo}, 2
    s_add_u32 s{sFh}, s{sFh}, s{sG}
    s_lshl_b32 s{sFh}, s{sFh}, 4
    s_lshr_b32 s{sF2}, s{sU}, 1
    s_add_u32 s{sFh}, s{sFh}, s{sF2}
    s_lshl_b32 s{sFh}, s{sFh}, 7
    s_add_u32 s{sFh}, s{sFh}, {WS_FL + (4*128 if typ == 'KV' else 0)}
    s_mul_i32 s{sHo}, s{sHo}, {144*2048}''')
    if typ == 'KV':
        it += items(f'''s_lshl_b32 s{sF2}, s{sJ}, 2
        s_add_u32 s{sF2}, s{sF2}, s{sWave}
        s_lshl_b32 s{sF2}, s{sF2}, 3
        s_add_u32 s{sF2}, s{sF2}, s{sRb}
        s_lshl_b32 s{sF2}, s{sF2}, 7
        s_add_u32 s{sF2}, s{sF2}, {WS_KF}
        s_lshl_b32 s{sT1}, s{sJ}, 3
        s_add_u32 s{sT1}, s{sT1}, s{sRb}
        s_lshl_b32 s{sT1}, s{sT1}, 2
        s_add_u32 s{sT1}, s{sT1}, s{sWave}
        s_lshl_b32 s{sT1}, s{sT1}, 11
        s_add_u32 s{sT1}, s{sT1}, {WS_KVP}''')
    else:
        it += items(f'''s_add_u32 s{sF2}, s{sFh}, {8*128}
        s_lshl_b32 s{sT1}, s{sJ}, 12
        s_add_u32 s{sT1}, s{sT1}, s{sHo}
        s_add_u32 s{sT1}, s{sT1}, {112*2048}''')
    it += [lambda: k.wait('pf')] + [f'v_mov_b32 v{vJ+i}, -1' for i in range(4)]
    it += items(f'''v_lshl_add_u32 v{z0}, v{l}, 2, s{sT2}
    v_cmp_lt_u32 vcc, 5, v{l}|v_writelane_b32 v{z0}, s{sFh}, 4|v_writelane_b32 v{z0}, s{sF2}, 5|v_cndmask_b32 v{z0}, v{z0}, v{oob}, vcc
    v_cmp_eq_u32 vcc, 0, v{t}|v_lshlrev_b32 v{z1}, 3, v{h}|v_mov_b32 v{vOne}, 1|v_cndmask_b32 v{vMB+1}, v{oob}, v{z1}, vcc
    v_cmp_eq_u32 vcc, 0, v{l}|s_mul_i32 s{sT0}, s{sCg}, 1280|s_add_u32 s{sT0}, s{sT0}, s{sRb}|v_cndmask_b32 v{vF0}, v{oob}, v{l}, vcc
    s_lshl_b32 s{sT0}, s{sT0}, 2
    s_add_u32 s{sT0}, s{sT0}, {WS_CS}
    v_lshl_add_u32 v{vCSt}, v{t}, 5, s{sT0}''')
    if typ == 'KV':
        it += items(f'''s_add_u32 s3, s{sWave}, 2|s_lshl_b32 s3, s3, 10|s_cmp_lt_u32 s{sWave}, 3|s_cselect_b32 s3, s3, {OOB}|v_mov_b32 v{z1}, s3
        s_lshl_b32 s3, s{sWave}, 10|s_cmp_lt_u32 s{sWave}, 2|s_cselect_b32 s3, s3, {OOB}|v_mov_b32 v{t}, s3''')
    else:
        it += items(f'''s_add_u32 s3, s{sWave}, 1|s_lshl_b32 s3, s3, 10|v_mov_b32 v{z1}, s3
        s_cmp_lt_u32 s{sWave}, 1|s_cselect_b32 s3, 0, {OOB}|v_mov_b32 v{t}, s3''')
    it += items(f'''s_mov_b32 s{sHm}, 0
    s_mov_b32 s{sHm+1}, -1
    v_cndmask_b32 v{z1}, v{z1}, v{t}, s[{sHm}:{sHm+1}]
    v_add_u32 v{vCSt}, v{vCSt}, v{z1}''')
    st = [(f'buffer_store_dword v{vJ}, v{z0}, {srd(SW)}, 0 offen sc1', 'fill'), (f'buffer_store_dword v{vJ}, v{vCSt}, {srd(SW)}, 0 offen sc1', 'fill')]
    st += [(f'buffer_store_dwordx4 {v(vJ,4)}, v{vL16}, {srd(SW)}, s{sT1} offen offset:{1024*i} sc1', 'fill') for i in range(2 if typ == 'KV' else 4)]
    return it, st

def cs_items(k):
    a0, a1, a2, a3 = vZ, vZ+1, vZ+2, vZ+3
    it = []
    for r in range(2):
        lo, hi = (a0, a1) if r == 0 else (a2, a3)
        for i in range(16):
            x = vCR + 16*r + i
            if i == 0: it += [f'v_lshlrev_b32 v{lo}, 16, v{x}', f'v_and_b32 v{hi}, 0xffff0000, v{x}']
            else: it += [f'v_lshlrev_b32 v{vZ+4}, 16, v{x}', f'v_and_b32 v{x}, 0xffff0000, v{x}', f'v_add_f32 v{lo}, v{lo}, v{vZ+4}', f'v_add_f32 v{hi}, v{hi}, v{x}']
    it += items(f'''v_add_f32 v{a0}, v{a0}, v{a1}
    v_add_f32 v{a2}, v{a2}, v{a3}|s_cmp_eq_u32 s{sRb}, 7|s_cselect_b32 s{sT0}, 0, -1|v_permlane32_swap_b32 v{a0}, v{a2}
    v_add_f32 v{a0}, v{a0}, v{a2}
    v_cvt_pk_bf16_f32 v{a1}, v{a0}, v{a0}
    v_lshlrev_b32 v{a1}, 16, v{a1}
    v_sub_f32 v{a1}, v{a0}, v{a1}
    v_cvt_pk_bf16_f32 v{a1}, v{a0}, v{a1}
    v_and_b32 v{a1}, s{sT0}, v{a1}''')
    return it, [lambda: k.wait('fill'), (f'buffer_store_dword v{a1}, v{vCSt}, {srd(SW)}, 0 offen sc1', 'csst')]

def w2_addr_items():
    l, a_, b_, c_, d_ = vZ, vZ+1, vZ+2, vZ+3, vZ+4
    it = []
    for n, size in ((SD, 1792*896), (SO, 448*896), (SOUT, 2048*896)): it += [f's_mov_b32 s{n+2}, {size}', f's_mov_b32 s{n+3}, 0x20000']
    return it + items(f'''s_and_b32 s{sG2}, s2, 7
    s_lshl_b32 s{sG2}, s{sG2}, 2
    s_bfe_u32 s{sNb}, s2, 0x20003
    s_or_b32 s{sG2}, s{sG2}, s{sNb}
    s_lshr_b32 s{sNb}, s2, 5
    s_lshl_b32 s{sDb}, s{sNb}, 7
    s_mul_i32 s3, s{sWave}, {448*896}|s_add_u32 s{sDb}, s{sDb}, s3
    v_lshrrev_b32 v{l}, 4, v{vL16}
    v_lshrrev_b32 v{a_}, 3, v{l}
    v_mul_u32_u24 v{b_}, 896, v{a_}
    v_and_b32 v{a_}, 2, v{a_}
    v_lshlrev_b32 v{a_}, 1, v{a_}
    v_and_b32 v{c_}, 7, v{l}
    v_xor_b32 v{a_}, v{a_}, v{c_}
    v_lshl_add_u32 v{vDP}, v{a_}, 4, v{b_}
    s_cmp_eq_u32 s{sNb}, 7|s_cselect_b32 s3, {OOB}, 0|v_add_u32 v{vDP}, s3, v{vDP}
    v_add_u32 v{vDP+1}, 6144, v{vDP}
    v_add_u32 v{vDP+2}, {2*6144}, v{vDP}
    v_add_u32 v{vDP+3}, {3*6144}, v{vDP}
    v_bfe_u32 v{a_}, v{l}, 2, 2
    v_lshrrev_b32 v{b_}, 5, v{l}
    v_lshl_add_u32 v{b_}, v{b_}, 2, v{a_}
    v_bfe_u32 v{c_}, v{l}, 4, 1
    v_and_b32 v{d_}, 3, v{l}
    v_lshl_add_u32 v{c_}, v{c_}, 2, v{d_}
    v_lshlrev_b32 v{d_}, 7, v{b_}
    v_lshl_add_u32 v{d_}, v{c_}, 3, v{d_}
    v_add_u32 v{d_}, s{sMx}, v{d_}
    v_lshrrev_b32 v{a_}, 1, v{a_}
    v_lshl_add_u32 v{vDA}, v{a_}, 6, v{d_}
    v_xor_b32 v{a_}, 1, v{a_}
    v_lshl_add_u32 v{vDA+1}, v{a_}, 6, v{d_}
    v_mul_u32_u24 v{b_}, 56, v{b_}
    v_min_u32 v{c_}, 6, v{c_}
    v_lshl_add_u32 v{b_}, v{c_}, 3, v{b_}
    v_add_u32 v{vMB}, {L_PHI}, v{b_}
    s_add_u32 s3, s{sG2}, s{sNb}|s_and_b32 s3, s3, 3|s_lshl_b32 s3, s3, 2|s_lshr_b32 s{sT0}, 0x32103210, s3
    s_and_b32 s{sT0}, s{sT0}, 0xffff
    s_and_b32 s{sT1}, s{sG2}, 3
    s_add_u32 s{sT1}, s{sT1}, s{sNb}
    s_lshl_b32 s{sT1}, s{sT1}, 1
    s_lshr_b32 s{sT1}, 0x124924, s{sT1}
    s_and_b32 s{sT1}, s{sT1}, 3
    s_lshl_b32 s{sT1}, s{sT1}, 2
    s_lshr_b32 s{sT1}, 0x654654, s{sT1}
    s_lshl_b32 s{sT1}, s{sT1}, 16
    s_or_b32 s{sT1}, s{sT1}, s{sT0}''')

def kv_addr_items():
    a_, b_, l = vMB+2, vMB+3, vMB+4
    return [x.replace('|', '\n') for x in f'''v_lshrrev_b32 v{l}, 4, v{vL16}
        v_and_b32 v{a_}, 31, v{l}
        v_mul_u32_u24 v{a_}, {SP}, v{a_}
        v_and_b32 v{b_}, 32, v{l}
        s_mul_i32 s3, s{sWave}, {64*SP}|s_add_u32 s3, s3, {WB}|v_add3_u32 v{vS0}, v{a_}, v{b_}, s3
        v_lshrrev_b32 v{a_}, 4, v{l}
        v_lshlrev_b32 v{a_}, 3, v{a_}
        v_bfe_u32 v{b_}, v{l}, 2, 1
        v_add_u32 v{a_}, v{a_}, v{b_}
        v_bfe_u32 v{b_}, v{l}, 3, 1
        v_lshl_add_u32 v{a_}, v{b_}, 2, v{a_}
        v_mul_u32_u24 v{a_}, {SP}, v{a_}
        v_and_b32 v{b_}, 1, v{l}
        v_lshl_add_u32 v{a_}, v{b_}, 5, v{a_}
        v_bfe_u32 v{b_}, v{l}, 1, 1
        v_lshl_add_u32 v{a_}, v{b_}, 3, v{a_}
        v_add_u32 v{vS0+2}, {WB}, v{a_}
        s_lshl_b32 s3, s{sWave}, 3|s_lshr_b32 s3, 0x50401000, s3|s_and_b32 s3, s3, 0xff|v_add_u32 v{vS0+1}, s3, v{vS0+2}
        v_lshrrev_b32 v{a_}, 4, v{l}
        v_lshlrev_b32 v{a_}, 9, v{a_}
        v_and_b32 v{b_}, 15, v{l}
        v_lshl_add_u32 v{vS0+3}, v{b_}, 4, v{a_}'''.split('\n')]

def stats_items(k):
    X = vWP; Lo = 242; s0, s1, r1, t = 224, 225, 250, 251
    it = [lambda: k.wait('srow')]
    for i in range(8): it += [f'v_lshlrev_b32 v{Lo+i}, 16, v{X+i}', f'v_and_b32 v{X+i}, 0xffff0000, v{X+i}']
    it += [f'v_add_f32 v{s0}, v{Lo}, v{X}', f'v_add_f32 v{s1}, v{Lo+1}, v{X+1}']
    for i in range(2, 8): it += [f'v_add_f32 v{s0}, v{s0}, v{Lo+i}', f'v_add_f32 v{s1}, v{s1}, v{X+i}']
    def red(r):
        o_ = []
        for m in ('quad_perm:[1,0,3,2]', 'quad_perm:[2,3,0,1]', 'row_half_mirror', 'row_mirror'):
            o_.append(f's_nop 1\nv_add_f32_dpp v{r}, v{r}, v{r} {m} row_mask:0xf bank_mask:0xf')
        o_ += [f'v_mov_b32 v{t}, v{r}', f's_nop 1\nv_permlane16_swap_b32 v{r}, v{t}', f'v_add_f32 v{r}, v{r}, v{t}']
        return o_
    it += [f'v_add_f32 v{s0}, v{s0}, v{s1}'] + red(s0) + [f'v_mul_f32 v{s0}, {hex(f2u(-1.0/448))}, v{s0}']
    for i in range(8): it += [f'v_add_f32 v{Lo+i}, v{Lo+i}, v{s0}', f'v_add_f32 v{X+i}, v{X+i}, v{s0}']
    it += [f'v_mul_f32 v{s1}, v{Lo}, v{Lo}', f'v_mul_f32 v{r1}, v{X}, v{X}']
    for i in range(1, 8): it += [f'v_fmac_f32 v{s1}, v{Lo+i}, v{Lo+i}', f'v_fmac_f32 v{r1}, v{X+i}, v{X+i}']
    it += ['s_mov_b32 vcc_lo, 0xf0000000', 's_mov_b32 vcc_hi, 0xf0000000', f'v_add_f32 v{r1}, v{r1}, v{s1}', f'v_cndmask_b32 v{r1}, v{r1}, 0, vcc']
    it += red(r1) + [f'v_mov_b32 v{s1}, {hex(f2u(1e-5))}', f'v_fmac_f32 v{s1}, {hex(f2u(1.0/448))}, v{r1}']
    it += [lambda: k.wait('fill'), (f'buffer_store_dwordx2 v[{s0}:{s1}], v{vMB+1}, {srd(SW)}, s{sT2} offen sc1', 'stst')]
    return it

def st_loads():
    r = [f'buffer_load_dwordx2 v[{vST+2*tt}:{vST+2*tt+1}], v{vPA}, {srd(SW)}, s{sT2} offen offset:{256*tt} sc1' for tt in range(2)]
    r += [f'buffer_load_dwordx4 {v(vCT+4*c,4)}, v{vU0}, {srd(SW)}, s{sC if c < 4 else sC2} offen offset:{1024*(c&3)} sc1' for c in range(5)]
    return r
def st_check():
    regs = [vST+i for i in range(4)] + [vCT+i for i in range(20)]
    r = [f'v_max3_u32 v{vU1}, v{regs[0]}, v{regs[1]}, v{regs[2]}']
    for i in range(3, 23, 2): r.append(f'v_max3_u32 v{vU1}, v{vU1}, v{regs[i]}, v{regs[i+1]}')
    return r + [f'v_max_u32 v{vU1}, v{vU1}, v{regs[23]}']

def main_loop(k, typ):
    o = k.opt
    t0 = 'b0'; k.nb = 1
    pend, t1 = batch(k, typ, 1)
    rs = read_setup(typ)
    for x in rs[:2]: k(x)
    rs = rs[2:]
    npre = o.get('pre1', 8)
    for g in pend[:npre]:
        for it in g: k.emit(it)
        if rs: k(rs.pop(0))
    for x in rs: k(x)
    pend = pend[npre:]
    k.stamp(1)
    k.wait(t0)
    k('s_barrier')
    k.stamp(2)
    for r in frag_reads(typ, 0, 0, 0): k(r)
    tags = {0: t0, 1: t1}
    ini, fills = init_items(k, typ)
    csv, cspub = cs_items(k)
    lazy = list(ini)
    csr_all = cs_reads(typ)
    c0 = -2*math.sqrt(2/math.pi)*math.log2(math.e)
    steps = [(s, ks) for s in range(7) for ks in range(4)] + [(7, 0)]
    order = list(range(5)) if typ == 'KV' else [1, 2, 3, 4, 0]
    phase = 0
    for (s, ks) in steps:
        slot = s % 3
        b = (4*s + ks) & 1
        reads = []
        if s < 7:
            if ks < 3: reads = frag_reads(typ, b ^ 1, slot, ks+1)
            elif s < 6: reads = frag_reads(typ, b ^ 1, (s+1) % 3, 0)
        if s == 0 and ks == 0:
            g2, tags[2] = batch(k, typ, 2)
            g2.append([f's_mov_b32 s{SPH+2}, {16*1568}', f's_mov_b32 s{SPH+3}, 0x20000', f's_and_b32 s{sC2}, s{sWave}, 1', f's_lshl_b32 s{sC2}, s{sC2}, 10', f's_add_u32 m0, s{sC2}, {L_PHI}',
                       f's_mul_i32 s{sB}, s{sJ}, 1568', f's_add_u32 s{sB}, s{sB}, s{sC2}', (f'buffer_load_dwordx4 v{vL16}, {srd(SPH)}, s{sB} offen lds', tags[2])])
            pend += g2
        if s == 0 and ks < 3: reads += csr_all[6*ks:6*ks+6]
        if phase == 0 and not lazy and (s, ks) >= (0, 3):
            lazy += fills + csv; phase = 1
        AT = tuple(o.get('atomat', (1, 3)))
        if phase == 1 and not lazy and (s, ks) > AT:
            lazy += cspub + stats_items(k) + w2_addr_items(); phase = 2
        extra = []
        if (s, ks) == (4, 2):
            assert phase == 2
            extra += lazy; lazy = []
        if (s, ks) == (5, 0):
            assert all(g[-1][1][0] == 'd' for g in pend) and len(pend) < 8
            reads += [f'ds_read_b64_tr_b16 {pr(vWP+4*s_+2*j2)}, v{vMB} offset:{(16*s_+8*j2)*56}' for s_ in range(2) for j2 in range(2)]
            lazy += setup_early()
            if typ == 'KV': lazy += kv_addr_items()
        if (s, ks) == (5, 1):
            extra += [f'v_mov_b32_dpp v{vWP+i}, v{vWP+i} quad_perm:[2,3,2,3] row_mask:0xa bank_mask:0x8' for i in range(8)]
            extra += [f'v_cndmask_b32 v{vWP+i}, v{vWP+i}, 0, s[{sHm}:{sHm+1}]' for i in (6, 7)]
        if (s, ks) == (6, 1):
            extra += [lambda: k.wait('d0')] + dreads(0) + [k.mark('r0')]
        if (s, ks) == tuple(o.get('stat', (6, 2))):
            extra.append(lambda: k.wait('stld'))
            extra += st_check()
            def chk2():
                L = k.A.label('L_st')
                k(f'v_cmp_eq_u32 vcc, -1, v{vU1}\ns_cbranch_vccnz {L}f\n{L}b:')
                k.tail.append(f's_nop 0\n{L}f:\ns_mov_b32 s{sSpin}, 0\n{L}l:\n' + '\n'.join(st_loads()) + f'\ns_add_u32 s{sSpin}, s{sSpin}, 1\ns_waitcnt vmcnt(0)\n' + '\n'.join(st_check()) +
                              f'\nv_cmp_eq_u32 vcc, -1, v{vU1}\ns_cbranch_vccz {L}b\ns_cmp_lt_u32 s{sSpin}, {o.get("spin", 200000)}\ns_cbranch_scc1 {L}l\ns_branch {L}b')
            extra.append(chk2)
        if (s, ks) == (6, 3):
            for tt in range(2): extra += [f'v_cvt_pk_bf16_f32 v{vMB+4*tt+i}, v{vST+2*tt}, v{vST+2*tt}' for i in range(4)]
            for tt in range(2): extra.append(f'v_rsq_f32 v{vP3+2*tt}, v{vST+2*tt+1}')
            extra.append('s_nop 0')
            for tt in range(2):
                extra += [f'v_mul_f32 v{vU0}, v{vP3+2*tt}, v{vP3+2*tt}', f'v_mul_f32 v{vP2+2*tt}, {hex(f2u(c0))}, v{vP3+2*tt}', f'v_mul_f32 v{vP3+2*tt+1}, {hex(f2u(math.log2(math.e)))}, v{vP3+2*tt}',
                          f'v_mul_f32 v{vU0}, {hex(f2u(0.044715))}, v{vU0}', f'v_mul_f32 v{vP2+2*tt+1}, v{vP2+2*tt}, v{vU0}']
        if s < 7: k('s_waitcnt lgkmcnt(0)')
        mf = []
        for c in (order if s == 7 else range(5)):
            for tt in range(2):
                D = acc(c, tt); C = '0' if (s == 0 and ks == 0) else v(D, 16)
                A_, B = (a(fW(b,c),4), a(fX(b,tt),4)) if s < 7 else (v(vCT+4*c, 4), v(vMB+4*tt, 4))
                mf.append(f'v_mfma_f32_32x32x16_bf16 {v(D,16)}, {A_}, {B}, {C}')
        gaps = [[] for _ in range(10)]
        if ks == 3:
            assert s == 6 or all(g[-1][1] != tags[s+1] for g in pend)
            def bar(s=s):
                if s < 6: k.wait(tags[s+1], *(['fill'] if (s, 3) == AT else []))
                k('s_barrier')
            gaps[0].append(bar)
            if (s, 3) == AT:
                assert phase == 1 and not any(isinstance(x, tuple) for x in lazy)
                gaps[1] += [f's_mov_b32 s{SDBG+2}, 256\ns_mov_b32 s{SDBG+3}, 0x20000\ns_and_b32 s3, s2, 1\ns_lshl_b32 s3, s3, 7\ns_cmp_eq_u32 s{sWave}, 0\ns_cselect_b32 s3, s3, {OOB}\nv_or_b32 v{vPA}, s3, v{vF0}',
                            (f'buffer_atomic_add v{vOne}, v{vPA}, {srd(SDBG)}, 0 offen', 'atom')]
            IL = f'buffer_load_dword v{vPoll}, v{vPA}, {srd(SDBG)}, 0 offen sc1'
            if s == 4: gaps[1] += [f'v_lshlrev_b32 v{vPA}, 3, v{vL16}', (IL, 'ipoll')]
            if s == 5:
                gaps[1].append(lambda: gate(k, 'L_in', 'ipoll', IL, f'v_cmp_gt_u32 vcc, 128, v{vPoll}', 3))
                extra = items(f'''v_bfe_u32 v{vPA}, v{vL16}, 1, 8
                s_lshl_b32 s{sT2}, s{sRb}, 2
                s_add_u32 s{sT2}, s{sT2}, s{sWave}
                s_lshl_b32 s{sT2}, s{sT2}, 9
                s_add_u32 s{sT2}, s{sT2}, {WS_ST}
                v_lshrrev_b32 v{vU1}, 9, v{vL16}
                v_lshlrev_b32 v{vU0}, 2, v{vPA}
                v_lshl_add_u32 v{vU0}, v{vU1}, 4, v{vU0}
                s_mul_i32 s{sC}, s{sCg}, 5120
                s_add_u32 s{sC}, s{sC}, {WS_CS}
                s_add_u32 s{sC2}, s{sC}, 4096''') + [(l, 'stld') for l in st_loads()] + extra
            if s + 3 <= 6:
                g_, tags[s+3] = batch(k, typ, s % 3); pend += g_
            else:
                g_ = dbatch(s - 4)
                if s == 4: g_[0] = [f's_mov_b32 s{sMu}, s{sT1}'] + g_[0]
                g_[-1] = [k.mark(f'i{s-4}')] + g_[-1]
                pend += g_
        rd = list(reads)
        gi = 1 if ks == 3 else 0
        while rd:
            gaps[gi] += rd[:3]; rd = rd[3:]; gi += 1
        remaining_ks = {3: 4, 0: 3, 1: 2, 2: 1}[ks]
        if (s, ks) == (6, 3): remaining_ks = 2
        if s == 7: remaining_ks = 1
        nd = min(-(-len(pend) // remaining_ks), o.get('rate', 5))
        if (s, ks) == (5, 3): nd = 0
        pos = {0: [], 1: [5], 2: [3, 7], 3: [2, 5, 8], 4: [2, 4, 6, 8], 5: [1, 3, 5, 7, 9]}[nd]
        for p in pos: gaps[p] += pend.pop(0)
        wt = lambda it: 3 if isinstance(it, tuple) else 1 if callable(it) else it.count('\n') + 1
        load_ = [sum(wt(x) for x in gp) for gp in gaps]
        cap = o.get('cap', 5)
        while sum(max(0, cap - x) for x in load_[1:]) < sum(wt(x) for x in extra): cap += 1
        gi = 1; q = list(extra); nx = len(q); q += lazy; used = 0
        for n_, it in enumerate(q):
            while gi < 10 and load_[gi] >= cap: gi += 1
            if gi == 10:
                if n_ >= nx: break
                gi = 9
            gaps[gi].append(it); load_[gi] += wt(it); used = n_ + 1
        lazy = lazy[max(0, used - nx):]
        for i in range(10):
            k(mf[i])
            for it in gaps[i]: k.emit(it)
        if ks == 3: k.stamp(3 + s, grp=2)
        if o.get('verbose'): print(typ, s, ks, 'load', load_, 'lazy', len(lazy), 'pend', len(pend), 'phase', phase)
    assert not pend and not lazy
    k.stamp(3)

def w2_background(k, wo_ok):
    GAP = k.opt.get('gap', 70); LAT = k.opt.get('dlat', 600)
    yes = lambda: True
    def issue(ci):
        gs = dbatch(ci)
        gs[0] = ['s_waitcnt lgkmcnt(0)'] + gs[0]; gs[-1] = gs[-1] + [k.mark(f'i{ci}')]
        for g in gs: k.bg.append((GAP, g, yes))
    def read(ci):
        r = dreads(ci)
        k.bg.append((16, [lambda: k.wait(f'd{ci}')] + r[:4], lambda: k.t >= k.done[f'i{ci}'] + LAT))
        for q in range(1, 4): k.bg.append((16, r[4*q:4*q+4] + ([k.mark(f'r{ci}')] if q == 3 else []), yes))
    issue(3)
    for ci in (1, 2, 3): read(ci); issue(ci + 3)
    for ci in (4, 5, 6): read(ci)
    gs = obatch(); gs[-1] = gs[-1] + [k.mark('wo')]
    for g in gs: k.bg2.append((GAP, g, wo_ok))
    k.lastbg = k.t

def flag_store(k, sreg):
    k.vmem(f'buffer_store_dword v{vOne}, v{vF0}, {srd(SW)}, s{sreg} offen sc1', 'flag')

def flag_later(k, tag, sreg):
    def fn():
        k.wait(tag); flag_store(k, sreg); k.stamp(3, 4)
    k.timed.append((k.t + k.opt.get('drain', 800), fn, tag))

def ffn_unit(k, c, tt, seg):
    A_ = acc(c, tt); P1 = vST + 2*tt; P2 = vP2 + 2*tt; T = vCT
    for i in range(4): k.f(f'v_pk_mul_f32 {pr(T+2*i)}, {pr(A_+2*i)}, {pr(A_+2*i)}')
    for i in range(4): k.f(f'v_pk_fma_f32 {pr(T+2*i)}, {pr(T+2*i)}, {pr(P2)}, {pr(P2)} op_sel:[0,1,0] op_sel_hi:[1,1,0]')
    for i in range(4): k.f(f'v_pk_mul_f32 {pr(T+2*i)}, {pr(A_+2*i)}, {pr(T+2*i)}')
    for i in range(8): k.f(f'v_exp_f32 v{T+i}, v{T+i}')
    for i in range(4): k.f(f'v_pk_mul_f32 {pr(A_+2*i)}, {pr(A_+2*i)}, {pr(A_+8+2*i)}')
    for i in range(4): k.f(f'v_pk_fma_f32 {pr(T+2*i)}, {pr(T+2*i)}, {pr(P1)}, {pr(P1)} op_sel:[0,1,1] op_sel_hi:[1,1,1]')
    for i in range(8): k.f(f'v_rcp_f32 v{T+i}, v{T+i}')
    if tt == 0 and seg == 0: k.f(f's_lshl_b32 s{sC}, s{sKap}, 11\ns_add_u32 s{sC}, s{sC}, s{sHo}')
    elif tt == 0 and seg == 2: k.f(f's_add_u32 s{sC}, s{sC}, 4096')
    for i in range(4): k.f(f'v_pk_mul_f32 {pr(A_+2*i)}, {pr(A_+2*i)}, {pr(T+2*i)}')
    for i in range(4): k.f(f'v_cvt_pk_bf16_f32 v{A_+8+i}, v{A_+2*i}, v{A_+2*i+1}')
    k.vmem(f'buffer_store_dwordx4 {v(A_+8,4)}, v{vL16}, {srd(SW)}, s{sC} offen offset:{(seg&1)*2048+tt*1024} sc1', 'hst')
    k.lastbg = k.t - 30

def ffn_epilogue(k, typ, hooks={}):
    nat = 2 if typ == 'KV' else 1
    for c in range(nat, 5):
        for tt in range(2):
            if (c, tt) in hooks: hooks[(c, tt)]()
            ffn_unit(k, c, tt, c - nat)
    flag_later(k, 'hst', sFh)

def pack8(k, src, dst, n=8):
    for i in range(n): k.f(f'v_cvt_pk_bf16_f32 v{dst+i}, v{src+2*i}, v{src+2*i+1}')

def project(k, E):
    for tt in range(2): pack8(k, acc(0, tt), E + 8*tt)
    k('s_nop 1')
    for tt in range(2):
        P = acc(0, tt)
        k(f'v_mfma_f32_32x32x16_bf16 {v(P,16)}, {v(vWP,4)}, {v(E+8*tt,4)}, 0')
        k(f'v_mfma_f32_32x32x16_bf16 {v(P,16)}, {v(vWP+4,4)}, {v(E+8*tt+4,4)}, {v(P,16)}')

def softmaxes(k, M, F, after=None):
    T = [vT, vT + 4]; S = vCT
    R = range(2)
    P = [acc(0, 0), acc(0, 1)]
    for tt in R: k.f(f'v_max3_f32 v{T[tt]}, v{P[tt]}, v{P[tt]+1}, v{P[tt]+2}\nv_min3_f32 v{T[tt]+1}, v{P[tt]}, v{P[tt]+1}, v{P[tt]+2}')
    for i in range(3, 13, 2):
        for tt in R: k.f(f'v_max3_f32 v{T[tt]}, v{T[tt]}, v{P[tt]+i}, v{P[tt]+i+1}\nv_min3_f32 v{T[tt]+1}, v{T[tt]+1}, v{P[tt]+i}, v{P[tt]+i+1}')
    for tt in R: k.f(f'v_max_f32 v{T[tt]}, v{T[tt]}, v{P[tt]+13}\nv_min_f32 v{T[tt]+1}, v{T[tt]+1}, v{P[tt]+13}')
    for tt in R: k.f(f'v_mov_b32 v{T[tt]+2}, v{T[tt]}\nv_mov_b32 v{T[tt]+3}, v{T[tt]+1}')
    k.f('s_nop 0')
    for tt in R: k.f(f'v_permlane32_swap_b32 v{T[tt]}, v{T[tt]+2}\nv_permlane32_swap_b32 v{T[tt]+1}, v{T[tt]+3}')
    for tt in R: k.f(f'v_max_f32 v{T[tt]}, v{T[tt]}, v{T[tt]+2}\nv_min_f32 v{T[tt]+1}, v{T[tt]+1}, v{T[tt]+3}')
    for tt in R: k.f(f'v_pk_mul_f32 {pr(T[tt])}, {pr(T[tt])}, {pr(vP3+2*tt)} op_sel:[0,1] op_sel_hi:[1,1]')
    for tt in R:
        L = pr(vP3 + 2*tt); p = P[tt]; m = M[tt]; t = T[tt]; s_ = S + 4*tt
        for i in range(7): k.f(f'v_pk_fma_f32 {pr(m+2*i)}, {pr(p+2*i)}, {L}, {pr(t)} op_sel:[0,1,1] op_sel_hi:[1,1,1] neg_lo:[1,0,0] neg_hi:[1,0,0]')
        for i in range(7): k.f(f'v_pk_fma_f32 {pr(p+2*i)}, {pr(p+2*i)}, {L}, {pr(t)} op_sel:[0,1,0] op_sel_hi:[1,1,0] neg_lo:[0,0,1] neg_hi:[0,0,1]')
        for i in range(14): k.f(f'v_exp_f32 v{m+i}, v{m+i}')
        for i in range(14): k.f(f'v_exp_f32 v{p+i}, v{p+i}')
        k.f(f'v_pk_add_f32 {pr(s_+2)}, {pr(m)}, {pr(m+2)}\nv_pk_add_f32 {pr(s_)}, {pr(p)}, {pr(p+2)}')
        for i in range(2, 7): k.f(f'v_pk_add_f32 {pr(s_+2)}, {pr(s_+2)}, {pr(m+2*i)}\nv_pk_add_f32 {pr(s_)}, {pr(s_)}, {pr(p+2*i)}')
        k.f(f'v_add_f32 v{t+1}, v{s_+2}, v{s_+3}\nv_add_f32 v{t}, v{s_}, v{s_+1}\nv_add_f32 v{t+3}, v{s_+2}, v{s_+3}\nv_add_f32 v{t+2}, v{s_}, v{s_+1}')
        k.f(f's_waitcnt lgkmcnt(0)\nv_mov_b32 v{F[tt]+7}, 0')
        k.f(f'v_permlane32_swap_b32 v{t+1}, v{t+3}\nv_permlane32_swap_b32 v{t}, v{t+2}')
        k.f(f'v_pk_add_f32 {pr(t)}, {pr(t)}, {pr(t+2)}\nv_rcp_f32 v{t}, v{t}\nv_rcp_f32 v{t+1}, v{t+1}\nv_mov_b32 v{F[tt]+15}, 0')
        for i in range(7): k.f(f'v_pk_mul_f32 {pr(p+2*i)}, {pr(p+2*i)}, {pr(t)} op_sel_hi:[1,0]')
        for i in range(7): k.f(f'v_pk_mul_f32 {pr(m+2*i)}, {pr(m+2*i)}, {pr(t)} op_sel:[0,1] op_sel_hi:[1,1]')
        pack8(k, p, F[tt], 7); pack8(k, m, F[tt]+8, 7)
        if after: after(tt)

def kv_part(k):
    E = 192
    project(k, E)
    V = 168
    for tt in range(2):
        A_ = acc(1, tt)
        for i in range(16): k.f(f'v_mul_f32 v{A_+i}, v{A_+i}, v{vP3+2*tt}')
        k.f(f'v_cndmask_b32 v{A_+12}, v{A_+12}, 1.0, s[{sHm}:{sHm+1}]')
        k.f(f'v_cndmask_b32 v{A_+13}, v{A_+13}, 0, s[{sHm}:{sHm+1}]')
        pack8(k, A_, V + 8*tt)
        k.f(f'v_cndmask_b32 v{V+8*tt+7}, v{V+8*tt+7}, 0, s[{sHm}:{sHm+1}]')
        for q in range(2): k.f(f'ds_write_b128 v{vS0}, {v(V+8*tt+4*q,4)} offset:{tt*32*SP+128+16*q}')
    k.stamp(4, 3)
    def wr(tt):
        for sec in range(2):
            for q in range(2): k.f(f'ds_write_b128 v{vS0}, {v(168+8*sec+4*q,4)} offset:{tt*32*SP+64*sec+16*q}')
    softmaxes(k, [acc(1, 0), acc(1, 1)], [168, 168], after=wr)
    k.stamp(5, 3)
    k(f's_lshl_b32 s3, s{sJ}, 3\ns_add_u32 s3, s3, s{sRb}\ns_lshl_b32 s3, s3, 2\ns_add_u32 s3, s3, s{sWave}\ns_lshl_b32 s3, s3, 11\ns_add_u32 s{sC}, s3, {WS_KVP}')
    k('s_waitcnt lgkmcnt(0)\ns_barrier')
    k.stamp(6, 3)
    D = 208
    D = 204
    def rd(kk):
        base = 12*(kk % 5)
        for j2 in range(2):
            im = (32*kk + 2*j2)*SP
            k(f'ds_read_b64_tr_b16 {pr(base+2*j2)}, v{vS0+1} offset:{im}')
            for dt in range(2): k(f'ds_read_b64_tr_b16 {pr(base+4+4*dt+2*j2)}, v{vS0+2} offset:{im+128+16*dt}')
    rd(0); rd(1)
    for kk in range(8):
        if kk + 2 < 8: rd(kk + 2)
        k(f's_waitcnt lgkmcnt({min(12, 6*(7-kk))})')
        base = 12*(kk % 5)
        for dt in range(2):
            k(f'v_mfma_f32_16x16x32_bf16 {v(D+4*dt,4)}, {v(base,4)}, {v(base+4+4*dt,4)}, {"0" if kk == 0 else v(D+4*dt,4)}')
    k('s_barrier\ns_nop 6')
    k.scratch_free = True
    for dt in range(2): k.vmem(f'buffer_store_dwordx4 {v(D+4*dt,4)}, v{vS0+3}, {srd(SW)}, s{sC} offen offset:{256*dt} sc1', 'kvst')
    flag_store(k, sF2)
    k.stamp(8, 4)

QF = [128, 144]
def q_part(k):
    project(k, 96)
    for x in setup_q(): k.f(x)
    k.f('s_nop 3')
    softmaxes(k, [64, 80], QF, after=lambda tt: (k.run_timed('hst'), k.vmem(FL_LOAD(0), 'smp0')) if tt == k.opt.get('qsamp', 0) else None)

AC = 0; HB = 64
vPB, vPK = 160, 161
vPoll1, vPoll2 = 162, 163
vOUT = 168
vOA = 170
vRW, vRR = 174, 175
vKW, vKR = 177, 178
vV = 179
XR = 180
vSum = 192
vN = 204
aOF, aKF = 224, 240

def setup_early():
    return [x.strip().replace('|', '\n') for x in f'''v_lshlrev_b32 v{vPB}, 3, v{vL16}
    v_mov_b32 v{vPoll1}, {OOB}
    v_cmp_gt_u32 vcc, {16*8}, v{vL16}|s_nop 1|v_cndmask_b32 v{vPK}, v{vPoll1}, v{vPB}, vcc
    v_cmp_gt_u32 vcc, {16*4}, v{vL16}|s_nop 1|v_cndmask_b32 v{vPB}, v{vPoll1}, v{vPB}, vcc
    s_lshl_b32 s{sB}, s{sG2}, 2
    s_add_u32 s{sB}, s{sB}, s{sWave}
    s_lshl_b32 s{sT1}, s{sB}, 11
    s_add_u32 s{sT1}, s{sT1}, {WS_FL}
    s_mul_i32 s{sB}, s{sB}, {16*896}
    s_lshl_b32 s{sB2}, s{sNb}, 7
    s_add_u32 s{sB}, s{sB}, s{sB2}
    s_add_u32 s{sB2}, s{sB}, {8*896}
    s_mul_i32 s{sWo}, s{sWave}, {14*1024}
    s_add_u32 s{sWo}, s{sWo}, {WB}
    s_mul_i32 s{sWg}, s{sWave}, {(112-448)*896}
    s_add_u32 s{sWg}, s{sWg}, s{sDb}
    s_mul_i32 s{sOb}, s{sG2}, {144*2048}
    s_mul_i32 s{sH0}, s{sWave}, {28*2048}
    s_add_u32 s{sH0}, s{sH0}, s{sOb}
    s_lshl_b32 s{sH}, s{sWave}, 14
    s_add_u32 s{sOb}, s{sOb}, s{sH}
    s_add_u32 s{sOb}, s{sOb}, {112*2048}'''.split('\n')]

def setup_q():
    return [x.strip().replace('|', '\n') for x in f'''v_add_u32 v{vKR}, {L_KVF}, v{vL16}
    s_lshl_b32 s3, s{sWave}, 10|v_add_u32 v{vKW}, s3, v{vKR}
    s_lshl_b32 s{sT2}, s{sJ}, 2
    s_add_u32 s{sT2}, s{sT2}, s{sWave}
    s_lshl_b32 s{sT2}, s{sT2}, 10
    s_add_u32 s{sT2}, s{sT2}, {WS_KF}
    s_lshl_b32 s{sKb}, s{sJ}, 5
    s_add_u32 s{sKb}, s{sKb}, s{sWave}
    s_lshl_b32 s{sKb}, s{sKb}, 11
    s_add_u32 s{sKb}, s{sKb}, {WS_KVP}
    s_lshl_b32 s{sC2}, s{sJ}, 12
    s_add_u32 s{sC2}, s{sC2}, s{sHo}
    s_add_u32 s{sC2}, s{sC2}, {112*2048}'''.split('\n')]

def setup_late():
    T = vT + 8
    return [x.strip().replace('|', '\n') for x in f'''v_lshrrev_b32 v{T}, 7, v{vL16}
    v_mul_u32_u24 v{vOUT}, 896, v{T}
    v_and_b32 v{T+1}, 0x70, v{vL16}
    v_add_u32 v{vOUT}, v{vOUT}, v{T+1}
    v_mul_u32_u24 v{vRR}, {RP}, v{T}
    v_lshl_add_u32 v{vRR}, v{T+1}, 1, v{vRR}
    s_mul_i32 s3, s{sWave}, {16*RP}|v_add_u32 v{vRR}, s3, v{vRR}
    v_add_u32 v{vRR+1}, {2*XW}, v{vRR}
    v_bfe_u32 v{T}, v{vL16}, 4, 5
    v_mul_u32_u24 v{vRW}, {RP}, v{T}
    v_lshrrev_b32 v{T}, 9, v{vL16}
    v_lshl_add_u32 v{vRW}, v{T}, 4, v{vRW}
    v_add_u32 v{vRW}, s{sMx}, v{vRW}
    s_sub_u32 s3, s{sWo}, s{sMx}|v_add_u32 v{vOA}, s3, v{vDA}|v_add_u32 v{vOA+1}, s3, v{vDA+1}
    v_and_b32 v{T}, 0x200, v{vL16}
    v_sub_u32 v{vOA+2}, v{vOA}, v{T}
    v_sub_u32 v{vOA+3}, v{vOA+1}, v{T}'''.split('\n')] + [
        (f'buffer_load_dwordx4 {v(XR,4)}, v{vOUT}, {srd(SX)}, s{sB} offen', 'xr'), (f'buffer_load_dwordx4 {v(XR+4,4)}, v{vOUT}, {srd(SX)}, s{sB2} offen', 'xr')]

def o_steps(k):
    T = vT
    st = []
    st.append((0, [lambda: k.stamp(5, 4)] + [f'v_cvt_pk_bf16_f32 v{vSum+8+i}, v{vSum+2*i}, v{vSum+2*i+1}' for i in range(4)] + [f'ds_write_b128 v{vKW}, {v(vSum+8,4)}']))
    st.append((2, ['s_waitcnt lgkmcnt(0)', 's_barrier', lambda: k.stamp(6, 4)] + [f'ds_read_b128 {a(aKF+4*s_,4)}, v{vKR} offset:{s_*1024}' for s_ in range(4)]))
    mm = [f'v_mfma_f32_32x32x16_bf16 {v(vN+16*tt,16)}, {a(aKF+4*s_,4)}, {v(QF[tt]+4*s_,4)}, {"0" if s_ == 0 else v(vN+16*tt,16)}' for tt in range(2) for s_ in range(4)]
    st.append((3, ['s_waitcnt lgkmcnt(0)\n' + '\n'.join(mm) + '\ns_nop 7']))
    fin = []
    for tt in range(2):
        N = vN + 16*tt
        fin += [f'v_mov_b32 v{T}, v{N+12}', f'v_mov_b32 v{T+1}, v{N+12}', f'v_cndmask_b32 v{N+12}, v{N+12}, 0, s[{sHm}:{sHm+1}]', 's_nop 0', f'v_permlane32_swap_b32 v{T}, v{T+1}',
                f'v_add_f32 v{T}, {hex(f2u(1e-6))}, v{T+1}', f'v_rcp_f32 v{T}, v{T}', 's_nop 0']
        fin += [f'v_mul_f32 v{N+i}, v{N+i}, v{T}' for i in range(16)]
        fin += [f'v_cvt_pk_bf16_f32 v{N+i}, v{N+2*i}, v{N+2*i+1}' for i in range(8)]
        fin += [(f'buffer_store_dwordx4 {v(N+4*s_,4)}, v{vL16}, {srd(SW)}, s{sC2} offen offset:{2048*s_+1024*tt} sc1', 'ost') for s_ in range(2)]
    fin.append(lambda: (flag_store(k, sF2), k.stamp(8, 4)))
    st.append((0, fin))
    return st

FL_LOAD = lambda i: f'buffer_load_dword v{vPoll1}, v{vPB}, {srd(SW)}, s{sT1} offen offset:{512*i} sc1'
KF_LOAD = f'buffer_load_dword v{vPoll2}, v{vPK}, {srd(SW)}, s{sT2} offen sc1'

def validate(k, r0, r1, base, off):
    L = k.A.label('L_v')
    k(f's_mov_b32 s{sSpin}, 0\n{L}c:\nv_max3_u32 v{vV}, v{r0}, v{r0+1}, v{r0+2}\nv_max3_u32 v{vV}, v{vV}, v{r0+3}, v{r1}\nv_max3_u32 v{vV}, v{vV}, v{r1+1}, v{r1+2}\nv_max_u32 v{vV}, v{vV}, v{r1+3}')
    k(f'v_cmp_eq_u32 vcc, -1, v{vV}\ns_cbranch_vccnz {L}f\n{L}b:')
    k.tail.append(f'''{L}f:
    s_add_u32 s{sSpin}, s{sSpin}, 1
    s_cmp_gt_u32 s{sSpin}, {k.opt.get("spin", 200000)//64}
    s_cbranch_scc1 {L}b
    s_add_u32 s3, s{base}, {off}
    buffer_load_dwordx4 {v(r0,4)}, v{vL16}, {srd(SW)}, s3 offen sc1
    buffer_load_dwordx4 {v(r1,4)}, v{vL16}, {srd(SW)}, s3 offen offset:1024 sc1
    s_waitcnt vmcnt(0)
    s_branch {L}c''')

def o_only(k):
    spin(k, 'L_kq', KF_LOAD, f'v_cmp_eq_u32 vcc, -1, v{vPoll2}', None)
    k.vm = []
    for rb in range(8):
        k(f's_add_u32 s{sKc}, s{sKb}, {8192*rb}')
        for q in range(2): k.vmem(f'buffer_load_dwordx4 {v((8*rb if rb else vSum)+4*q,4)}, v{vL16}, {srd(SW)}, s{sKc} offen offset:{1024*q} sc1', f'kv{rb}')
    for rb in range(8):
        k.wait(f'kv{rb}')
        r = 8*rb if rb else vSum
        validate(k, r, r + 4, sKb, 8192*rb)
        if rb:
            for i in range(4): k(f'v_pk_add_f32 {pr(vSum+2*i)}, {pr(vSum+2*i)}, {pr(8*rb+2*i)}')
    for d, items in o_steps(k):
        for it in items: k.emit(it)

def phase2(k, typ):
    o = k.opt
    Lend = f'L_end{typ}'
    if typ == 'Q':
        k.run_timed('all')
        L = k.A.label('L_p2')
        k(f's_cmp_lg_u32 s{sNb}, 7\ns_cbranch_scc1 {L}')
        sv = (list(k.vm), k.t)
        o_only(k)
        k(f's_branch {Lend}\n{L}:')
        k.vm, k.t = sv
    NQ = 16 if typ == 'Q' else 24
    DEPTH = o.get('depth', 6)
    SAMP = o.get('samp', DEPTH)
    assert 2*(DEPTH + 1) <= NQ
    ent = [('h', i) for i in range(36)]
    if typ == 'Q':
        P = o.get('kvpos', 4)
        for rb in range(8): ent.insert(P + (2 if o.get('kvint', 0) else 1)*rb, ('kv', rb))
    gates = {ent.index(('h', 0)): ('L_g0', FL_LOAD(0), vPoll1, 0xf), ent.index(('h', 16)): ('L_g1', FL_LOAD(1), vPoll1, 0xf), ent.index(('h', 28)): ('L_g2', FL_LOAD(2), vPoll1, 0xf)}
    if typ == 'Q': gates[ent.index(('kv', 0))] = ('L_g3', KF_LOAD, vPoll2, 0xff)
    samples = {}
    for gi, g in gates.items():
        if ent[gi] != ('h', 0): samples.setdefault(max(0, gi - SAMP), []).append(gi)
    fill = deque(); hold = 0; done_kv = [False]
    def flush_fill():
        while fill:
            it = fill.popleft()
            if not isinstance(it, int): k.emit(it)
    def load(e, half):
        kind, i = ent[e]
        if half == 0:
            for gi in samples.get(e, []): k.vmem(gates[gi][1], f'smp{gi}')
            if e in gates:
                nm, ld, reg, mask = gates[e]
                if (kind, i) == ('h', 16): k.run_timed('all')
                if (kind, i) == ('h', 28):
                    assert typ == 'KV' or done_kv[0]
                    flush_fill()
                if (kind, i) == ('h', 0): k.stamp(5)
                gate(k, nm, 'smp0' if (kind, i) == ('h', 0) else f'smp{e}', ld, f'v_cmp_eq_u32 vcc, -1, v{reg}', None)
                if kind == 'h':
                    k.stamp({0: 6, 16: 7, 28: 8}[i])
                    if i == 28: k.stamp(9, 4)
                else: k.stamp(4, 4)
            if kind == 'h':
                if i == 28: k(f's_mov_b32 s{sH}, s{sOb}')
                elif i < 28 and i % 4 == 0: k(f's_bfe_u32 s{sH}, s{sMu}, {hex(0x40000 + i)}\ns_lshl_b32 s{sH}, s{sH}, 13\ns_add_u32 s{sH}, s{sH}, s{sH0}')
                elif i % 2 == 0: k(f's_add_u32 s{sH}, s{sH}, 4096')
            else: k(f's_add_u32 s{sKc}, s{sKb}, {8192*i}')
        r = HB + 4*((2*e + half) % NQ)
        if kind == 'h': k.vmem(f'buffer_load_dwordx4 {v(r,4)}, v{vL16}, {srd(SW)}, s{sH} offen offset:{(i&1)*2048 + half*1024} sc1', f'e{e}')
        else: k.vmem(f'buffer_load_dwordx4 {v(r,4)}, v{vL16}, {srd(SW)}, s{sKc} offen offset:{half*1024} sc1', f'e{e}')
    def oreads(ko):
        jj, s_ = ko >> 1, ko & 1; r = []
        for n in range(2):
            for j2 in range(2):
                va = vOA + n + (2 if (s_ == 1 and j2 == 1) else 0)
                d = aOF + 8*(ko & 1) + 4*n + 2*j2
                r.append(f'ds_read_b64_tr_b16 a[{d}:{d+1}], v{va} offset:{(28*jj + 16*s_ + 8*j2)*128}')
        return r
    nxt = 0
    def more(upto):
        nonlocal nxt
        while nxt < min(upto, 2*len(ent)):
            load(nxt >> 1, nxt & 1); nxt += 1
    more(2*DEPTH)
    for x in setup_late(): k.emit(x); k.tick()
    k.t += o.get('hlat', 500)
    def drain_fill(n):
        nonlocal hold
        while fill and n > 0:
            if isinstance(fill[0], int):
                if hold < fill[0]: return
                fill.popleft(); continue
            it = fill.popleft(); k.emit(it); n -= 1; hold = 0
    for e, (kind, i) in enumerate(ent):
        r0 = HB + 4*((2*e) % NQ); r1 = HB + 4*((2*e + 1) % NQ)
        if kind == 'kv':
            k.wait(f'e{e}')
            validate(k, r0, r1, sKb, 8192*i)
            for x in range(8):
                src = (r0 if x < 4 else r1 - 4) + x
                k(f'v_mov_b32 v{vSum+x}, v{src}' if i == 0 else f'v_add_f32 v{vSum+x}, v{vSum+x}, v{src}')
            if i == 7:
                for d, items in o_steps(k):
                    fill.append(d); fill.extend(items)
                hold = 0; done_kv[0] = True
            more(2*(e + DEPTH) + 2)
            k.t += 80; k.tick()
            if i == 7 and o.get('oblock', 1): flush_fill()
            continue
        if i < 28 and i % 4 == 0: k.force(f'r{i//4}')
        if i == 27:
            k.force('wo'); k.wait('wo')
            for r in oreads(0): k(r)
        k.wait(f'e{e}', extra='lgkmcnt(0)' if (i >= 28 or i % 4 == 0) else '')
        if i >= 28: validate(k, r0, r1, sOb, (i - 28)*2048)
        cnt = 0
        for tt in range(2):
            for n in range(2):
                D = AC + 32*n + 16*tt
                Af = a(8*i + 4*n, 4) if i < 28 else a(aOF + 8*((i-28) & 1) + 4*n, 4)
                k(f'v_mfma_f32_32x32x16_bf16 {v(D,16)}, {Af}, {v((r0, r1)[tt],4)}, {"0" if i == 0 else v(D,16)}')
                hold += 1
                if cnt == 0 and 28 <= i < 35:
                    for r in oreads(i - 27): k(r)
                if cnt == 1: more(2*(e + DEPTH) + 1)
                if cnt == 3: more(2*(e + DEPTH) + 2)
                drain_fill(5)
                if cnt in (0, 2): k.tick()
                cnt += 1
    assert not fill and not k.timed and not k.bg and not k.bg2
    k.stamp(9)
    k.wait('xr')
    for i in range(8): k(f'v_lshlrev_b32 v{128+2*i}, 16, v{XR+i}\nv_and_b32 v{128+2*i+1}, 0xffff0000, v{XR+i}')
    for tt in range(2):
        for n in range(2):
            for q in range(4): k(f'ds_write_b128 v{vRW}, {v(AC+32*n+16*tt+4*q,4)} offset:{tt*32*RP + n*128 + q*32}')
    k('s_waitcnt lgkmcnt(0)\ns_barrier')
    for it in range(2):
        for w in range(4):
            for hf in range(2):
                k(f'ds_read_b128 {v(64+32*it+8*w+4*hf,4)}, v{vRR+(w>>1)} offset:{(w&1)*XW + it*8*RP + 16*hf}')
    for it in range(2):
        for w in range(4):
            k(f's_waitcnt lgkmcnt({8*(1-it) + 2*(3-w)})')
            for i in range(4): k(f'v_pk_add_f32 {pr(128+8*it+2*i)}, {pr(128+8*it+2*i)}, {pr(64+32*it+8*w+2*i)}')
        for i in range(4): k(f'v_cvt_pk_bf16_f32 v{16+4*it+i}, v{128+8*it+2*i}, v{128+8*it+2*i+1}')
        k.vmem(f'buffer_store_dwordx4 {v(16+4*it,4)}, v{vOUT}, {srd(SOUT)}, s{sB2 if it else sB} offen {o.get("outfl", "sc1")}', 'out')
    k(f'{Lend}:')
    if o.get('probe'):
        k.stamp(10)
        k('s_waitcnt lgkmcnt(0)')
        if o['probe'][2] == 'rt': k('s_cmp_eq_u32 s98, 0\ns_cselect_b32 s98, s100, s98\ns_sub_u32 s98, s98, s100\ns_lshl_b32 s98, s98, 1')
        else: k('s_cmp_eq_u32 s98, 0\ns_cselect_b32 s98, s96, s98\ns_sub_u32 s98, s98, s96\ns_lshr_b32 s98, s98, 3')
        k(f's_add_u32 s98, s98, 3000\n{Lend}f:\ns_memrealtime s[{sC}:{sC+1}]\ns_waitcnt lgkmcnt(0)\ns_sub_u32 s3, s{sC}, s100\ns_cmp_lt_u32 s3, s98\ns_cbranch_scc1 {Lend}f')
    if o.get('fixdur'):
        k(f'{Lend}f:\ns_memrealtime s[{sC}:{sC+1}]\ns_waitcnt lgkmcnt(0)\ns_sub_u32 s3, s{sC}, s100\ns_cmp_lt_u32 s3, {o["fixdur"]}\ns_cbranch_scc1 {Lend}f')
    if o.get('stamps'):
        k(f'{"s_memrealtime" if o.get("rt") else "s_memtime"} s[{sA}:{sA+1}]\ns_memrealtime s[{sC}:{sC+1}]\ns_waitcnt lgkmcnt(0)')
        k(f's_lshl_b32 s3, s2, 2\ns_add_u32 s3, s3, s{sWave}\ns_lshl_b32 s3, s3, 6\ns_add_u32 s3, s3, {WS_STAMP}\nv_mov_b32 v40, s3\ns_mov_b64 exec, 1')
        k(f'v_mov_b32 v24, s100\nv_mov_b32 v25, s{sC}')
        for i in range(1, 10): k(f's_sub_u32 s3, s{STAMP0+2*i}, s{STAMP0}\nv_mov_b32 v{25+i}, s3')
        k(f's_sub_u32 s3, s{sA}, s{STAMP0}\nv_mov_b32 v35, s3')
        for q in range(3): k(f'buffer_store_dwordx4 {v(24+4*q,4)}, v40, {srd(SW)}, 0 offen offset:{16*q}')
    k('s_endpgm')
    for t in k.tail: k(t)
    k.tail = []

def body(k, typ):
    k.vm = list(k.vm0); k.reset_bg()
    main_loop(k, typ)
    k.scratch_free = (typ == 'Q')
    w2_background(k, lambda: k.scratch_free)
    k.stamp(3, 3)
    k('s_nop 3')
    if typ == 'Q':
        ffn_epilogue(k, typ)
        k.stamp(4); k.stamp(4, 3)
        q_part(k)
        k.stamp(5, 3)
    else:
        kv_part(k)
        k.stamp(7, 3)
        ffn_epilogue(k, typ, {tuple(k.opt.get('ksamp', (4, 0))): lambda: k.vmem(FL_LOAD(0), 'smp0')})
        k.stamp(4); k.stamp(8, 3)
    phase2(k, typ)

def generate(opt):
    k = K(opt); name = NAME + '_kernel'
    kernel_begin(k.A, name)
    prologue(k)
    k.vm0 = list(k.vm)
    body(k, 'KV')
    k('L_typeQ:')
    body(k, 'Q')
    k('L_codeend:')
    txt = k.A.text()
    if opt.get('align', 1):
        import align
        txt = align.align(txt)[0]
    return assemble_file([(name, 256, 256, NLDS)], txt, [kernel_desc(name, 512, accum=256)])

if __name__ == '__main__':
    import json, hazard
    opt = json.loads(sys.argv[2]) if len(sys.argv) > 2 else {}
    txt = generate(opt)
    open(sys.argv[1], 'w').write(txt)
    e = hazard.check(txt)
    print(len(txt), 'bytes of text;', len(e), 'hazards')
```

```python
import sys, struct, math
from collections import deque
from asmgen import *

def f2u(x): return struct.unpack('<I', struct.pack('<f', x))[0]

WS_H    = 0
WS_KVP  = 10 << 20
WS_ST   = 12 << 20
WS_FL   = WS_ST + 32768
WS_KF   = WS_FL + 65536
WS_CS   = WS_KF + 8192
WS_STAMP = 128 << 20
OOB = 0x40000000
NW = 8
XW = 24576
WB = 98304; WS_ = 20736
L_CS = WB + 57344
L_FLG = L_CS + 5120
L_PHI = 163840 - 2048
L_KVF = L_CS
SP = 208
NLDS = 163840

sWi, sP = 0, 1
sA, sA2, sB, sB2, sC, sC2 = 4, 5, 6, 7, 8, 9
sMx, sMa, sMf = 10, 11, 12
sT0, sT1, sT2 = 13, 14, 15
sFh, sF2 = 16, 17
sHm = 18
sG2, sNb, sDb, sHo = 20, 21, 22, 23
sSpin, sKap, sWave, sRb = 24, 25, 26, 27
SX, SQ, SG, SU, SD, SO, SW, SOUT, SDBG, SPH, SGU = 28, 32, 36, 40, 44, 48, 52, 56, 60, 64, 68
sG, sU, sJ, sCg, sSt, sXb, sQb, sFb = 72, 73, 74, 75, 76, 77, 78, 79
sMu, sH0, sFl, sRes = 32, 33, 34, 35
sH, sOb, sKb, sKf = 36, 37, 38, 39
sWo, sWg = 40, 41
sPl = 68
sOne = 42
SPF = 64
sPm, sPz = 18, 19
vPF = 111
STAMP0 = 80

def srd(n): return f's[{n}:{n+3}]'
def pr(r): return f'v[{r}:{r+1}]'
def items(t): return [x.strip().replace('|', '\n') for x in t.strip().split('\n')]

TRANS = ('v_exp_f32', 'v_rcp_f32', 'v_rsq_f32')
def cost(line):
    op = line.split()[0]
    if op.endswith(':') or op.startswith('.') or op.startswith(';'): return 0
    if op.startswith('v_mfma'): return 32 if '32x32' in op else 16
    if op in TRANS: return 8
    if op == 's_nop': return 4*(int(line.split()[1]) + 1)
    if op == 'ds_write_b128' or op.startswith('buffer_'): return 16
    return 4

class K:
    def __init__(self, opt):
        self.A = Asm(); self.vm = []; self.opt = opt
        self.t = 0; self.credit = 0; self.tail = []
        self.reset_bg()
    def reset_bg(self):
        self.bg = deque(); self.timed = []; self.lastbg = -10**9; self.inbg = False; self.done = {}
    def raw(self, t):
        for l in t.strip('\n').split('\n'):
            l = l.strip()
            if not l: continue
            self.A(l); c = cost(l)
            if l.startswith('v_mfma'): self.t += c; self.credit = c - 8
            else:
                u = min(c, self.credit); self.credit -= u; self.t += c - u
    def __call__(self, t): self.raw(t)
    def f(self, t):
        for l in t.strip('\n').split('\n'):
            l = l.strip()
            if l: self.raw(l); self.tick()
    def run_timed(self, force=None):
        for it in [x for x in self.timed if x[0] <= self.t or force == 'all' or x[2] == force]:
            self.timed.remove(it); it[1]()
    def pop_bg(self):
        g = self.bg.popleft()
        for it in g[1]: self.emit(it)
        self.lastbg = self.t
    def tick(self):
        if self.inbg: return
        self.inbg = True
        self.run_timed()
        if self.bg and self.t - self.lastbg >= self.bg[0][0]: self.pop_bg()
        self.inbg = False
    def flush(self):
        self.inbg = True
        while self.bg:
            self.pop_bg(); self.t += 40; self.run_timed()
        self.inbg = False
    def vmem(self, t, tag):
        if tag in self.opt.get('x_skip', []): return
        self.raw(t); self.vm.append(tag)
    def wait(self, *tags, extra=''):
        last = max((i for i, x in enumerate(self.vm) if x in tags), default=None)
        if last is None:
            if extra: self.raw(f's_waitcnt {extra}')
            return
        n = len(self.vm) - 1 - last
        assert n <= 63, n
        self.raw(f's_waitcnt vmcnt({n}) {extra}')
        self.vm = self.vm[len(self.vm)-n:] if n else []
    def stamp(self, i, grp=1):
        pb = self.opt.get('probe')
        if pb:
            if i == 0: self.A('s_memtime s[96:97]\ns_mov_b32 s98, 0')
            if [i, grp] == pb[:2]: self.A('s_memrealtime s[98:99]' if pb[2] == 'rt' else 's_memtime s[98:99]')
        if self.opt.get('stamps') and (i <= 2 or self.opt.get('stamps') == grp):
            self.A(f'{"s_memrealtime" if self.opt.get("rt") else "s_memtime"} s[{STAMP0+2*i}:{STAMP0+2*i+1}]')
    def emit(self, item):
        if callable(item): item()
        elif isinstance(item, tuple): self.vmem(*item)
        else: self.raw(item)
    def emit_all(self, its):
        for it in its: self.emit(it)

vXA = 96
vFA, vAP, vFP, vZF = 100, 103, 104, 107
vAA, vF3, vCA, vXP, vS0 = 100, 101, 102, 104, 108
vL16, vF0, vOne, vPoll, vPA = 112, 113, 114, 115, 116
vDA, vDP, vU0 = 117, 119, 123
vST, vP2, vP3 = 124, 128, 132
vMB = vT = 136
vCR, vWP = 64, 88
def acc(c, tt): return 32*c + 16*tt
def nT(role): return 2 if role == 'A' else 3
def fX(role, b, tt): return 112 - (2-b)*(8 + 4*nT(role)) + 4*tt
def fW(role, b, c): return fX(role, b, 0) + 8 + 4*c
def tile_id(typ, role, c):
    if typ == 'KV': return c if role == 'A' else 2 + c
    return (0, 4)[c] if role == 'A' else 1 + c

def post(k, sreg):
    k(f's_mov_b32 s{sOne}, 1\ns_atomic_add s{sOne}, s[{SW}:{SW+1}], s{sreg}')

def spin(k, name, load, conds, first_loaded=False):
    L = k.A.label(name)
    k(f's_mov_b32 s{sSpin}, 0')
    if first_loaded: k(f's_branch {L}c')
    k(f'{L}:\ns_add_u32 s{sSpin}, s{sSpin}, 1\ns_cmp_gt_u32 s{sSpin}, {k.opt.get("spin", 200000)}\ns_cbranch_scc1 {L}x\n' + (f's_sleep {k.opt["sleep"]}\n' if k.opt.get('sleep') else '') + load)
    k(f'{L}c:\ns_waitcnt lgkmcnt(0)')
    for r, n in conds: k(f's_cmp_lt_u32 s{r}, {n}\ns_cbranch_scc1 {L}')
    k(f'{L}x:')

def sync_post(k, n):
    k(f's_lshl_b32 s3, s{sWave}, 2\ns_add_u32 s3, s3, {L_FLG + 16*n}\nv_mov_b32 v{vPA}, s3\ns_mov_b64 exec, 1\ns_waitcnt lgkmcnt(0)\nds_write_b32 v{vPA}, v{vOne}\ns_mov_b64 exec, -1')
def sync_wait(k, n, R):
    L = k.A.label('L_sy')
    k(f'v_mov_b32 v{vPA}, {L_FLG + 16*n}\n{L}:\nds_read_b128 {v(R,4)}, v{vPA}\ns_waitcnt lgkmcnt(0)\nv_min3_u32 v{R}, v{R}, v{R+1}, v{R+2}\nv_min_u32 v{R}, v{R}, v{R+3}\nv_cmp_eq_u32 vcc, 0, v{R}\ns_cbranch_vccnz {L}')

def next_stage(first):
    return [] if first else [f's_add_u32 s{sSt}, s{sSt}, 1', f's_cmp_eq_u32 s{sSt}, 7', f's_cselect_b32 s{sSt}, 0, s{sSt}']

def xbatch(n_, slot):
    tag = f'b{n_}'; g = []
    for n in range(8):
        p = []
        if n == 0: p = next_stage(n_ == 0) + [f's_add_u32 m0, s{sMx}, {slot*8192}', f's_lshl_b32 s{sA}, s{sSt}, 7', f's_add_u32 s{sA}, s{sA}, s{sXb}']
        if n == 4: p = [f's_add_u32 m0, s{sMx}, {slot*8192+4096}', f's_add_u32 s{sA}, s{sA}, {32*896}']
        g.append(p + [(f'buffer_load_dwordx4 v{vXP+(n&3)}, {srd(SX)}, s{sA} offen offset:{(n&3)*1024} lds', tag)])
    return g

def wbatch(typ, n_, slot):
    tag = f'b{n_}'
    g = [next_stage(n_ == 0) + [f's_mul_i32 s{sB}, s{sSt}, {64*2688}', f's_add_u32 s{sB}, s{sB}, s{sQb}', f's_add_u32 m0, s{sMa}, {slot*WS_}',
         f's_mul_i32 s{sC}, s{sSt}, {64*3584}', (f'buffer_load_dwordx4 v{vAP}, {srd(SQ)}, s{sB} offen lds', tag)]]
    if typ == 'KV':
        g.append([f's_add_u32 m0, s{sMa}, {slot*WS_+4096}', f's_add_u32 s{sB2}, s{sB}, 896', (f'buffer_load_dwordx4 v{vAP}, {srd(SQ)}, s{sB2} offen lds', tag)])
        g.append([f's_add_u32 m0, s{sMf}, {slot*WS_}', f's_add_u32 s{sC}, s{sC}, s{sFb}', (f'buffer_load_dwordx4 v{vFP}, {srd(SGU)}, s{sC} offen lds', tag)])
        g.append([(f'buffer_load_dwordx4 v{vFP+1}, {srd(SGU)}, s{sC} offen offset:1024 lds', tag)])
        g.append([(f'buffer_load_dwordx4 v{vFP+2}, {srd(SGU)}, s{sC} offen offset:2048 lds', tag)])
    else:
        g.append([f's_add_u32 m0, s{sMf}, {slot*WS_}', f's_add_u32 s{sC}, s{sC}, s{sFb}', (f'buffer_load_dwordx4 v{vFP}, {srd(SG)}, s{sC} offen lds', tag)])
        g.append([f's_add_u32 s{sC2}, s{sC}, {8*3584-1024}', (f'buffer_load_dwordx4 v{vFP}, {srd(SG)}, s{sC2} offen offset:1024 lds', tag)])
        g.append([f's_add_u32 m0, s{sMf}, {slot*WS_+8192}', 's_nop 0', (f'buffer_load_dwordx4 v{vFP+1}, {srd(SU)}, s{sC} offen lds', tag)])
        g.append([(f'buffer_load_dwordx4 v{vFP+1}, {srd(SU)}, s{sC2} offen offset:1024 lds', tag)])
    return g

PSLOT = {'P': [8192 + 4096*j for j in (0, 1, 2, 3, 0, 1, 2)], 'S': [4096*(p & 1) for p in range(7)]}
def r2(typ, role): return 'P' if (typ == 'KV') == (role == 'A') else 'S'
def pbatch(role, p):
    g = []
    for n in range(4):
        pre = [f's_bfe_u32 s{sA}, s{sMu}, {hex(0x40000 + 4*p)}', f's_mul_i32 s{sA}, s{sA}, {32*896}', f's_add_u32 m0, s{sMx}, {PSLOT[role][p]}', f's_add_u32 s{sA}, s{sA}, s{sDb}'] if n == 0 else []
        g.append(pre + [(f'buffer_load_dwordx4 v{vDP+n}, {srd(SD)}, s{sA} offen offset:{n*1024} lds', f'd{p}')])
    return g
def preads(role, p):
    return [f'ds_read_b64_tr_b16 a[{16*p+8*kl+4*n+2*j2}:{16*p+8*kl+4*n+2*j2+1}], v{vDA+n} offset:{PSLOT[role][p] + (16*kl + 8*j2)*128}'
            for kl in range(2) for n in range(2) for j2 in range(2)]
def obatch():
    g = []
    for n in range(14):
        p = []
        if n % 4 == 0: p = [f's_add_u32 m0, s{sWo}, {n*1024}', f's_add_u32 s{sA2}, s{sWg}, {(n >> 2)*32*896}']
        g.append(p + [(f'buffer_load_dwordx4 v{vDP+(n&3)}, {srd(SO)}, s{sA2} offen offset:{(n&3)*1024} lds', 'wo')])
    return g

def wread(typ, role, c, slot, ks, j2):
    row = 16*ks + 4*j2
    if role == 'A':
        if typ == 'KV' or c == 0: return vAA, slot*WS_ + c*4096 + row*64
        return vF3, slot*WS_ + row*128
    if typ == 'KV': return vFA, slot*WS_ + row*96 + c*32
    return vFA + c, slot*WS_ + row*128

def frag_reads(typ, role, b, slot, ks):
    r = [f'ds_read_b128 {a(fX(role,b,0),4)}, v{vXA+ks} offset:{slot*8192}']
    for c in range(nT(role)):
        for j2 in range(2):
            va, im = wread(typ, role, c, slot, ks, j2)
            r.append(f'ds_read_b64_tr_b16 {a(fW(role,b,c)+2*j2,2)}, v{va} offset:{im}')
        if c == 0: r.append(f'ds_read_b128 {a(fX(role,b,1),4)}, v{vXA+ks} offset:{slot*8192+4096}')
    return r

def coop_prefetch(k):
    P, B, S, R = 4, 5, 6, 7
    npf = k.opt.get('npf', 0)
    k(f'''s_mul_i32 s{B}, s{sG}, 896
    s_lshr_b32 s3, s{B}, 2
    s_andn2_b32 s3, s3, 127
    s_cmp_eq_u32 s{sWave}, 3
    s_cselect_b32 s{B}, s3, s{B}
    s_movk_i32 s{P}, 3584
    s_cselect_b32 s{P}, 2688, s{P}
    s_movk_i32 s{S}, 512
    s_cselect_b32 s{S}, 896, s{S}
    s_mov_b32 s{sPm}, 0x007f007f
    s_cselect_b32 s{sPm}, 0x07770777, s{sPm}
    s_lshl_b32 s{R}, s{sCg}, 1
    s_lshl_b32 s{sPz}, s{P}, 6
    s_mul_i32 s{SPF+2}, s{P}, 448
    s_and_b32 s{sT1}, s2, 4
    s_lshl_b32 s3, s{sT1}, 3
    s_add_u32 s3, s3, s{sCg}
    s_lshl_b32 s3, s3, 5
    s_cmp_eq_u32 s{sWave}, 0
    s_cselect_b32 s{R}, s3, s{R}
    s_cselect_b32 s{P}, 896, s{P}
    s_cselect_b32 s{B}, 0, s{B}
    s_cselect_b32 s{sPm}, -1, s{sPm}
    s_cselect_b32 s{sPz}, 128, s{sPz}
    s_cselect_b32 s{SPF+2}, {2048*896}, s{SPF+2}
    s_cselect_b32 s3, 0, 4
    s_cselect_b32 s{sT0}, 0, 15
    s_mov_b32 s{SPF+3}, 0x20000
    v_and_b32 v9, 31, v0
    v_lshrrev_b32 v2, s3, v9
    v_add_u32 v2, s{R}, v2
    v_mul_lo_u32 v2, v2, s{P}
    v_and_b32 v3, s{sT0}, v0
    v_lshrrev_b32 v4, 2, v3
    v_mad_u32_u24 v2, v4, s{S}, v2
    v_and_b32 v3, 3, v3
    v_lshl_add_u32 v2, v3, 7, v2
    v_add_u32 v{vPF}, s{B}, v2
    s_lshr_b32 s3, s{sT2}, 2
    s_add_u32 s3, s3, s{sT1}
    s_mul_i32 s3, s3, s{sPz}
    s_mov_b32 exec_lo, s{sPm}
    s_mov_b32 exec_hi, 0
    s_waitcnt lgkmcnt(0)
    buffer_load_dword a1, v{vPF}, {srd(SPF)}, s3 offen''')
    if npf == 3:
        L = k.A.label('L_pf')
        k(f's_cmp_ge_u32 s{sT2}, 4\ns_cbranch_scc1 {L}\ns_lshl_b32 s{sT0}, s{sPz}, 1\ns_add_u32 s3, s3, s{sT0}\nbuffer_load_dword a1, v{vPF}, {srd(SPF)}, s3 offen\n{L}:')
    k('s_mov_b64 exec, -1')

def coop_later(k, steps):
    def fn():
        k(f's_mov_b32 exec_lo, s{sPm}\ns_mov_b32 exec_hi, 0')
        for st in steps:
            k(f's_bitcmp1_b32 s2, 2\ns_cselect_b32 s3, {(st + 4) % 7}, {st}\ns_mul_i32 s3, s3, s{sPz}')
            k.vmem(f'buffer_load_dword a1, v{vPF}, {srd(SPF)}, s3 offen', 'pf1')
        k('s_mov_b64 exec, -1')
    return fn

def prologue(k):
    o = k.opt
    k(f's_cmp_lt_u32 s2, 256\ns_cbranch_scc1 L_go\ns_endpgm\nL_go:')
    k.stamp(0)
    if o.get('stamps') or o.get('fixdur') or o.get('probe'): k('s_memrealtime s[100:101]')
    for n, off in ((SX, 0), (SQ, 8), (SG, 40), (SU, 48)): k(f's_load_dwordx2 s[{n}:{n+1}], s[0:1], {off}')
    k(f'v_lshrrev_b32 v1, 6, v0\ns_getpc_b64 s[20:21]\nL_pc:\nv_readfirstlane_b32 s{sT2}, v1')
    k(f's_lshr_b32 s{sCg}, s2, 3\nv_and_b32 v2, 0x1e0, v0\nv_add_u32 v2, s{sCg}, v2\nv_lshlrev_b32 v2, 7, v2\nv_min_u32 v2, L_codeend-L_pc-4, v2')
    k(f's_mov_b32 exec_lo, 1\ns_mov_b32 exec_hi, 1\nglobal_load_dword a0, v2, s[20:21]\ns_mov_b64 exec, -1')
    k(f's_and_b32 s{sWave}, s{sT2}, 3\ns_lshl_b32 s3, s{sWave}, 3\ns_lshr_b32 s3, 0x08302800, s3\ns_and_b32 s3, s3, 0xff\ns_load_dwordx2 s[{SPF}:{SPF+1}], s[0:1], s3')
    for n, off in ((SW, 80), (SD, 56), (SO, 24), (SDBG, 72), (SDBG+2, 16), (SOUT, 64)): k(f's_load_dwordx2 s[{n}:{n+1}], s[0:1], {off}')
    k(f'v_and_b32 v0, 63, v0\ns_and_b32 s{sG}, s2, 3')
    if o.get('npf', 0): coop_prefetch(k)
    k(f's_and_b32 s{sRb}, s{sCg}, 3\ns_and_b32 s3, s2, 4\ns_or_b32 s{sRb}, s{sRb}, s3\ns_lshr_b32 s{sU}, s{sCg}, 2')
    if o.get('rot', 4) == 4: k(f's_and_b32 s{sSt}, s{sRb}, 4')
    else:
        ra, rb_ = o['rot']
        k(f's_mul_i32 s{sSt}, s{sRb}, {ra}\ns_mul_i32 s3, s{sU}, {rb_}\ns_add_u32 s{sSt}, s{sSt}, s3\ns_mul_i32 s3, s{sSt}, 37\ns_lshr_b32 s3, s3, 8\ns_mul_i32 s3, s3, 7\ns_sub_u32 s{sSt}, s{sSt}, s3')
    k(f's_lshr_b32 s{sJ}, s{sU}, 1\ns_lshl_b32 s3, s{sG}, 2\ns_or_b32 s{sJ}, s{sJ}, s3\ns_mul_i32 s{sKap}, s{sG}, 28')
    k(f'v_lshrrev_b32 v1, 3, v0\nv_and_b32 v2, 7, v0\nv_lshlrev_b32 v{vL16}, 4, v0\nv_and_b32 v14, 3, v0')
    k(f's_lshl_b32 s{sHo}, s{sRb}, 2\ns_add_u32 s{sHo}, s{sHo}, s{sWave}\ns_mul_i32 s{sMx}, s{sWave}, {XW}')
    for n, size in ((SX, 2048*896), (SQ, 448*2688), (SG, 448*3584), (SU, 448*3584), (SGU, 448*3584)):
        k(f's_mov_b32 s{n+2}, {size}\ns_mov_b32 s{n+3}, 0x20000')
    k(f's_cmp_ge_u32 s{sT2}, 4\ns_cbranch_scc1 L_proF')
    k(f'''v_mul_u32_u24 v3, 896, v1
    v_lshrrev_b32 v4, 1, v1
    v_xor_b32 v5, v2, v4
    v_lshl_add_u32 v{vXP}, v5, 4, v3
    v_xor_b32 v5, 4, v5
    v_lshl_add_u32 v{vXP+1}, v5, 4, v3
    v_add_u32 v{vXP+1}, 6144, v{vXP+1}
    v_add_u32 v{vXP+2}, {2*6144}, v{vXP}
    v_add_u32 v{vXP+3}, {2*6144}, v{vXP+1}
    s_mul_i32 s{sXb}, s{sHo}, {64*896}
    s_waitcnt lgkmcnt(0)''')
    k.stamp(3, 5)
    for g in xbatch(0, 0): k.emit_all(g)
    k.stamp(4, 5)
    lane_setup(k)
    k(f's_bitcmp1_b32 s{sU}, 0\ns_cbranch_scc1 L_QA\ns_branch L_KVA')
    k('L_proF:')
    k(f'''v_lshrrev_b32 v6, 2, v0
    v_mul_u32_u24 v6, 2688, v6
    v_lshlrev_b32 v8, 4, v14
    v_min_u32 v8, 40, v8
    v_add_u32 v{vAP}, v6, v8
    s_mul_i32 s{sQb}, s{sWave}, {16*2688}
    s_mul_i32 s3, s{sJ}, 56
    s_add_u32 s{sQb}, s{sQb}, s3
    s_lshl_b32 s{sMa}, s{sWave}, 10
    s_add_u32 s{sMa}, s{sMa}, {WB}''')
    k(f's_bitcmp1_b32 s{sU}, 0\ns_cbranch_scc1 L_proFQ')
    for typ in ('KV', 'Q'):
        if typ == 'Q': k('L_proFQ:')
        kap_setup(k, typ); dma_setup(k, typ)
        k('s_waitcnt lgkmcnt(0)')
        if typ == 'KV': k(f's_cmp_lt_u32 s{sWave}, 2\ns_cselect_b32 s{SGU}, s{SG}, s{SU}\ns_cselect_b32 s{SGU+1}, s{SG+1}, s{SU+1}')
        k.stamp(3, 5)
        for g in wbatch(typ, 0, 0): k.emit_all(g)
        k.stamp(4, 5)
        lane_setup(k)
        k(f's_branch L_{typ}F')

def kap_setup(k, typ):
    if typ == 'KV':
        tbl = 0
        for j in range(16): tbl |= ([0,1,3,2][j & 3] if j < 8 else [1,0,2,3][j & 3]) << (2*j)
        k(f's_lshl_b32 s3, s{sJ}, 1\ns_lshr_b32 s3, {hex(tbl)}, s3\ns_and_b32 s3, s3, 3\ns_mul_i32 s3, s3, 3\ns_add_u32 s{sKap}, s{sKap}, s3\ns_add_u32 s{sKap}, s{sKap}, 16')
    else:
        k(f's_and_b32 s3, s{sJ}, 3\ns_lshl_b32 s3, s3, 2\ns_add_u32 s{sKap}, s{sKap}, s3')

def dma_setup(k, typ):
    if typ == 'KV':
        k(f's_add_u32 s{sQb}, s{sQb}, 896')
        k(f's_and_b32 s3, s{sWave}, 1\ns_mul_i32 s{sFb}, s3, {32*3584}\ns_lshl_b32 s{sT0}, s{sKap}, 5\ns_add_u32 s{sFb}, s{sFb}, s{sT0}')
        k(f's_mul_i32 s{sMf}, s3, 3072\ns_lshr_b32 s3, s{sWave}, 1\ns_mul_i32 s3, s3, 6272\ns_add_u32 s{sMf}, s{sMf}, s3\ns_add_u32 s{sMf}, s{sMf}, {WB+8192}')
        k(f's_movk_i32 s3, {3584-96}')
        for n in range(3):
            k(f'v_add_u32 v12, {64*n}, v0\nv_mul_u32_u24 v19, 171, v12\nv_lshrrev_b32 v19, 10, v19\nv_mad_u32_u24 v{vFP+n}, v19, s3, v{vL16}')
    else:
        k(f's_mul_i32 s{sFb}, s{sWave}, {16*3584}\ns_lshl_b32 s{sT0}, s{sKap}, 5\ns_add_u32 s{sFb}, s{sFb}, s{sT0}')
        k(f's_lshl_b32 s{sMf}, s{sWave}, 11\ns_add_u32 s{sMf}, s{sMf}, {WB+4096}')
        k(f'''v_and_b32 v12, 2, v1
        v_xor_b32 v12, v2, v12
        v_mul_u32_u24 v19, 3584, v1
        v_lshl_add_u32 v{vFP}, v12, 4, v19
        v_xor_b32 v12, 4, v12
        v_lshl_add_u32 v{vFP+1}, v12, 4, v19''')

def lane_setup(k):
    k(f'''v_and_b32 v9, 31, v0
    v_lshrrev_b32 v10, 5, v0
    v_bfe_u32 v18, v0, 1, 3
    v_lshlrev_b32 v12, 7, v9
    v_add_u32 v12, s{sMx}, v12''')
    for ks in range(4): k(f'v_or_b32 v13, {2*ks}, v10\nv_xor_b32 v13, v13, v18\nv_lshl_add_u32 v{vXA+ks}, v13, 4, v12')
    k(f'v_bfe_u32 v13, v0, 2, 2\nv_bfe_u32 v15, v0, 4, 1\nv_lshl_add_u32 v16, v10, 3, v13')

def read_setup(k, typ, role):
    if typ == 'KV':
        k(f'v_mul_u32_u24 v19, 96, v16\nv_mul_u32_u24 v20, 6272, v15\nv_lshlrev_b32 v12, 3, v14\nv_add3_u32 v19, v19, v20, v12')
        if role == 'F': k(f'v_add_u32 v{vFA}, {WB+8192}, v19')
        else: k(f's_min_u32 s3, s{sWave}, 2\ns_lshl_b32 s3, s3, 5\ns_add_u32 s3, s3, {WB+8192}\nv_add_u32 v{vCA}, s3, v19')
    else:
        k(f'v_lshlrev_b32 v19, 7, v16\nv_lshlrev_b32 v20, 13, v15\nv_lshlrev_b32 v12, 3, v14\nv_add3_u32 v19, v19, v20, v12\nv_add_u32 v19, {WB+4096}, v19\nv_lshrrev_b32 v20, 1, v13\nv_lshl_add_u32 v20, v15, 1, v20')
        if role == 'F':
            for seg in range(3): k(f'v_xor_b32 v12, {seg}, v20\nv_lshl_add_u32 v{vFA+seg}, v12, 5, v19')
        else: k(f'v_xor_b32 v12, 3, v20\nv_lshl_add_u32 v{vF3}, v12, 5, v19\nv_xor_b32 v12, s{sWave}, v20\nv_lshl_add_u32 v{vCA}, v12, 5, v19')
    if role == 'A':
        k(f'''v_lshl_add_u32 v17, v15, 2, v14
        v_cmp_lt_u32 vcc, 5, v17
        v_xor_b32 v18, 1, v17
        v_lshlrev_b32 v19, 6, v16
        v_cndmask_b32 v18, v17, v18, vcc
        v_add_u32 v19, {WB}, v19
        v_lshl_add_u32 v{vAA}, v18, 3, v19''')
        if typ == 'KV': k(f's_and_b32 s3, s{sWave}, 1\ns_lshl_b32 s3, s3, 12\nv_add_u32 v{vCA+1}, s3, v{vAA}')
        else: k(f'v_mov_b32 v{vCA+1}, v{vAA}')
        kap_setup(k, typ)
        k(f's_lshl_b32 s{sCg}, s{sG}, 3\ns_or_b32 s{sCg}, s{sCg}, s{sU}')
        k(f'v_mov_b32 v20, 0\nv_lshrrev_b32 v19, 2, v{vL16}\nv_add_u32 v19, {L_FLG}, v19\nds_write_b32 v19, v20')

def flag_addr_items(typ, role):
    return items(f'''s_mov_b32 s{SW+2}, {1 << 28}
    s_mov_b32 s{SW+3}, 0x20000
    s_lshl_b32 s{sFh}, s{sHo}, 2
    s_add_u32 s{sFh}, s{sFh}, s{sG}
    s_lshl_b32 s{sFh}, s{sFh}, 9
    s_add_u32 s{sFh}, s{sFh}, {WS_FL + (128 if (typ, role) == ('KV', 'F') else 0)}
    s_mul_i32 s{sHo}, s{sHo}, {144*2048}
    v_mov_b32 v{vPoll}, {OOB}
    v_mov_b32 v{vOne}, 1''')

vZ = 124
vCSt, vStSt = 108, 109
def cs_reads(typ, slot):
    p = 96 if typ == 'KV' else 128
    return [f'ds_read_b64_tr_b16 {pr(vCR+16*r+4*ks+2*j2)}, v{vCA+r} offset:{slot*WS_ + (16*ks+4*j2)*(64 if r else p)}' for r in range(2) for ks in range(4) for j2 in range(2)]

def init_items(k, typ):
    l, t, h, z0, z1, oob, m1, m0_ = vZ, vZ+1, vZ+2, vZ+3, vZ+4, vPoll, vZ+5, vZ+6
    it = flag_addr_items(typ, 'A') + items(f'''v_lshrrev_b32 v{l}, 4, v{vL16}
    v_and_b32 v{t}, 31, v{l}
    v_lshrrev_b32 v{h}, 5, v{l}
    s_lshl_b32 s{sT2}, s{sRb}, 5
    s_add_u32 s{sT2}, s{sT2}, s{sCg}
    s_lshl_b32 s{sT2}, s{sT2}, 2
    s_add_u32 s{sT2}, s{sT2}, s{sWave}
    s_mul_i32 s{sT1}, s{sT2}, {2*896}
    v_mul_u32_u24 v{z0}, 896, v{h}
    v_lshl_add_u32 v{z0}, v{t}, 4, v{z0}
    v_cmp_lt_u32 vcc, 27, v{t}|s_lshl_b32 s{sT2}, s{sT2}, 4|s_add_u32 s{sT2}, s{sT2}, {WS_ST}|v_cndmask_b32 v{z0}, v{z0}, v{oob}, vcc''')
    it.append(f'v_mov_b32 v{vS0+2}, v{z0}')
    k.srow = [(f'buffer_load_dwordx4 {v(vMB+4*i,4)}, v{vS0+2}, {srd(SX)}, s{sT1} offen offset:{448*i}', 'srow') for i in range(2)]
    it += items(f'''v_mov_b32 v{m1}, -1
    v_lshl_add_u32 v{z0}, v{l}, 2, s{sT2}
    v_cmp_lt_u32 vcc, 3, v{l}|s_nop 1|v_cndmask_b32 v{z0}, v{z0}, v{oob}, vcc|v_cndmask_b32 v{m0_}, v{m1}, 0, vcc''')
    if typ == 'KV':
        it += items(f'''s_lshl_b32 s{sF2}, s{sJ}, 2
        s_add_u32 s{sF2}, s{sF2}, s{sWave}
        s_lshl_b32 s{sF2}, s{sF2}, 7
        s_add_u32 s{sF2}, s{sF2}, {WS_KF}
        s_lshl_b32 s{sP}, s{sJ}, 3
        s_add_u32 s{sP}, s{sP}, s{sRb}
        s_lshl_b32 s{sP}, s{sP}, 2
        s_add_u32 s{sP}, s{sP}, s{sWave}
        s_lshl_b32 s{sP}, s{sP}, 11
        s_add_u32 s{sP}, s{sP}, {WS_KVP}
        s_cmp_eq_u32 s{sRb}, 0|s_cselect_b32 s3, s{sF2}, {OOB}|v_writelane_b32 v{z0}, s3, 4
        s_cmp_eq_u32 s{sU}, 0|s_cselect_b32 s3, s{sFh}, {OOB}|v_writelane_b32 v{z0}, s3, 5|s_add_u32 s3, s3, 128|v_writelane_b32 v{z0}, s3, 6|s_add_u32 s3, s3, 128|v_writelane_b32 v{z0}, s3, 7''')
    else:
        it += items(f'''s_add_u32 s{sF2}, s{sFh}, 256
        s_lshl_b32 s{sP}, s{sJ}, 12
        s_add_u32 s{sP}, s{sP}, s{sHo}
        s_add_u32 s{sP}, s{sP}, {112*2048}''')
    it += items(f'''    v_cmp_eq_u32 vcc, 0, v{t}|v_lshlrev_b32 v{z1}, 3, v{h}|s_lshl_b32 s{sT0}, s{sCg}, 3|v_cndmask_b32 v{vStSt}, v{oob}, v{z1}, vcc
    s_add_u32 s{sT0}, s{sT0}, s{sRb}
    s_mul_i32 s{sT0}, s{sT0}, 640
    s_add_u32 s{sT0}, s{sT0}, {WS_CS}
    v_lshl_add_u32 v{vCSt}, v{t}, 2, s{sT0}''')
    if typ == 'KV':
        it += items(f'''s_add_u32 s3, s{sWave}, 2|s_lshl_b32 s3, s3, 7|s_cmp_lt_u32 s{sWave}, 3|s_cselect_b32 s3, s3, {OOB}|v_mov_b32 v{z1}, s3
        s_lshl_b32 s3, s{sWave}, 7|s_cmp_lt_u32 s{sWave}, 2|s_cselect_b32 s3, s3, {OOB}|v_mov_b32 v{t}, s3''')
    else:
        it += items(f'''s_add_u32 s3, s{sWave}, 1|s_lshl_b32 s3, s3, 7|v_mov_b32 v{z1}, s3
        s_cmp_lt_u32 s{sWave}, 1|s_cselect_b32 s3, 0, {OOB}|v_mov_b32 v{t}, s3''')
    it += items(f'''s_mov_b32 s{sHm}, 0
    s_mov_b32 s{sHm+1}, -1
    v_cndmask_b32 v{z1}, v{z1}, v{t}, s[{sHm}:{sHm+1}]
    v_add_u32 v{vCSt}, v{vCSt}, v{z1}''')
    st = [(f'buffer_store_dword v{m0_}, v{z0}, {srd(SW)}, 0 offen sc1', 'fill'), (f'buffer_store_dword v{m1}, v{vCSt}, {srd(SW)}, 0 offen sc1', 'fill')]
    st2 = [f'v_mov_b32 v{72+i}, -1' for i in range(4)]
    st2 += [(f'buffer_store_dwordx4 v[72:75], v{vL16}, {srd(SW)}, s{sP} offen offset:{1024*i} sc1', 'fill2') for i in range(2 if typ == 'KV' else 4)]
    return it, st, st2

def cs_items(k):
    a0, a1, a2, a3, t = vZ+6, vZ+7, vZ+8, vZ+9, vZ+10
    it = []
    for r in range(2):
        lo, hi = (a0, a1) if r == 0 else (a2, a3)
        for i in range(16):
            x = vCR + 16*r + i
            if i == 0: it += [f'v_lshlrev_b32 v{lo}, 16, v{x}', f'v_and_b32 v{hi}, 0xffff0000, v{x}']
            else: it += [f'v_lshlrev_b32 v{t}, 16, v{x}', f'v_and_b32 v{x}, 0xffff0000, v{x}', f'v_add_f32 v{lo}, v{lo}, v{t}', f'v_add_f32 v{hi}, v{hi}, v{x}']
    it += items(f'''v_add_f32 v{a0}, v{a0}, v{a1}
    v_add_f32 v{a2}, v{a2}, v{a3}|s_cmp_eq_u32 s{sRb}, 7|s_cselect_b32 s{sT0}, 0, -1|v_permlane32_swap_b32 v{a0}, v{a2}
    v_add_f32 v{a0}, v{a0}, v{a2}
    v_cvt_pk_bf16_f32 v{a1}, v{a0}, v{a0}
    v_lshlrev_b32 v{a1}, 16, v{a1}
    v_sub_f32 v{a1}, v{a0}, v{a1}
    v_cvt_pk_bf16_f32 v{a1}, v{a0}, v{a1}
    v_and_b32 v{a1}, s{sT0}, v{a1}''')
    return it, [lambda: k.wait('fill'), (f'buffer_store_dword v{a1}, v{vCSt}, {srd(SW)}, 0 offen sc1', 'csst')]

def stats_items(k):
    X = vMB; Lo = 128; s1, s0, r1, t = 124, 125, 126, 127
    it = [lambda: k.wait('srow')]
    for i in range(8): it += [f'v_lshlrev_b32 v{Lo+i}, 16, v{X+i}', f'v_and_b32 v{X+i}, 0xffff0000, v{X+i}']
    it += [f'v_add_f32 v{s0}, v{Lo}, v{X}', f'v_add_f32 v{s1}, v{Lo+1}, v{X+1}']
    for i in range(2, 8): it += [f'v_add_f32 v{s0}, v{s0}, v{Lo+i}', f'v_add_f32 v{s1}, v{s1}, v{X+i}']
    def red(r):
        o_ = []
        for m in ('quad_perm:[1,0,3,2]', 'quad_perm:[2,3,0,1]', 'row_half_mirror', 'row_mirror'):
            o_.append(f's_nop 1\nv_add_f32_dpp v{r}, v{r}, v{r} {m} row_mask:0xf bank_mask:0xf')
        return o_ + [f'v_mov_b32 v{t}, v{r}', f's_nop 1\nv_permlane16_swap_b32 v{r}, v{t}', f'v_add_f32 v{r}, v{r}, v{t}']
    it += [f'v_add_f32 v{s0}, v{s0}, v{s1}'] + red(s0) + [f'v_mul_f32 v{s0}, {hex(f2u(-1.0/448))}, v{s0}']
    for i in range(8): it += [f'v_add_f32 v{Lo+i}, v{Lo+i}, v{s0}', f'v_add_f32 v{X+i}, v{X+i}, v{s0}']
    it += [f'v_mul_f32 v{s1}, v{Lo}, v{Lo}', f'v_mul_f32 v{r1}, v{X}, v{X}']
    for i in range(1, 8): it += [f'v_fmac_f32 v{s1}, v{Lo+i}, v{Lo+i}', f'v_fmac_f32 v{r1}, v{X+i}, v{X+i}']
    it += ['s_mov_b32 vcc_lo, 0xf0000000', 's_mov_b32 vcc_hi, 0xf0000000', f'v_add_f32 v{r1}, v{r1}, v{s1}', f'v_cndmask_b32 v{r1}, v{r1}, 0, vcc']
    it += red(r1) + [f'v_mov_b32 v{s1}, {hex(f2u(1e-5))}', f'v_fmac_f32 v{s1}, {hex(f2u(1.0/448))}, v{r1}']
    return it + [lambda: k.wait('fill'), (f'buffer_store_dwordx2 v[{s1}:{s0}], v{vStSt}, {srd(SW)}, s{sT2} offen sc1', 'stst')]

def w2_addr_items(role, Z):
    l, a_, b_, c_, d_ = Z, Z+1, Z+2, Z+3, Z+4
    it = []
    for n, size in ((SD, 1792*896), (SO, 448*896), (SOUT, 2048*896)): it += [f's_mov_b32 s{n+2}, {size}', f's_mov_b32 s{n+3}, 0x20000']
    it += items(f'''s_and_b32 s{sG2}, s2, 7
    s_lshl_b32 s{sG2}, s{sG2}, 2
    s_bfe_u32 s{sNb}, s2, 0x20003
    s_or_b32 s{sG2}, s{sG2}, s{sNb}
    s_lshr_b32 s{sNb}, s2, 5
    s_lshl_b32 s{sDb}, s{sNb}, 7
    s_mul_i32 s3, s{sWave}, {448*896}|s_add_u32 s{sDb}, s{sDb}, s3
    v_lshrrev_b32 v{l}, 4, v{vL16}
    v_lshrrev_b32 v{a_}, 3, v{l}
    v_mul_u32_u24 v{b_}, 896, v{a_}
    v_and_b32 v{a_}, 2, v{a_}
    v_lshlrev_b32 v{a_}, 1, v{a_}
    v_and_b32 v{c_}, 7, v{l}
    v_xor_b32 v{a_}, v{a_}, v{c_}
    v_lshl_add_u32 v{vDP}, v{a_}, 4, v{b_}
    s_cmp_eq_u32 s{sNb}, 7|s_cselect_b32 s3, {OOB}, 0|v_add_u32 v{vDP}, s3, v{vDP}
    v_add_u32 v{vDP+1}, 6144, v{vDP}
    v_add_u32 v{vDP+2}, {2*6144}, v{vDP}
    v_add_u32 v{vDP+3}, {3*6144}, v{vDP}
    v_bfe_u32 v{a_}, v{l}, 2, 2
    v_lshrrev_b32 v{b_}, 5, v{l}
    v_lshl_add_u32 v{b_}, v{b_}, 2, v{a_}
    v_bfe_u32 v{c_}, v{l}, 4, 1
    v_and_b32 v{d_}, 3, v{l}
    v_lshl_add_u32 v{c_}, v{c_}, 2, v{d_}
    v_lshlrev_b32 v{d_}, 7, v{b_}
    v_lshl_add_u32 v{d_}, v{c_}, 3, v{d_}
    v_add_u32 v{d_}, s{sMx}, v{d_}
    v_lshrrev_b32 v{a_}, 1, v{a_}
    v_lshl_add_u32 v{vDA}, v{a_}, 6, v{d_}
    v_xor_b32 v{a_}, 1, v{a_}
    v_lshl_add_u32 v{vDA+1}, v{a_}, 6, v{d_}''')
    if role == 'A':
        it += items(f'''v_mul_u32_u24 v{b_}, 56, v{b_}
        v_min_u32 v{c_}, 6, v{c_}
        v_lshl_add_u32 v{b_}, v{c_}, 3, v{b_}
        v_add_u32 v{vU0}, {L_PHI}, v{b_}''')
    return it

def p2_scalar_items(k, role):
    it = items(f'''s_and_b32 s{sT0}, s{sG2}, 3
    s_lshl_b32 s{sT0}, s{sT0}, 1''')
    if k.opt.get('rotnb', 1): it += items(f'''s_add_u32 s{sT0}, s{sT0}, s{sNb}
    s_cmp_ge_u32 s{sT0}, 7|s_cselect_b32 s3, 7, 0|s_sub_u32 s{sT0}, s{sT0}, s3''')
    it += items(f'''s_lshl_b32 s{sT0}, s{sT0}, 2
    s_lshr_b32 s{sMu}, 0x6543210, s{sT0}
    s_sub_u32 s{sT0}, 28, s{sT0}
    s_lshl_b32 s{sT0}, 0x6543210, s{sT0}
    s_or_b32 s{sMu}, s{sMu}, s{sT0}
    s_lshl_b32 s{sRes}, s{sG2}, 2
    s_add_u32 s{sFl}, s{sRes}, s{sWave}
    s_lshl_b32 s{sFl}, s{sFl}, 9
    s_add_u32 s{sFl}, s{sFl}, {WS_FL}
    s_lshl_b32 s{sRes}, s{sRes}, 1
    s_add_u32 s{sRes}, s{sRes}, s{sWave}
    s_mul_i32 s{sRes}, s{sRes}, {8*896}
    s_lshl_b32 s{sH}, s{sNb}, 7
    s_add_u32 s{sRes}, s{sRes}, s{sH}
    s_mul_i32 s{sOb}, s{sG2}, {144*2048}
    s_mul_i32 s{sH0}, s{sWave}, {28*2048}
    s_add_u32 s{sH0}, s{sH0}, s{sOb}''')
    if role == 'P': it += [f's_add_u32 s{sRes}, s{sRes}, {32*896}']
    else:
        it += items(f'''s_mul_i32 s{sWo}, s{sWave}, {14*1024}
        s_add_u32 s{sWo}, s{sWo}, {WB}
        s_mul_i32 s{sWg}, s{sWave}, {(112-448)*896}
        s_add_u32 s{sWg}, s{sWg}, s{sDb}
        s_add_u32 s{sDb}, s{sDb}, {224*896}
        s_add_u32 s{sH0}, s{sH0}, {14*2048}
        s_lshl_b32 s{sH}, s{sWave}, 14
        s_add_u32 s{sOb}, s{sOb}, s{sH}
        s_add_u32 s{sOb}, s{sOb}, {112*2048}
        s_lshl_b32 s{sKf}, s{sJ}, 2
        s_add_u32 s{sKf}, s{sKf}, s{sWave}
        s_lshl_b32 s{sKf}, s{sKf}, 7
        s_add_u32 s{sKf}, s{sKf}, {WS_KF}
        s_lshl_b32 s{sKb}, s{sJ}, 5
        s_add_u32 s{sKb}, s{sKb}, s{sWave}
        s_lshl_b32 s{sKb}, s{sKb}, 11
        s_add_u32 s{sKb}, s{sKb}, {WS_KVP}''')
    return it

def prefetch2(k, Z, i):
    it = [f's_lshl_b32 s3, s{sWave}, 8\ns_add_u32 s3, s3, s2\nv_lshl_add_u32 v{Z}, v{vL16}, 6, s3', f'v_lshlrev_b32 v{Z}, 7, v{Z}'] if i == 0 else []
    def ld():
        k(f's_mov_b64 exec, {(0x1f, 0x1e0, 0x1e00, 0xf)[i]}')
        k.vmem(f'buffer_load_dword a0, v{Z}, {srd(SD if i < 3 else SO)}, 0 offen', 'pf2')
        k('s_mov_b64 exec, -1')
    return it + [ld]

def kv_addr_items():
    a_, b_, l = 76, 77, 78
    return items(f'''v_lshrrev_b32 v{l}, 4, v{vL16}
        v_and_b32 v{a_}, 31, v{l}
        v_mul_u32_u24 v{a_}, {SP}, v{a_}
        v_and_b32 v{b_}, 32, v{l}
        s_mul_i32 s3, s{sWave}, {64*SP}|s_add_u32 s3, s3, {WB}|v_add3_u32 v{vS0}, v{a_}, v{b_}, s3
        v_lshrrev_b32 v{a_}, 4, v{l}
        v_lshlrev_b32 v{a_}, 3, v{a_}
        v_bfe_u32 v{b_}, v{l}, 2, 1
        v_add_u32 v{a_}, v{a_}, v{b_}
        v_bfe_u32 v{b_}, v{l}, 3, 1
        v_lshl_add_u32 v{a_}, v{b_}, 2, v{a_}
        v_mul_u32_u24 v{a_}, {SP}, v{a_}
        v_and_b32 v{b_}, 1, v{l}
        v_lshl_add_u32 v{a_}, v{b_}, 5, v{a_}
        v_bfe_u32 v{b_}, v{l}, 1, 1
        v_lshl_add_u32 v{a_}, v{b_}, 3, v{a_}
        v_add_u32 v{vS0+2}, {WB}, v{a_}
        s_lshl_b32 s3, s{sWave}, 3|s_lshr_b32 s3, 0x50401000, s3|s_and_b32 s3, s3, 0xff|v_add_u32 v{vS0+1}, s3, v{vS0+2}
        v_lshrrev_b32 v{a_}, 4, v{l}
        v_lshlrev_b32 v{a_}, 9, v{a_}
        v_and_b32 v{b_}, 15, v{l}
        v_lshl_add_u32 v{vS0+3}, v{b_}, 4, v{a_}''')

vCL = 64
def st_loads(role):
    r = [f'buffer_load_dwordx2 v[{vST+2*tt}:{vST+2*tt+1}], v{vPA}, {srd(SW)}, s{sT2} offen offset:{256*tt} sc1' for tt in range(2)]
    if role == 'A': r += [f'buffer_load_dword v{vCL+c}, v{vU0}, {srd(SW)}, s{sC} offen offset:{128*c} sc1' for c in range(5)]
    return r
def st_check(role):
    regs = [vST+i for i in range(4)] + ([vCL+i for i in range(5)] if role == 'A' else [vST])
    r = [f'v_max3_u32 v{vPoll}, v{regs[0]}, v{regs[1]}, v{regs[2]}']
    for i in range(3, len(regs), 2): r.append(f'v_max3_u32 v{vPoll}, v{vPoll}, v{regs[i]}, v{regs[i+1]}')
    return r

def main_loop(k, typ, role):
    o = k.opt
    A_role = role == 'A'; R2 = r2(typ, role)
    mkb = (lambda n: xbatch(n, n % 3)) if A_role else (lambda n: wbatch(typ, n, n % 3))
    k.vm = ['b0']*(8 if A_role else 5)
    read_setup(k, typ, role)
    pend = mkb(1)
    npre = o.get('preA', 4) if A_role else o.get('preF', 5)
    for g in pend[:npre]: k.emit_all(g)
    pend = pend[npre:]
    k.stamp(1)
    k.wait('b0', extra='lgkmcnt(0)')
    k('s_barrier')
    k.stamp(2)
    k.emit_all(frag_reads(typ, role, 0, 0, 0))
    if o.get('pm', 1) == 1: k(f's_setprio {2 if A_role else 1}')
    if o.get('pm', 1) == 2 and not A_role: k('s_setprio 1')
    pend += mkb(2)
    AT = tuple(o.get('atomat', (1, 3)))
    if A_role:
        ini, fills, fills2 = init_items(k, typ)
        csv, cspub = cs_items(k)
        lazy = list(ini); phase = 0
    else:
        phi = [f's_mov_b32 s{SPH}, s{SDBG+2}', f's_mov_b32 s{SPH+1}, s{SDBG+3}', f's_mov_b32 s{SPH+2}, {16*1568}', f's_mov_b32 s{SPH+3}, 0x20000', f's_and_b32 s{sC2}, s{sWave}, 1', f's_lshl_b32 s{sC2}, s{sC2}, 10', f's_add_u32 m0, s{sC2}, {L_PHI}',
               f's_mul_i32 s{sB}, s{sJ}, 1568', f's_add_u32 s{sB}, s{sB}, s{sC2}', (f'buffer_load_dwordx4 v{vL16}, {srd(SPH)}, s{sB} offen lds', 'b5')]
        lazy = []
    c0 = -2*math.sqrt(2/math.pi)*math.log2(math.e)
    n = nT(role); ng = 2*n; spare = False
    order = [1, 0] if (typ, role) == ('Q', 'A') else list(range(n))
    for (s, ks) in [(s, ks) for s in range(7) for ks in range(4)] + [(7, 0)]:
        slot = s % 3; b = (4*s + ks) & 1
        reads = []; extra = []; pre_bar = []
        if s < 7:
            if ks < 3: reads = frag_reads(typ, role, b ^ 1, slot, ks+1)
            elif s < 6: reads = frag_reads(typ, role, b ^ 1, (s+1) % 3, 0)
            else: reads = [f'ds_read_b128 {a(fW(role,b^1,c),4)}, v{vU0} offset:{tile_id(typ,role,c)*1024}' for c in order]
        if A_role:
            ROT4 = o.get('rot', 4) == 4
            if s < (4 if ROT4 else 1) and ks in (0, 1):
                def csr(s=s, ks=ks):
                    L = k.A.label('L_cs')
                    if ROT4: k(f's_and_b32 s3, s{sRb}, 3\ns_cmp_lg_u32 s3, {s}\ns_cbranch_scc1 {L}')
                    k.emit_all(cs_reads(typ, s % 3)[8*ks:8*ks+8])
                    k(f'{L}:')
                extra.append(csr)
            if phase == 0 and not lazy and (s, ks) >= (0, 3): lazy += fills; phase = 1
            if phase == 1 and not lazy and (s, ks) > AT:
                lazy += stats_items(k) + w2_addr_items('A', 128); phase = 2
            if phase == 2 and not lazy and (s, ks) >= ((3, 2) if ROT4 else (0, 2)):
                lazy += csv + cspub + p2_scalar_items(k, R2); phase = 3
            if (s, ks) == (4, 2):
                assert phase == 3
                extra += lazy; lazy = []
            for i_, at in enumerate(o.get('srowat', [(0, 2), (1, 1)])):
                if (s, ks) == tuple(at): extra.append(k.srow[i_])
            if (s, ks) == AT:
                assert phase == 1 and not lazy
                def atom():
                    L = k.A.label('L_at')
                    k(f's_cmp_lg_u32 s{sWave}, 0\ns_cbranch_scc1 {L}\ns_and_b32 s3, s2, 1\ns_lshl_b32 s3, s3, 7\ns_mov_b32 s{sOne}, 1\ns_atomic_add s{sOne}, s[{SDBG}:{SDBG+1}], s3\n{L}:')
                if 'atom' not in o.get('x_skip', []): extra.append(atom)
            if (s, ks) == (4, 3):
                reads += [f'ds_read_b64_tr_b16 {pr(vWP+4*s_+2*j2)}, v{vU0} offset:{(16*s_+8*j2)*56}' for s_ in range(2) for j2 in range(2)]
            if (s, ks) == tuple(o.get('fill2at', (5, 1))) and o.get('sent'): extra += fills2
            if (s, ks) == (5, 0):
                extra += [f'v_mov_b32_dpp v{vWP+i}, v{vWP+i} quad_perm:[2,3,2,3] row_mask:0xa bank_mask:0x8' for i in range(8)]
                extra += [f'v_cndmask_b32 v{vWP+i}, v{vWP+i}, 0, s[{sHm}:{sHm+1}]' for i in (6, 7)]
                if typ == 'KV': lazy += kv_addr_items()
            IL = f'buffer_load_dword v{vPoll}, v{vPA}, {srd(SDBG)}, 0 offen sc1'
            if (s, ks) == tuple(o.get('isamp', (5, 1))):
                extra += [f's_mov_b32 s{SDBG+2}, 256', f's_mov_b32 s{SDBG+3}, 0x20000', f'v_lshlrev_b32 v{vPA}, 3, v{vL16}', (IL, 'ipoll')]
            if (s, ks) == (5, 3):
                def igate():
                    k.wait('ipoll')
                    L = k.A.label('L_in')
                    C = f'v_cmp_gt_u32 vcc, 128, v{vPoll}\ns_and_b32 s3, vcc_lo, 3'
                    k(f'{C}\ns_cbranch_scc1 {L}f\n{L}b:')
                    k.tail.append(f'{L}f:\ns_mov_b32 s{sSpin}, 0\n{L}l:\n{IL}\ns_add_u32 s{sSpin}, s{sSpin}, 1\ns_waitcnt vmcnt(0)\n{C}\ns_cbranch_scc0 {L}b\ns_cmp_lt_u32 s{sSpin}, {o.get("spin", 200000)}\ns_cbranch_scc1 {L}l\ns_branch {L}b')
                if 'ipoll' not in o.get('x_skip', []): pre_bar.append(igate)
        else:
            if (s, ks) == (0, 0): lazy += w2_addr_items('F', 124) + flag_addr_items(typ, 'F')
            if o.get('npf', 0):
                for at, steps in o.get('pf1at', [[(0, 0), [2, 3]], [(1, 2), [4, 5, 6]]]):
                    assert tuple(at) < (2, 3)
                    if (s, ks) == tuple(at): extra.append(coop_later(k, steps))
            for i_, at in enumerate(o.get('pf2at', [(2, 0), (2, 2), (3, 0), (3, 2)])):
                if (s, ks) == tuple(at) and o.get('pf2', 1): lazy += prefetch2(k, vZF, i_)
            if (s, ks) == (4, 3):
                assert not pend and not lazy
                pre_bar += p2_scalar_items(k, R2)
            if (s, ks) == (6, 3) and o.get('endprio', 1): pre_bar.append('s_setprio 3')
        if R2 == 'P':
            if (s, ks) == (4, 3): pend += pbatch('P', 0) + pbatch('P', 1)
            if (s, ks) == (5, 3): pend += pbatch('P', 2) + pbatch('P', 3)
            if (s, ks) == (6, 0): extra += [lambda: k.wait('d1')] + preads('P', 0) + preads('P', 1)
            if (s, ks) == (6, 1): pend += pbatch('P', 4) + pbatch('P', 5)
            if (s, ks) == (6, 3): extra += [lambda: k.wait('d3')] + preads('P', 2) + preads('P', 3)
            if (s, ks) == (7, 0): pend += pbatch('P', 6)
        elif (s, ks) == (6, 3): pend += pbatch('S', 0) + pbatch('S', 1)
        if (s, ks) == (5, 3):
            extra += items(f'''v_bfe_u32 v{vPA}, v{vL16}, 1, 8
            s_lshl_b32 s{sT2}, s{sRb}, 2
            s_add_u32 s{sT2}, s{sT2}, s{sWave}
            s_lshl_b32 s{sT2}, s{sT2}, 9
            s_add_u32 s{sT2}, s{sT2}, {WS_ST}''')
            if A_role: extra += items(f'''v_lshrrev_b32 v{vPoll}, 9, v{vL16}
            v_mul_u32_u24 v{vPoll}, 640, v{vPoll}
            v_lshrrev_b32 v{vU0}, 1, v{vPA}
            v_add_u32 v{vU0}, v{vU0}, v{vPoll}
            s_lshl_b32 s{sC}, s{sCg}, 2
            s_add_u32 s{sC}, s{sC}, s{sWave}
            s_mul_i32 s{sC}, s{sC}, 1280
            s_add_u32 s{sC}, s{sC}, {WS_CS}''')
            extra += [(l, 'stld') for l in st_loads(role)]
        if (s, ks) == (6, 2):
            extra.append(lambda: k.wait('stld'))
            extra += st_check(role)
            def chk2():
                L = k.A.label('L_st')
                k(f'v_cmp_eq_u32 vcc, -1, v{vPoll}\ns_cbranch_vccnz {L}f\n{L}b:')
                k.tail.append(f'{L}f:\ns_mov_b32 s{sSpin}, 0\n{L}l:\n' + '\n'.join(st_loads(role)) + f'\ns_add_u32 s{sSpin}, s{sSpin}, 1\ns_waitcnt vmcnt(0)\n' + '\n'.join(st_check(role)) +
                              f'\nv_cmp_eq_u32 vcc, -1, v{vPoll}\ns_cbranch_vccz {L}b\ns_cmp_lt_u32 s{sSpin}, {o.get("spin", 200000)}\ns_cbranch_scc1 {L}l\ns_branch {L}b')
            if not o.get('x_skip'): extra.append(chk2)
            extra.append(f'v_add_u32 v{vU0}, {L_CS}, v{vL16}')
            if A_role:
                extra.append(f's_lshl_b32 s3, s{sWave}, 2\nv_add_u32 v{vPoll}, s3, v{vU0}')
                extra += [f'ds_write_b32 v{vPoll}, v{vCL+c} offset:{c*1024}' for c in range(5)]
        if (s, ks) == (6, 3):
            for tt in range(2): extra += [f'v_cvt_pk_bf16_f32 v{vMB+4*tt+i}, v{vST+2*tt+1}, v{vST+2*tt+1}' for i in range(4)]
            for tt in range(2): extra.append(f'v_rsq_f32 v{vP2+2*tt+1}, v{vST+2*tt}')
            extra.append('s_nop 0')
            for tt in range(2):
                kap = vP2 + 2*tt + 1
                if (typ, role) != ('KV', 'A'):
                    extra += [f'v_mul_f32 v{vPoll}, v{kap}, v{kap}', f'v_mul_f32 v{vP2+2*tt}, {hex(f2u(c0))}, v{kap}',
                              f'v_mul_f32 v{vPoll}, {hex(f2u(0.044715))}, v{vPoll}', f'v_mul_f32 v{vP3+2*tt}, v{vP2+2*tt}, v{vPoll}']
        k(f's_waitcnt lgkmcnt({2 if spare else 0})')
        spare = A_role and AT <= (s, ks) < (AT[0] + 2, 2)
        mf = []
        for c in (order if s == 7 else range(n)):
            for tt in range(2):
                D = acc(c, tt); C = '0' if (s == 0 and ks == 0) else v(D, 16)
                mf.append(f'v_mfma_f32_32x32x16_bf16 {v(D,16)}, {a(fW(role,b,c),4)}, {a(fX(role,b,tt),4) if s < 7 else v(vMB+4*tt, 4)}, {C}')
        gaps = [[] for _ in range(ng)]
        if s == 7 and typ == 'Q': gaps[0].append('s_barrier')
        if ks == 3:
            assert s == 6 or all(g[-1][1] != f'b{s+1}' for g in pend)
            def bar(s=s):
                if s < 6: k.wait(f'b{s+1}', *(['fill'] if (s, 3) == AT else []))
                k('s_barrier')
            gaps[0] += pre_bar + [bar]
            if s + 3 <= 6: pend += mkb(s + 3)
            if s == 2 and not A_role: pend.append(phi)
        rd = list(reads); gi = 0
        per = max(4, -(-len(rd) // (ng - 1)))
        while rd:
            gaps[gi] += rd[:per]; rd = rd[per:]; gi += 1
        remaining_ks = {3: 4, 0: 3, 1: 2, 2: 1}[ks]
        nd = min(-(-len(pend) // remaining_ks), o.get('rateA', 4) if A_role else o.get('rateF', 3))
        if (s, ks) >= (4, 3): nd = min(len(pend), 4)
        for i_ in range(nd):
            g_ = pend.pop(0)
            if o.get('x_nodma'): g_ = []
            gaps[min(ng - 1, 1 + (i_*(ng - 1))//nd)] += g_
        wt = lambda it: 3 if isinstance(it, tuple) else 1 if callable(it) else it.count('\n') + 1
        budget = o.get('lazy', 36); q = list(extra); tot = sum(wt(x) for x in q)
        while lazy and tot < budget:
            q.append(lazy.pop(0)); tot += wt(q[-1])
        accw = 0
        pm = o.get('pm', 1)
        if A_role and pm == 1 and tot > 6: gaps[ng - 1] += ['s_setprio 0'] + q + ['s_setprio 2']
        elif A_role and pm == 2: gaps[ng - 1] += q
        else:
            for it in q:
                gaps[min(ng - 1, 1 + (accw*(ng - 1))//max(tot, 1))].append(it); accw += wt(it)
        if spare:
            last = max(i for i in range(ng) if any(callable(x) or (isinstance(x, str) and 'ds_' in x) for x in gaps[i]))
            gaps[last] += [f'ds_read_b32 a{2+i}, v{vL16}' for i in range(2)]
        for i in range(ng):
            k(mf[i]); k.emit_all(gaps[i])
        if ks == 3: k.stamp(3 + s, grp=2)
        if o.get('verbose'): print(typ, role, s, ks, [sum(wt(x) for x in gp) for gp in gaps], 'lazy', len(lazy), 'pend', len(pend))
    assert not pend and not lazy
    if o.get('x_endbar'): k('s_nop 15\ns_barrier')
    k.stamp(3); k.stamp(3, 3)

def ffn_unit(k, c, tt, plain=False):
    A_ = acc(c, tt); P1 = vST + 2*tt; P2 = vP2 + 2*tt; T = vT
    if plain:
        for i in range(8): k.f(f'v_mul_f32 v{T+i}, v{A_+i}, v{A_+i}')
        for i in range(8): k.f(f'v_fma_f32 v{T+i}, v{T+i}, v{vP3+2*tt}, v{P2}')
        for i in range(8): k.f(f'v_mul_f32 v{T+i}, v{A_+i}, v{T+i}')
        for i in range(8): k.f(f'v_exp_f32 v{T+i}, v{T+i}')
        for i in range(8): k.f(f'v_mul_f32 v{A_+i}, v{A_+i}, v{A_+8+i}')
        for i in range(8): k.f(f'v_fma_f32 v{T+i}, v{T+i}, v{P1}, v{P1}')
        for i in range(8): k.f(f'v_rcp_f32 v{T+i}, v{T+i}')
        for i in range(8): k.f(f'v_mul_f32 v{A_+i}, v{A_+i}, v{T+i}')
        for i in range(4): k.f(f'v_cvt_pk_bf16_f32 v{A_+8+i}, v{A_+2*i}, v{A_+2*i+1}')
        return
    for i in range(4): k.f(f'v_pk_mul_f32 {pr(T+2*i)}, {pr(A_+2*i)}, {pr(A_+2*i)}')
    for i in range(4): k.f(f'v_pk_fma_f32 {pr(T+2*i)}, {pr(T+2*i)}, {pr(vP3+2*tt)}, {pr(P2)} op_sel_hi:[1,0,0]')
    for i in range(4): k.f(f'v_pk_mul_f32 {pr(T+2*i)}, {pr(A_+2*i)}, {pr(T+2*i)}')
    for i in range(8): k.f(f'v_exp_f32 v{T+i}, v{T+i}')
    for i in range(4): k.f(f'v_pk_mul_f32 {pr(A_+2*i)}, {pr(A_+2*i)}, {pr(A_+8+2*i)}')
    for i in range(4): k.f(f'v_pk_fma_f32 {pr(T+2*i)}, {pr(T+2*i)}, {pr(P1)}, {pr(P1)} op_sel_hi:[1,0,0]')
    for i in range(8): k.f(f'v_rcp_f32 v{T+i}, v{T+i}')
    for i in range(4): k.f(f'v_pk_mul_f32 {pr(A_+2*i)}, {pr(A_+2*i)}, {pr(T+2*i)}')
    for i in range(4): k.f(f'v_cvt_pk_bf16_f32 v{A_+8+i}, v{A_+2*i}, v{A_+2*i+1}')

def h_store(k, c, tt, sreg, off):
    k.vmem(f'buffer_store_dwordx4 {v(acc(c,tt)+8,4)}, v{vL16}, {srd(SW)}, s{sreg} offen offset:{off} sc1', 'hst')

def pack8(k, src, dst, n=8):
    for i in range(n): k.f(f'v_cvt_pk_bf16_f32 v{dst+i}, v{src+2*i}, v{src+2*i+1}')

def project(k, E):
    for tt in range(2): pack8(k, acc(0, tt), E + 8*tt)
    k('s_nop 1')
    for tt in range(2):
        P = acc(0, tt)
        k(f'v_mfma_f32_32x32x16_bf16 {v(P,16)}, {v(vWP,4)}, {v(E+8*tt,4)}, 0')
        k(f'v_mfma_f32_32x32x16_bf16 {v(P,16)}, {v(vWP+4,4)}, {v(E+8*tt+4,4)}, {v(P,16)}')

def softmaxes(k, F, after=None, plain=False):
    T = [vT, vT + 4]; S = 96
    R = range(2); P = [acc(0, 0), acc(0, 1)]; M = [acc(1, 0), acc(1, 1)]
    for tt in R: k.f(f'v_max3_f32 v{T[tt]}, v{P[tt]}, v{P[tt]+1}, v{P[tt]+2}\nv_min3_f32 v{T[tt]+2}, v{P[tt]}, v{P[tt]+1}, v{P[tt]+2}')
    for i in range(3, 13, 2):
        for tt in R: k.f(f'v_max3_f32 v{T[tt]}, v{T[tt]}, v{P[tt]+i}, v{P[tt]+i+1}\nv_min3_f32 v{T[tt]+2}, v{T[tt]+2}, v{P[tt]+i}, v{P[tt]+i+1}')
    for tt in R: k.f(f'v_max_f32 v{T[tt]+1}, v{T[tt]}, v{P[tt]+13}\nv_min_f32 v{T[tt]+3}, v{T[tt]+2}, v{P[tt]+13}')
    for tt in R: k.f(f'v_max_f32 v{T[tt]}, v{T[tt]}, v{P[tt]+13}\nv_min_f32 v{T[tt]+2}, v{T[tt]+2}, v{P[tt]+13}')
    for tt in R: k.f(f'v_mul_f32 v{vP2+2*tt}, {hex(f2u(math.log2(math.e)))}, v{vP2+2*tt+1}')
    for tt in R: k.f(f'v_permlane32_swap_b32 v{T[tt]}, v{T[tt]+1}\nv_permlane32_swap_b32 v{T[tt]+2}, v{T[tt]+3}')
    for tt in R: k.f(f'v_max_f32 v{T[tt]}, v{T[tt]}, v{T[tt]+1}\nv_min_f32 v{T[tt]+2}, v{T[tt]+2}, v{T[tt]+3}')
    for tt in R: k.f(f'v_mul_f32 v{T[tt]}, v{T[tt]}, v{vP2+2*tt}\nv_mul_f32 v{T[tt]+2}, v{T[tt]+2}, v{vP2+2*tt}')
    for tt in R:
        L = pr(vP2 + 2*tt); p = P[tt]; m = M[tt]; t = T[tt]; s_ = S + 4*tt
        Ls = vP2 + 2*tt
        if plain:
            for i in range(14): k.f(f'v_fma_f32 v{m+i}, -v{p+i}, v{Ls}, v{t+2}')
            for i in range(14): k.f(f'v_fma_f32 v{p+i}, v{p+i}, v{Ls}, -v{t}')
        else:
            for i in range(7): k.f(f'v_pk_fma_f32 {pr(m+2*i)}, {pr(p+2*i)}, {L}, {pr(t+2)} op_sel_hi:[1,0,0] neg_lo:[1,0,0] neg_hi:[1,0,0]')
            for i in range(7): k.f(f'v_pk_fma_f32 {pr(p+2*i)}, {pr(p+2*i)}, {L}, {pr(t)} op_sel_hi:[1,0,0] neg_lo:[0,0,1] neg_hi:[0,0,1]')
        for i in range(14): k.f(f'v_exp_f32 v{m+i}, v{m+i}')
        for i in range(14): k.f(f'v_exp_f32 v{p+i}, v{p+i}')
        for i in range(1, 7):
            for d, x in ((s_+2, m), (s_, p)):
                src = x if i == 1 else d
                if plain: k.f(f'v_add_f32 v{d}, v{src}, v{x+2*i}\nv_add_f32 v{d+1}, v{src+1}, v{x+2*i+1}')
                else: k.f(f'v_pk_add_f32 {pr(d)}, {pr(src)}, {pr(x+2*i)}')
        k.f(f'v_add_f32 v{t+2}, v{s_+2}, v{s_+3}\nv_add_f32 v{t+3}, v{s_+2}, v{s_+3}\nv_add_f32 v{t}, v{s_}, v{s_+1}\nv_add_f32 v{t+1}, v{s_}, v{s_+1}')
        k.f(f's_waitcnt lgkmcnt(0)\nv_permlane32_swap_b32 v{t+2}, v{t+3}\nv_permlane32_swap_b32 v{t}, v{t+1}')
        k.f(f'v_add_f32 v{t+2}, v{t+2}, v{t+3}\nv_add_f32 v{t}, v{t}, v{t+1}\nv_rcp_f32 v{t+2}, v{t+2}\nv_rcp_f32 v{t}, v{t}\nv_mov_b32 v{F[tt]+7}, 0\nv_mov_b32 v{F[tt]+15}, 0')
        if plain:
            for i in range(14): k.f(f'v_mul_f32 v{p+i}, v{p+i}, v{t}')
            for i in range(14): k.f(f'v_mul_f32 v{m+i}, v{m+i}, v{t+2}')
        else:
            for i in range(7): k.f(f'v_pk_mul_f32 {pr(p+2*i)}, {pr(p+2*i)}, {pr(t)} op_sel_hi:[1,0]')
            for i in range(7): k.f(f'v_pk_mul_f32 {pr(m+2*i)}, {pr(m+2*i)}, {pr(t+2)} op_sel_hi:[1,0]')
        pack8(k, p, F[tt], 7); pack8(k, m, F[tt]+8, 7)
        if after: after(tt)

def s_chain(k, first, last, gap):
    for p in range(first, last + 1):
        k.bg.append((gap, [lambda p=p: k.wait(f'd{p-2}')] + preads('S', p - 2)))
        if p <= 6:
            gs = pbatch('S', p); gs[0] = ['s_waitcnt lgkmcnt(0)'] + gs[0]
            for i, g in enumerate(gs): k.bg.append((min(gap, 60) if i == 0 else 0, g))

def wo_issue(k, lim):
    for g in obatch():
        if len(k.vm) > lim:
            k(f's_waitcnt vmcnt({lim})'); k.vm = k.vm[-lim:]
        k.emit_all(g)

def kv_part(k):
    V = 64
    project(k, V)
    for tt in range(2):
        A_ = acc(1, tt)
        for i in range(16): k.f(f'v_mul_f32 v{A_+i}, v{A_+i}, v{vP2+2*tt+1}')
        k.f(f'v_cndmask_b32 v{A_+12}, v{A_+12}, 1.0, s[{sHm}:{sHm+1}]\nv_cndmask_b32 v{A_+13}, v{A_+13}, 0, s[{sHm}:{sHm+1}]')
        pack8(k, A_, V + 8*tt)
        k.f(f'v_cndmask_b32 v{V+8*tt+7}, v{V+8*tt+7}, 0, s[{sHm}:{sHm+1}]')
        for q in range(2): k.f(f'ds_write_b128 v{vS0}, {v(V+8*tt+4*q,4)} offset:{tt*32*SP+128+16*q}')
    k.stamp(4, 3)
    def wr(tt):
        for sec in range(2):
            for q in range(2): k.f(f'ds_write_b128 v{vS0}, {v(V+8*sec+4*q,4)} offset:{tt*32*SP+64*sec+16*q}')
    softmaxes(k, [V, V], after=wr, plain=k.opt.get('plainKA', 0))
    k.stamp(5, 3)
    sync_post(k, 0); sync_wait(k, 0, 80)
    k.stamp(6, 3)
    D = 136
    def rd(kk):
        base = 12*(kk % 5)
        for j2 in range(2):
            im = (32*kk + 2*j2)*SP
            k(f'ds_read_b64_tr_b16 {pr(base+2*j2)}, v{vS0+1} offset:{im}')
            for dt in range(2): k(f'ds_read_b64_tr_b16 {pr(base+4+4*dt+2*j2)}, v{vS0+2} offset:{im+128+16*dt}')
    rd(0); rd(1)
    for kk in range(8):
        if kk + 2 < 8: rd(kk + 2)
        k(f's_waitcnt lgkmcnt({min(12, 6*(7-kk))})')
        base = 12*(kk % 5)
        for dt in range(2):
            k(f'v_mfma_f32_16x16x32_bf16 {v(D+4*dt,4)}, {v(base,4)}, {v(base+4+4*dt,4)}, {"0" if kk == 0 else v(D+4*dt,4)}')
    sync_post(k, 1)
    sample_h(k, 'P')
    assert 'fill2' not in k.vm
    for dt in range(2): k.vmem(f'buffer_store_dwordx4 {v(D+4*dt,4)}, v{vS0+3}, {srd(SW)}, s{sP} offen offset:{256*dt} sc1', 'kvst')
    k.stamp(7, 3)

vV = 123
def validate(k, r0, r1, base, off):
    if not k.opt.get('sent'): return
    L = k.A.label('L_v')
    k(f's_mov_b32 s{sSpin}, 0\n{L}c:\nv_max3_u32 v{vV}, v{r0}, v{r0+1}, v{r0+2}\nv_max3_u32 v{vV}, v{vV}, v{r0+3}, v{r1}\nv_max3_u32 v{vV}, v{vV}, v{r1+1}, v{r1+2}\nv_max_u32 v{vV}, v{vV}, v{r1+3}')
    k(f'v_cmp_eq_u32 vcc, -1, v{vV}\ns_cbranch_vccnz {L}f\n{L}b:')
    k.tail.append(f'''{L}f:
    s_add_u32 s{sSpin}, s{sSpin}, 1
    s_cmp_gt_u32 s{sSpin}, {k.opt.get("spin", 200000)//64}
    s_cbranch_scc1 {L}b
    s_add_u32 s3, s{base}, {off}
    buffer_load_dwordx4 {v(r0,4)}, v{vL16}, {srd(SW)}, s3 offen sc1
    buffer_load_dwordx4 {v(r1,4)}, v{vL16}, {srd(SW)}, s3 offen offset:1024 sc1
    s_waitcnt vmcnt(0)
    s_branch {L}c''')

QF = [64, 80]
def o_part(k):
    k.stamp(5, 3)
    spin(k, 'L_kq', f's_load_dword s{sPl}, s[{SW}:{SW+1}], s{sKf} glc', [(sPl, 8)])
    k.stamp(6, 3)
    for rb in range(8):
        k(f's_add_u32 s{sC}, s{sKb}, {8192*rb}')
        for q in range(2): k.vmem(f'buffer_load_dwordx4 {v(8*rb+4*q,4)}, v{vL16}, {srd(SW)}, s{sC} offen offset:{1024*q} sc1', f'kv{rb}')
    k(f'v_add_u32 v96, {L_KVF}, v{vL16}\ns_lshl_b32 s3, s{sWave}, 10\nv_add_u32 v97, s3, v96')
    for rb in range(8):
        k.wait(f'kv{rb}')
        validate(k, 8*rb, 8*rb + 4, sKb, 8192*rb)
        if rb:
            for i in range(8): k(f'v_add_f32 v{i}, v{i}, v{8*rb+i}')
    k.stamp(7, 3)
    for i in range(4): k(f'v_cvt_pk_bf16_f32 v{8+i}, v{2*i}, v{2*i+1}')
    k('ds_write_b128 v97, v[8:11]')
    sync_post(k, 0); sync_wait(k, 0, 12)
    for s_ in range(4): k(f'ds_read_b128 {v(16+4*s_,4)}, v96 offset:{s_*1024}')
    k('s_waitcnt lgkmcnt(0)')
    sample_h(k, 'S')
    for tt in range(2):
        for s_ in range(4): k(f'v_mfma_f32_32x32x16_bf16 {v(32+16*tt,16)}, {v(16+4*s_,4)}, {v(QF[tt]+4*s_,4)}, {"0" if s_ == 0 else v(32+16*tt,16)}')
    k('s_nop 7')
    T = vT
    for tt in range(2):
        N = 32 + 16*tt
        k(f'v_mov_b32 v{T}, v{N+12}\nv_mov_b32 v{T+1}, v{N+12}\nv_cndmask_b32 v{N+12}, v{N+12}, 0, s[{sHm}:{sHm+1}]\ns_nop 0\nv_permlane32_swap_b32 v{T}, v{T+1}')
        k(f'v_add_f32 v{T}, {hex(f2u(1e-6))}, v{T+1}\nv_rcp_f32 v{T}, v{T}\ns_nop 0')
        for i in range(16): k(f'v_mul_f32 v{N+i}, v{N+i}, v{T}')
        for i in range(8): k(f'v_cvt_pk_bf16_f32 v{N+i}, v{N+2*i}, v{N+2*i+1}')
        for s_ in range(2): k.vmem(f'buffer_store_dwordx4 {v(N+4*s_,4)}, v{vL16}, {srd(SW)}, s{sP} offen offset:{2048*s_+1024*tt} sc1', 'ost')
    k.stamp(8, 3)

HB, NQ = 64, 12
vOUT, vOA, vRW, vRR, XR = 124, 125, 129, 133, 140
def late_setup(role):
    T = 137
    it = items(f'''v_lshrrev_b32 v{T}, 7, v{vL16}
    v_mul_u32_u24 v{vOUT}, 896, v{T}
    v_and_b32 v{T+1}, 0x70, v{vL16}
    v_add_u32 v{vOUT}, v{vOUT}, v{T+1}''')
    it.append((f'buffer_load_dwordx4 {v(XR,4)}, v{vOUT}, {srd(SX)}, s{sRes} offen', 'xr'))
    it += items(f'''v_lshrrev_b32 v{T+1}, 3, v{T+1}
    v_xor_b32 v{T+1}, v{T+1}, v{T}
    v_lshlrev_b32 v{T}, 8, v{T}
    s_lshl_b32 s3, s{sWave}, 11|v_add_u32 v{T}, s3, v{T}
    v_lshl_add_u32 v{vRR}, v{T+1}, 4, v{T}
    v_xor_b32 v{vRR+1}, 16, v{vRR}
    v_add_u32 v{vRR+2}, {2*XW}, v{vRR}
    v_add_u32 v{vRR+3}, {2*XW}, v{vRR+1}''')
    it += items(f'''v_bfe_u32 v{T}, v{vL16}, 4, 5
    v_lshrrev_b32 v{T+1}, 9, v{vL16}
    v_and_b32 v{T+2}, 7, v{T}
    v_xor_b32 v{T+1}, v{T+1}, v{T+2}
    v_lshlrev_b32 v{T}, 8, v{T}
    v_lshl_add_u32 v{T}, v{T+1}, 4, v{T}
    v_add_u32 v{vRW}, s{sMx}, v{T}''')
    it += [f'v_xor_b32 v{vRW+q}, {32*q}, v{vRW}' for q in range(1, 4)]
    if role == 'S':
        it += items(f'''s_sub_u32 s3, s{sWo}, s{sMx}|v_add_u32 v{vOA}, s3, v{vDA}|v_add_u32 v{vOA+1}, s3, v{vDA+1}
        v_and_b32 v{T}, 0x200, v{vL16}
        v_sub_u32 v{vOA+2}, v{vOA}, v{T}
        v_sub_u32 v{vOA+3}, v{vOA+1}, v{T}''')
    return it

FL = lambda i, r=0: f's_add_u32 s3, s{sFl}, {128*i}\ns_load_dword s{sPl+r}, s[{SW}:{SW+1}], s3 glc'
def h_load(k, role, e, half):
    if half == 0:
        if role == 'S' and e == 14 - k.opt.get('samp', 3): k(FL(2))
        if e == 14:
            k.stamp(7)
            spin(k, 'L_go', FL(2), [(sPl, 4)], first_loaded=True)
            k.stamp(8)
            k(f's_mov_b32 s{sH}, s{sOb}')
        elif e < 14 and e % 2 == 0: k(f's_bfe_u32 s{sH}, s{sMu}, {hex(0x40000 + 2*e)}\ns_lshl_b32 s{sH}, s{sH}, 12\ns_add_u32 s{sH}, s{sH}, s{sH0}')
        elif e % 2 == 0: k(f's_add_u32 s{sH}, s{sH}, 4096')
    k.vmem(f'buffer_load_dwordx4 {v(HB + 4*((2*e + half) % NQ),4)}, v{vL16}, {srd(SW)}, s{sH} offen offset:{(e&1)*2048 + half*1024} sc1', f'e{e}')

def first_loads(k, role):
    k.stamp(6)
    for x in range(2*k.opt.get('depth', 5)): h_load(k, role, x >> 1, x & 1)

def sample_h(k, role):
    k(FL(0, 1))
    if role == 'S': k(FL(1, 2))

def wait_h(k, role):
    k.stamp(5)
    if role == 'S':
        k(FL(0, 1))
        spin(k, 'L_hS', FL(1), [(sPl, 4)])
        k(f's_mov_b32 s{sPl}, s{sPl+1}')
    spin(k, 'L_hP', FL(0), [(sPl, 8)], first_loaded=(role == 'S'))

def open_stream(k, role, tag, sreg, idle):
    L = k.A.label('L_os')
    if idle: k(f's_cmp_eq_u32 s{sNb}, 7\ns_cbranch_scc1 {L}')
    k(f's_waitcnt lgkmcnt(0)\ns_cmp_lt_u32 s{sPl+1}, 8\ns_cbranch_scc1 {L}')
    if role == 'S': k(f's_cmp_lt_u32 s{sPl+2}, 4\ns_cbranch_scc1 {L}')
    sv = list(k.vm)
    k.stamp(5)
    first_loads(k, role)
    drain_post(k, tag, sreg)
    k.stamp(4)
    k(f's_branch L_tail{role}\n{L}:')
    k.vm = sv
    drain_post(k, tag, sreg)
    k.stamp(4)
    if idle: k(f's_cmp_eq_u32 s{sNb}, 7\ns_cbranch_scc1 L_end{role}')
    k(f's_branch L_wait{role}')

def stream(k, role):
    o = k.opt
    DEPTH = o.get('depth', 5)
    assert 2*(DEPTH + 1) <= NQ
    nent = 14 if role == 'P' else 22
    k(f'L_wait{role}:')
    wait_h(k, role)
    k.vm = []
    first_loads(k, role)
    k(f'L_tail{role}:')
    if o.get('prio' + role): k(f's_setprio {o["prio" + role]}')
    nxt = 2*DEPTH
    def more(upto):
        nonlocal nxt
        while nxt < min(upto, 2*nent):
            h_load(k, role, nxt >> 1, nxt & 1); nxt += 1
    def oreads(ko):
        jj, s_ = ko >> 1, ko & 1
        return [f'ds_read_b64_tr_b16 {a(8*(ko & 1) + 4*n + 2*j2, 2)}, v{vOA + n + (2 if (s_ == 1 and j2 == 1) else 0)} offset:{(28*jj + 16*s_ + 8*j2)*128}' for n in range(2) for j2 in range(2)]
    k.emit_all(late_setup(role))
    for e in range(nent):
        r = [HB + 4*((2*e + h) % NQ) for h in range(2)]
        if role == 'S' and e == 13: k.emit_all(oreads(0))
        k.wait(f'e{e}', extra='lgkmcnt(0)' if (e >= 14 or e == 0) else '')
        if e >= 14: validate(k, r[0], r[1], sOb, (e - 14)*2048)
        cnt = 0
        for tt in range(2):
            for n in range(2):
                D = 32*n + 16*tt
                Af = a(8*e + 4*n, 4) if e < 14 else a(8*((e - 14) & 1) + 4*n, 4)
                k(f'v_mfma_f32_32x32x16_bf16 {v(D,16)}, {Af}, {v(r[tt],4)}, {"0" if e == 0 else v(D,16)}')
                if cnt == 0 and 14 <= e < 21: k.emit_all(oreads(e - 13))
                if cnt == 1: more(2*(e + DEPTH) + 1)
                if cnt == 3: more(2*(e + DEPTH) + 2)
                cnt += 1
    k.stamp(9)
    k.wait('xr')
    for i in range(4): k(f'v_lshlrev_b32 v{100+2*i}, 16, v{XR+i}\nv_and_b32 v{100+2*i+1}, 0xffff0000, v{XR+i}')
    if role == 'S':
        k(f's_sub_u32 s3, s{sWo}, s{sMx}')
        for q in range(4): k(f'v_add_u32 v{vOA+q}, s3, v{vRW+q}')
    else: k('s_nop 3')
    for tt in range(2):
        for n in range(2):
            for q in range(4):
                if role == 'P': k(f'ds_write_b128 v{vRW+q}, {v(32*n+16*tt+4*q,4)} offset:{8192 + tt*8192 + n*128}')
                else: k(f'ds_write_b128 v{(vOA if tt else vRW)+q}, {v(32*n+16*tt+4*q,4)} offset:{n*128}')
    if role == 'P': k(f'v_add_u32 v{vOA}, {WB}, v{vRR}\nv_add_u32 v{vOA+1}, {WB}, v{vRR+1}')
    k('s_waitcnt lgkmcnt(0)\ns_barrier')
    tt = 0 if role == 'S' else 1
    rd = []
    for p in range(4):
        for hf in range(2): rd.append((vRR + 2*(p >> 1) + hf, (p & 1)*XW + 8192 + tt*8192))
    for p in range(4):
        for hf in range(2): rd.append((vRR + 2*(p >> 1) + hf, (p & 1)*XW) if tt == 0 else (vOA + hf, p*14336))
    for i, (va, im) in enumerate(rd): k(f'ds_read_b128 {v(4*i,4)}, v{va} offset:{im}')
    for p in range(8):
        k(f's_waitcnt lgkmcnt({2*(7-p)})')
        for i in range(4): k(f'v_pk_add_f32 {pr(100+2*i)}, {pr(100+2*i)}, {pr(8*p+2*i)}')
    for i in range(4): k(f'v_cvt_pk_bf16_f32 v{96+i}, v{100+2*i}, v{100+2*i+1}')
    k.vmem(f'buffer_store_dwordx4 v[96:99], v{vOUT}, {srd(SOUT)}, s{sRes} offen {o.get("outfl", "sc1")}', 'out')

def finish(k, role):
    o = k.opt; L = f'L_end{role}'
    k(f'{L}:')
    if o.get('probe'):
        k.stamp(10)
        k('s_waitcnt lgkmcnt(0)')
        if o['probe'][2] == 'rt': k('s_cmp_eq_u32 s98, 0\ns_cselect_b32 s98, s100, s98\ns_sub_u32 s98, s98, s100\ns_lshl_b32 s98, s98, 1')
        else: k('s_cmp_eq_u32 s98, 0\ns_cselect_b32 s98, s96, s98\ns_sub_u32 s98, s98, s96\ns_lshr_b32 s98, s98, 3')
        k(f's_add_u32 s98, s98, 3000\n{L}f:\ns_memrealtime s[{sC}:{sC+1}]\ns_waitcnt lgkmcnt(0)\ns_sub_u32 s3, s{sC}, s100\ns_cmp_lt_u32 s3, s98\ns_cbranch_scc1 {L}f')
    if o.get('stamps'):
        k(f'{"s_memrealtime" if o.get("rt") else "s_memtime"} s[{sA}:{sA+1}]\ns_memrealtime s[{sC}:{sC+1}]\ns_waitcnt lgkmcnt(0)')
        k(f's_lshl_b32 s3, s2, 3\ns_add_u32 s3, s3, s{sWave}\ns_add_u32 s3, s3, {0 if role == "S" else 4}\ns_lshl_b32 s3, s3, 6\ns_add_u32 s3, s3, {WS_STAMP}\nv_mov_b32 v40, s3\ns_mov_b64 exec, 1')
        k(f'v_mov_b32 v24, s100\nv_mov_b32 v25, s{sC}')
        for i in range(1, 10): k(f's_sub_u32 s3, s{STAMP0+2*i}, s{STAMP0}\nv_mov_b32 v{25+i}, s3')
        k(f's_sub_u32 s3, s{sA}, s{STAMP0}\nv_mov_b32 v35, s3')
        for q in range(3): k(f'buffer_store_dwordx4 {v(24+4*q,4)}, v40, {srd(SW)}, 0 offen offset:{16*q}')
    k('s_endpgm')
    for t in k.tail: k(t)
    k.tail = []

def ffn3(k, hold, plain=0):
    k(f's_lshl_b32 s{sC}, s{sKap}, 11\ns_add_u32 s{sC}, s{sC}, s{sHo}\ns_add_u32 s{sC2}, s{sC}, 4096')
    q = []
    for u in range(6):
        c, tt = u >> 1, u & 1
        ffn_unit(k, c, tt, (plain >> u) & 1); q.append((c, tt))
        if u + 1 >= hold:
            for c_, t_ in q: h_store(k, c_, t_, sC2 if c_ == 2 else sC, (c_ & 1)*2048 + t_*1024)
            q = []

def drain_post(k, tag, sreg):
    if tag == 'hst' or not k.opt.get('sent'): k.wait(tag)
    post(k, sreg)

def path_P(k):
    o = k.opt
    k.reset_bg(); k('L_KVA:'); main_loop(k, 'KV', 'A')
    k(f's_setprio {o.get("prioKA", 1)}\ns_nop 4')
    kv_part(k)
    k('s_setprio 0')
    k.wait('d6')
    for p in (4, 5, 6): k.emit_all(preads('P', p))
    open_stream(k, 'P', 'kvst', sF2, False)
    k.reset_bg(); k('L_QF:'); main_loop(k, 'Q', 'F')
    k(f's_setprio {o.get("prioQF", 1)}\ns_nop 4')
    ffn3(k, o.get('holdQ', 0), o.get('plainQ', 0))
    k.stamp(4)
    k('s_setprio 0')
    k.wait('d6')
    for p in (4, 5, 6): k.emit_all(preads('P', p))
    drain_post(k, 'hst', sFh)
    k(f's_cmp_eq_u32 s{sNb}, 7\ns_cbranch_scc1 L_endP')
    stream(k, 'P')
    finish(k, 'P')

def path_S(k):
    o = k.opt
    k.reset_bg(); k('L_KVF:'); main_loop(k, 'KV', 'F')
    k(f's_setprio {o.get("prioKF", 0)}\ns_nop 4')
    nk = o.get('kchain', 3)
    s_chain(k, 2, nk, 0); k.flush()
    k.stamp(4, 3)
    k.lastbg = k.t
    s_chain(k, nk + 1, 8, o.get('cgap', 150))
    ffn3(k, o.get('holdK', 0), o.get('plainK', 0))
    k.stamp(4); k.stamp(5, 3)
    k('s_setprio 0')
    k.flush()
    sync_wait(k, 1, 0)
    nwo = o.get('kwo', 6)
    ob = obatch()
    for g in ob[:nwo]: k.emit_all(g)
    drain_post(k, 'hst', sFh)
    k.stamp(6, 3)
    for g in ob[nwo:]: k.emit_all(g)
    k.stamp(7, 3)
    k('s_branch L_waitS')
    k.reset_bg(); k('L_QA:'); main_loop(k, 'Q', 'A')
    k(f's_setprio 1\ns_add_u32 s{sC}, s{sKap}, 3\ns_lshl_b32 s{sC}, s{sC}, 11\ns_add_u32 s{sC}, s{sC}, s{sHo}')
    ob = obatch()
    for g in ob[:4]: k.emit_all(g)
    ob = ob[4:]
    for tt in range(2): ffn_unit(k, 1, tt, o.get('plainQA', 0))
    k('s_setprio 0')
    nq = o.get('qchain', 4)
    for p in range(2, nq + 1):
        s_chain(k, p, p, 0); k.flush()
        for g in ob[:4]: k.emit_all(g)
        ob = ob[4:]
    for tt in range(2): h_store(k, 1, tt, sC, tt*1024)
    k.stamp(4, 3)
    assert not ob
    k.timed.append((k.t + o.get('drain', 500), lambda: drain_post(k, 'hst', sFh), 'hst'))
    k.lastbg = k.t
    s_chain(k, nq + 1, 8, o.get('qgap', 200))
    project(k, 64)
    k('s_nop 9')
    softmaxes(k, QF, plain=o.get('plainQS', 0))
    k.run_timed('all')
    k.flush()
    if o.get('prioQA', 1): k(f's_setprio {o.get("prioQA", 1)}')
    o_part(k)
    k('s_setprio 0')
    open_stream(k, 'S', 'ost', sF2, True)
    stream(k, 'S')
    finish(k, 'S')

def generate(opt):
    k = K(opt); name = NAME + '_kernel'
    kernel_begin(k.A, name)
    prologue(k)
    path_P(k)
    path_S(k)
    k('L_codeend:')
    txt = k.A.text()
    if opt.get('align', 1):
        import align
        txt = align.align(txt)[0]
    return assemble_file([(name, 256, 512, NLDS)], txt, [kernel_desc(name, 256, accum=144)])

if __name__ == '__main__':
    import json, hazard
    opt = json.loads(sys.argv[2]) if len(sys.argv) > 2 else {}
    txt = generate(opt)
    open(sys.argv[1], 'w').write(txt)
    e = hazard.check(txt)
    print(len(txt), 'bytes of text;', len(e), 'hazards')
```

```python
import sys, struct, math
from collections import deque
from asmgen import *

def f2u(x): return struct.unpack('<I', struct.pack('<f', x))[0]

WS_H    = 0
WS_KVP  = 10 << 20
WS_ST   = 12 << 20
WS_FL   = WS_ST + 32768
WS_KF   = WS_FL + 262144
WS_CS   = WS_KF + 65536
WS_STAMP = 128 << 20
OOB = 0x40000000
XW = 24576
WB = 98304; WS_ = 20736
L_CS = L_KVF = WB + 57344
L_PHI = 163840 - 2048
SP = 208
RP = 272
NLDS = 163840

sA, sA2, sB, sB2, sC, sC2 = 4, 5, 6, 7, 8, 9
sMx, sMa, sMf = 10, 11, 12
sT0, sT1, sT2 = 13, 14, 15
sL = 16
sHm = 18
sG2, sNb, sDb, sHo = 20, 21, 22, 23
sSpin, sKap, sWave, sRb = 24, 25, 26, 27
SX, SQ, SG, SU, SD, SO, SW, SOUT, SDBG, SPH, SGU = 28, 32, 36, 40, 44, 48, 52, 56, 60, 64, 68
sG, sU, sJ, sCg, sSt, sXb, sQb, sFb = 72, 73, 74, 75, 76, 77, 78, 79
sFh, sF2 = 16, 17
sP = 1
sWi = 0
sWo, sWg = 72, 73
sH, sH0, sOb, sKb, sKc = 77, 78, 79, 11, 12
sMu = 76
STAMP0 = 80

def srd(n): return f's[{n}:{n+3}]'
def pr(r): return f'v[{r}:{r+1}]'

TRANS = ('v_exp_f32', 'v_rcp_f32', 'v_rsq_f32')
def cost(line):
    op = line.split()[0]
    if op.endswith(':') or op.startswith('.') or op.startswith(';'): return 0
    if op.startswith('v_mfma'): return 32 if '32x32' in op else 16
    if op in TRANS: return 8
    if op == 's_nop': return 4*(int(line.split()[1]) + 1)
    if op == 'ds_write_b128': return 16
    return 4

class K:
    def __init__(self, opt):
        self.A = Asm(); self.vm = []; self.opt = opt
        self.t = 0; self.credit = 0; self.tail = []
        self.reset_bg()
    def reset_bg(self):
        self.bg = deque(); self.bg2 = deque(); self.timed = []; self.lastbg = -10**9; self.inbg = False; self.done = {}; self.no_ds = False
    def raw(self, t):
        for l in t.strip('\n').split('\n'):
            l = l.strip()
            if not l: continue
            self.A(l); c = cost(l)
            if l.startswith('v_mfma'): self.t += c; self.credit = c - 8
            else:
                u = min(c, self.credit); self.credit -= u; self.t += c - u
    def __call__(self, t): self.raw(t)
    def f(self, t):
        for l in t.strip('\n').split('\n'):
            l = l.strip()
            if l: self.raw(l); self.tick()
    def run_timed(self, force=None):
        for it in [x for x in self.timed if x[0] <= self.t or force == 'all' or x[2] == force]:
            self.timed.remove(it); it[1]()
    def pop_bg(self, q):
        g = q.popleft()
        for it in g[1]: self.emit(it)
        self.lastbg = self.t
    def tick(self):
        if self.inbg: return
        self.inbg = True
        self.run_timed()
        for q in (self.bg, self.bg2):
            if q and q[0][2]():
                if self.t - self.lastbg >= q[0][0]: self.pop_bg(q)
                break
        self.inbg = False
    def force(self, key):
        self.inbg = True
        while key not in self.done:
            self.pop_bg(self.bg2 if key == 'wo' else self.bg)
        self.inbg = False
    def mark(self, key): return lambda: self.done.__setitem__(key, self.t)
    def vmem(self, t, tag):
        for key, srds in (('ntw', (SQ, SG, SU, SGU)), ('ntx', (SX,)), ('ntd', (SD, SO))):
            if self.opt.get(key) and t.startswith('buffer_load') and any(srd(n) in t for n in srds):
                t = t.replace(' lds', ' nt lds') if t.endswith(' lds') else t + ' nt'
        self.raw(t); self.vm.append(tag)
    def wait(self, *tags, extra=''):
        last = max((i for i, x in enumerate(self.vm) if x in tags), default=None)
        if last is None:
            if extra: self.raw(f's_waitcnt {extra}')
            return
        n = len(self.vm) - 1 - last
        assert n <= 63, n
        self.raw(f's_waitcnt vmcnt({n}) {extra}')
        self.vm = self.vm[len(self.vm)-n:] if n else []
    def stamp(self, i, grp=1):
        pb = self.opt.get('probe')
        if pb:
            if i == 0: self.A('s_memtime s[96:97]\ns_mov_b32 s98, 0')
            if [i, grp] == pb[:2]: self.A('s_memrealtime s[98:99]' if pb[2] == 'rt' else 's_memtime s[98:99]')
        if self.opt.get('stamps') and (i <= 2 or self.opt.get('stamps') == grp): self.A(f'{"s_memrealtime" if self.opt.get("rt") else "s_memtime"} s[{STAMP0+2*i}:{STAMP0+2*i+1}]')
    def emit(self, item):
        if callable(item): item()
        elif isinstance(item, tuple): self.vmem(*item)
        else: self.raw(item)

vXP, vDP, vXA = 160, 164, 168
vAP, vAA = 172, 173
vFP, vFA = 175, 178
vCA = 182
vZ = 184
vL16 = 191
vCT = 192
vU0, vU1 = 212, 213
vST = 214
vP2 = 218
vP3 = 222
vPoll, vPA = 226, 227
vWP = 228
vDA = 236
vF0, vOne = 238, 239
vT = 240
vJ = 252
vMB = 240
vS0 = 248
aFB = 200

def acc(c, tt): return 32*c + 16*tt
def fX(b, tt): return aFB + 28*b + 4*tt
def fW(b, c): return aFB + 28*b + 8 + 4*c

def spin(k, name, load, cmp_, mask):
    L = k.A.label(name)
    k(f's_mov_b32 s{sSpin}, 0\n{L}:\n{load}\ns_add_u32 s{sSpin}, s{sSpin}, 1\ns_waitcnt vmcnt(0)\n{cmp_}')
    if mask is None: k(f's_cbranch_vccz {L}_x')
    else: k(f's_and_b32 s3, vcc_lo, {mask}\ns_cbranch_scc0 {L}_x')
    if k.opt.get('sleep'): k(f's_sleep {k.opt["sleep"]}')
    k(f's_cmp_lt_u32 s{sSpin}, {k.opt.get("spin", 200000)}\ns_cbranch_scc1 {L}\n{L}_x:')

def gate(k, name, tag, load, cmp_, mask):
    k.wait(tag)
    L = k.A.label(name)
    k(cmp_)
    if mask is None: k(f's_cbranch_vccz {L}')
    else: k(f's_and_b32 s3, vcc_lo, {mask}\ns_cbranch_scc0 {L}')
    t = k.t
    spin(k, name + 's', load, cmp_, mask)
    k.t = t
    k(f'{L}:')

def iftype(k, fkv, fq):
    L = k.A.label('L_ty')
    k(f's_bitcmp1_b32 s{sU}, 0\ns_cbranch_scc1 {L}q')
    sv = (list(k.vm), k.t, k.nb)
    fkv()
    n = len(k.vm)
    k(f's_branch {L}j\n{L}q:')
    k.vm, k.t, k.nb = sv
    fq()
    assert len(k.vm) == n
    k(f'{L}j:')

def items(t): return [x.strip().replace('|', '\n') for x in t.strip().split('\n')]

def touch(k):
    L = k.A.label('L_tc')
    k(f'v_lshlrev_b32 v{vJ+1}, 21, v0\ns_mov_b64 exec, 1\ns_cmp_lt_u32 s{sWave}, 2\ns_cbranch_scc1 {L}a\ns_cmp_eq_u32 s{sWave}, 2\ns_cbranch_scc1 {L}b')
    k(f's_mov_b64 exec, 0x7f\nglobal_load_dword a0, v{vJ+1}, s[{SW}:{SW+1}]\ns_branch {L}x')
    k(f'{L}b:\nglobal_load_dword a0, v{vJ+1}, s[{SD}:{SD+1}]\nglobal_load_dword a1, v{vJ+1}, s[{SO}:{SO+1}]\ns_branch {L}x')
    k(f'{L}a:\ns_cmp_eq_u32 s{sWave}, 0\ns_cbranch_scc1 {L}c\nglobal_load_dword a0, v{vJ+1}, s[{SOUT}:{SOUT+1}]\nglobal_load_dword a1, v{vJ+1}, s[{SPH}:{SPH+1}]\ns_branch {L}x')
    k(f'{L}c:\nglobal_load_dword a0, v{vJ+1}, s[{SDBG}:{SDBG+1}] sc1\n{L}x:\ns_mov_b64 exec, -1')

def prologue(k):
    o = k.opt
    k.nb = 0
    k(f's_cmp_lt_u32 s2, 256\ns_cbranch_scc1 L_go\ns_endpgm\nL_go:')
    k.stamp(0)
    if o.get('stamps') or o.get('fixdur') or o.get('probe'): k('s_memrealtime s[100:101]')
    for n, off in ((SX, 0), (SQ, 8), (SG, 40), (SU, 48)): k(f's_load_dwordx2 s[{n}:{n+1}], s[0:1], {off}')
    k(f'v_lshrrev_b32 v1, 6, v0\ns_getpc_b64 s[20:21]\nL_pc:\nv_readfirstlane_b32 s{sWave}, v1')
    k(f's_lshr_b32 s{sCg}, s2, 3\nv_lshrrev_b32 v2, 4, v0\nv_lshl_add_u32 v2, v2, 5, s{sCg}\nv_lshlrev_b32 v2, 7, v2\nv_min_u32 v2, L_codeend-L_pc-4, v2')
    k(f's_mov_b32 exec_lo, 0x10001\ns_mov_b32 exec_hi, 0x10001')
    k.vmem(f'global_load_dword v{vJ}, v2, s[20:21]', 'pf')
    k('s_mov_b64 exec, -1')
    for n, off in ((SW, 80), (SD, 56), (SO, 24), (SDBG, 72), (SPH, 16), (SOUT, 64)): k(f's_load_dwordx2 s[{n}:{n+1}], s[0:1], {off}')
    k(f'v_and_b32 v0, 63, v0\ns_and_b32 s{sG}, s2, 3')
    k(f's_and_b32 s{sRb}, s{sCg}, 3\ns_and_b32 s3, s2, 4\ns_or_b32 s{sRb}, s{sRb}, s3\ns_lshr_b32 s{sU}, s{sCg}, 2')
    k(f's_cmp_eq_u32 s{sRb}, 7\ns_cselect_b32 s{sSt}, 0, s{sRb}')
    k(f'''v_lshrrev_b32 v1, 3, v0
    v_and_b32 v2, 7, v0
    v_mul_u32_u24 v3, 896, v1
    v_lshrrev_b32 v4, 1, v1
    v_xor_b32 v5, v2, v4
    v_lshl_add_u32 v{vXP}, v5, 4, v3
    v_xor_b32 v5, 4, v5
    v_lshl_add_u32 v{vXP+1}, v5, 4, v3
    v_add_u32 v{vXP+1}, 6144, v{vXP+1}
    v_add_u32 v{vXP+2}, {2*6144}, v{vXP}
    v_add_u32 v{vXP+3}, {2*6144}, v{vXP+1}''')
    k(f's_lshl_b32 s{sHo}, s{sRb}, 2\ns_add_u32 s{sHo}, s{sHo}, s{sWave}\ns_mul_i32 s{sXb}, s{sHo}, {64*896}')
    k(f's_mov_b32 s{SX+2}, {2048*896}\ns_mov_b32 s{SX+3}, 0x20000\ns_mul_i32 s{sMx}, s{sWave}, {XW}')
    rest = items(f'''s_lshr_b32 s{sJ}, s{sU}, 1|s_lshl_b32 s3, s{sG}, 2|s_or_b32 s{sJ}, s{sJ}, s3
    s_lshl_b32 s{sCg}, s{sG}, 3|s_or_b32 s{sCg}, s{sCg}, s{sU}
    v_lshrrev_b32 v6, 2, v0|v_and_b32 v14, 3, v0|v_mul_u32_u24 v6, 2688, v6
    v_lshlrev_b32 v8, 4, v14|v_min_u32 v8, 40, v8|v_add_u32 v{vAP}, v6, v8
    s_mul_i32 s{sQb}, s{sWave}, {16*2688}|s_mul_i32 s3, s{sJ}, 56|s_add_u32 s{sQb}, s{sQb}, s3
    s_mov_b32 s{SQ+2}, {448*2688}|s_mov_b32 s{SQ+3}, 0x20000|s_mov_b32 s{SG+2}, {448*3584}|s_mov_b32 s{SG+3}, 0x20000
    s_mov_b32 s{SU+2}, {448*3584}|s_mov_b32 s{SU+3}, 0x20000|s_mov_b32 s{SGU+2}, {448*3584}|s_mov_b32 s{SGU+3}, 0x20000
    s_lshl_b32 s{sMa}, s{sWave}, 10|s_add_u32 s{sMa}, s{sMa}, {WB}|s_mul_i32 s{sKap}, s{sG}, 28|v_lshlrev_b32 v{vL16}, 4, v0''')
    npre = o.get('npre', 4)
    for x in rest[:npre]: k(x)
    rest = rest[npre:]
    k('s_waitcnt lgkmcnt(0)')
    k.stamp(3, 5)
    if o.get('latprobe') is not None:
        n, off = o['latprobe']
        k(f's_lshl_b32 s3, s2, 2\ns_add_u32 s3, s3, s{sWave}\ns_lshl_b32 s3, s3, 8\ns_add_u32 s3, s3, {off}\nv_mov_b32 v{vJ+1}, s3\ns_mov_b64 exec, 1')
        k(f'global_load_dword a0, v{vJ+1}, s[{n}:{n+1}]\ns_waitcnt vmcnt(0)\ns_memrealtime s[96:97]\ns_waitcnt lgkmcnt(0)')
        k(f'global_load_dword a0, v{vJ+1}, s[{n}:{n+1}] offset:128\ns_waitcnt vmcnt(0)\ns_memrealtime s[98:99]\ns_waitcnt lgkmcnt(0)\ns_mov_b64 exec, -1')
        if o.get('stamps'): k(f's_sub_u32 s94, s98, s96\ns_add_u32 s94, s94, s{STAMP0}')
        k('s_sub_u32 s98, s98, s96\ns_mul_i32 s98, s98, 10\ns_add_u32 s98, s98, s100\ns_cmp_lt_u32 s2, 8\ns_cselect_b32 s98, s98, 0')
    if o.get('touch', 0) == 1: touch(k)
    for g in batch(k, 'Q', 0, first=True)[0][5:]:
        for it in g: k.emit(it)
        if rest: k(rest.pop(0))
    assert not rest
    k.nb = 0
    k(f's_cmp_lt_u32 s{sWave}, 2\ns_cselect_b32 s{SGU}, s{SG}, s{SU}\ns_cselect_b32 s{SGU+1}, s{SG+1}, s{SU+1}')
    k.stamp(4, 5)
    if o.get('touch', 0) == 2: touch(k)
    def w0(typ):
        gs = batch(k, typ, 0, first=True)[0][:5]
        if typ == 'KV': k(f's_add_u32 s{sQb}, s{sQb}, 896')
        na = 2 if typ == 'KV' else 1
        for g in gs[:na]:
            for it in g: k.emit(it)
        dma_setup(k, typ)
        for g in gs[na:]:
            for it in g: k.emit(it)
    iftype(k, lambda: w0('KV'), lambda: w0('Q'))
    k.stamp(5, 5)
    if o.get('touch', 0) == 3: touch(k)
    k(f'''v_and_b32 v9, 31, v0
    v_lshrrev_b32 v10, 5, v0
    v_bfe_u32 v18, v0, 1, 3
    v_lshlrev_b32 v12, 7, v9
    v_add_u32 v12, s{sMx}, v12''')
    for ks in range(4):
        k(f'v_or_b32 v13, {2*ks}, v10\nv_xor_b32 v13, v13, v18\nv_lshl_add_u32 v{vXA+ks}, v13, 4, v12')
    k(f'''v_bfe_u32 v13, v0, 2, 2
    v_bfe_u32 v15, v0, 4, 1
    v_lshl_add_u32 v16, v10, 3, v13
    v_lshl_add_u32 v17, v15, 2, v14
    v_cmp_lt_u32 vcc, 5, v17
    v_xor_b32 v18, 1, v17
    v_lshlrev_b32 v19, 6, v16
    v_cndmask_b32 v18, v17, v18, vcc
    v_add_u32 v19, {WB}, v19
    v_lshl_add_u32 v{vAA}, v18, 3, v19''')
    k(f's_bitcmp1_b32 s{sU}, 0\ns_cbranch_scc1 L_typeQ')

def dma_setup(k, typ):
    if typ == 'KV':
        tbl = 0
        for j in range(16): tbl |= ([0,1,3,2][j & 3] if j < 8 else [1,0,2,3][j & 3]) << (2*j)
        k(f's_lshl_b32 s3, s{sJ}, 1\ns_lshr_b32 s3, {hex(tbl)}, s3\ns_and_b32 s3, s3, 3')
        k(f's_mul_i32 s3, s3, 3\ns_add_u32 s{sKap}, s{sKap}, s3\ns_add_u32 s{sKap}, s{sKap}, 16')
        k(f's_and_b32 s3, s{sWave}, 1\ns_mul_i32 s{sFb}, s3, {32*3584}\ns_lshl_b32 s{sT0}, s{sKap}, 5\ns_add_u32 s{sFb}, s{sFb}, s{sT0}')
        k(f's_mul_i32 s{sMf}, s3, 3072\ns_lshr_b32 s3, s{sWave}, 1\ns_mul_i32 s3, s3, 6272\ns_add_u32 s{sMf}, s{sMf}, s3\ns_add_u32 s{sMf}, s{sMf}, {WB+8192}')
        k(f's_movk_i32 s3, {3584-96}')
        for n in range(3):
            k(f'''v_add_u32 v12, {64*n}, v0
            v_mul_u32_u24 v19, 171, v12
            v_lshrrev_b32 v19, 10, v19
            v_mad_u32_u24 v{vFP+n}, v19, s3, v{vL16}''')
    else:
        k(f's_and_b32 s3, s{sJ}, 3\ns_lshl_b32 s3, s3, 2\ns_add_u32 s{sKap}, s{sKap}, s3')
        k(f's_mul_i32 s{sFb}, s{sWave}, {16*3584}\ns_lshl_b32 s{sT0}, s{sKap}, 5\ns_add_u32 s{sFb}, s{sFb}, s{sT0}')
        k(f's_lshl_b32 s{sMf}, s{sWave}, 11\ns_add_u32 s{sMf}, s{sMf}, {WB+4096}')
        k(f'''v_and_b32 v12, 2, v1
        v_xor_b32 v12, v2, v12
        v_mul_u32_u24 v19, 3584, v1
        v_lshl_add_u32 v{vFP}, v12, 4, v19
        v_xor_b32 v12, 4, v12
        v_lshl_add_u32 v{vFP+1}, v12, 4, v19
        v_mov_b32 v{vFP+2}, 0''')

def read_setup(typ):
    if typ == 'KV':
        return items(f'''v_mul_u32_u24 v19, 96, v16|v_mul_u32_u24 v20, 6272, v15|v_lshlrev_b32 v12, 3, v14
        v_add3_u32 v19, v19, v20, v12|v_add_u32 v{vFA}, {WB+8192}, v19
        s_min_u32 s3, s{sWave}, 2|s_lshl_b32 s3, s3, 5|v_add_u32 v{vCA}, s3, v{vFA}
        s_and_b32 s3, s{sWave}, 1|s_lshl_b32 s3, s3, 12|v_add_u32 v{vCA+1}, s3, v{vAA}''')
    r = items(f'''v_lshlrev_b32 v19, 7, v16|v_lshlrev_b32 v20, 13, v15|v_lshlrev_b32 v12, 3, v14
        v_add3_u32 v19, v19, v20, v12|v_add_u32 v19, {WB+4096}, v19|v_lshrrev_b32 v20, 1, v13|v_lshl_add_u32 v20, v15, 1, v20''')
    for seg in range(4): r.append(f'v_xor_b32 v12, {seg}, v20\nv_lshl_add_u32 v{vFA+seg}, v12, 5, v19')
    r.append(f'v_xor_b32 v12, s{sWave}, v20\nv_lshl_add_u32 v{vCA}, v12, 5, v19\nv_mov_b32 v{vCA+1}, v{vAA}')
    return r

def batch(k, typ, slot, first=False):
    g = []; pre = []
    if not first:
        pre += [f's_add_u32 s{sSt}, s{sSt}, 1']
        pre += [f's_cmp_eq_u32 s{sSt}, 7', f's_cselect_b32 s{sSt}, 0, s{sSt}']
    tag = f'b{k.nb}'; k.nb += 1
    pre += [f's_mul_i32 s{sB}, s{sSt}, {64*2688}', f's_add_u32 s{sB}, s{sB}, s{sQb}', f's_add_u32 m0, s{sMa}, {slot*WS_}',
            f's_mul_i32 s{sC}, s{sSt}, {64*3584}']
    g.append(pre + [(f'buffer_load_dwordx4 v{vAP}, {srd(SQ)}, s{sB} offen lds', tag)])
    if typ == 'KV':
        g.append([f's_add_u32 m0, s{sMa}, {slot*WS_+4096}', f's_add_u32 s{sB2}, s{sB}, 896', (f'buffer_load_dwordx4 v{vAP}, {srd(SQ)}, s{sB2} offen lds', tag)])
        g.append([f's_add_u32 m0, s{sMf}, {slot*WS_}', f's_add_u32 s{sC}, s{sC}, s{sFb}', (f'buffer_load_dwordx4 v{vFP}, {srd(SGU)}, s{sC} offen lds', tag)])
        g.append([(f'buffer_load_dwordx4 v{vFP+1}, {srd(SGU)}, s{sC} offen offset:1024 lds', tag)])
        g.append([(f'buffer_load_dwordx4 v{vFP+2}, {srd(SGU)}, s{sC} offen offset:2048 lds', tag)])
    else:
        g.append([f's_add_u32 m0, s{sMf}, {slot*WS_}', f's_add_u32 s{sC}, s{sC}, s{sFb}', (f'buffer_load_dwordx4 v{vFP}, {srd(SG)}, s{sC} offen lds', tag)])
        g.append([f's_add_u32 s{sC2}, s{sC}, {8*3584-1024}', (f'buffer_load_dwordx4 v{vFP}, {srd(SG)}, s{sC2} offen offset:1024 lds', tag)])
        g.append([f's_add_u32 m0, s{sMf}, {slot*WS_+8192}', 's_nop 0', (f'buffer_load_dwordx4 v{vFP+1}, {srd(SU)}, s{sC} offen lds', tag)])
        g.append([(f'buffer_load_dwordx4 v{vFP+1}, {srd(SU)}, s{sC2} offen offset:1024 lds', tag)])
    for n in range(8):
        p = []
        if n == 0: p = [f's_add_u32 m0, s{sMx}, {slot*8192}', f's_lshl_b32 s{sA}, s{sSt}, 7', f's_add_u32 s{sA}, s{sA}, s{sXb}']
        if n == 4: p = [f's_add_u32 m0, s{sMx}, {slot*8192+4096}', f's_add_u32 s{sA}, s{sA}, {32*896}']
        g.append(p + [(f'buffer_load_dwordx4 v{vXP+(n&3)}, {srd(SX)}, s{sA} offen offset:{(n&3)*1024} lds', tag)])
    return g, tag

DSLOT = [1, 1, 2, 0, 1, 2, 0]
def dbatch(ci):
    slot = DSLOT[ci]; tag = f'd{ci}'; g = []
    for n in range(8):
        p = []
        if n == 0: p = [f's_bfe_u32 s{sA}, s{sMu}, {hex(0x40000 + 4*ci)}', f's_mul_i32 s{sA}, s{sA}, {64*896}', f's_add_u32 m0, s{sMx}, {slot*8192}', f's_add_u32 s{sA}, s{sA}, s{sDb}']
        if n == 4: p = [f's_add_u32 m0, s{sMx}, {slot*8192+4096}', f's_add_u32 s{sA}, s{sA}, {32*896}']
        g.append(p + [(f'buffer_load_dwordx4 v{vDP+(n&3)}, {srd(SD)}, s{sA} offen offset:{(n&3)*1024} lds', tag)])
    return g

def obatch():
    g = []
    for n in range(14):
        p = [f's_add_u32 s{sWi}, s{sWi}, 1024', f's_cmp_eq_u32 s{sWi}, {14*1024}', f's_cselect_b32 s{sWi}, 0, s{sWi}'] if n else []
        g.append(p + [f's_add_u32 m0, s{sWo}, s{sWi}', f's_mul_i32 s{sA2}, s{sWi}, 7', f's_add_u32 s{sA2}, s{sA2}, s{sWg}',
                  (f'buffer_load_dwordx4 v{vDP}, {srd(SO)}, s{sA2} offen lds', 'wo')])
    return g

def dreads(ci):
    slot = DSLOT[ci]; r = []
    for kl in range(4):
        for n in range(2):
            for j2 in range(2):
                d = 8*(4*ci + kl) + 4*n + 2*j2
                r.append(f'ds_read_b64_tr_b16 a[{d}:{d+1}], v{vDA+n} offset:{slot*8192 + (16*kl + 8*j2)*128}')
    return r

def wread(typ, c, slot, ks, j2):
    nat = 2 if typ == 'KV' else 1
    row = 16*ks + 4*j2
    if c < nat: return vAA, slot*WS_ + c*4096 + row*64
    seg = c - nat
    if typ == 'KV': return vFA, slot*WS_ + row*96 + seg*32
    return vFA + seg, slot*WS_ + row*128

def frag_reads(typ, b, slot, ks):
    r = [f'ds_read_b128 a[{fX(b,0)}:{fX(b,0)+3}], v{vXA+ks} offset:{slot*8192}']
    for c in range(5):
        for j2 in range(2):
            va, im = wread(typ, c, slot, ks, j2)
            r.append(f'ds_read_b64_tr_b16 a[{fW(b,c)+2*j2}:{fW(b,c)+2*j2+1}], v{va} offset:{im}')
        if c == 0: r.append(f'ds_read_b128 a[{fX(b,1)}:{fX(b,1)+3}], v{vXA+ks} offset:{slot*8192+4096}')
    return r

vCR = 192
vCSt = 174
def cs_reads(typ):
    p = 96 if typ == 'KV' else 128
    return [f'ds_read_b64_tr_b16 {pr(vCR+16*r+4*ks+2*j2)}, v{vCA+r} offset:{(16*ks+4*j2)*(64 if r else p)}' for r in range(2) for ks in range(4) for j2 in range(2)]

def init_items(k, typ):
    l, t, h, z0, z1, oob = vZ, vZ+1, vZ+2, vZ+3, vZ+4, vZ+5
    nat = 2 if typ == 'KV' else 1
    wsb = k.opt.get('wsbase', 0) << 20
    it = ([f's_add_u32 s{SW}, s{SW}, {wsb}\ns_addc_u32 s{SW+1}, s{SW+1}, 0'] if wsb else []) + items(f'''s_mov_b32 s{SW+2}, {(1 << 28) - wsb}
    s_mov_b32 s{SW+3}, 0x20000
    v_lshrrev_b32 v{l}, 4, v{vL16}
    v_mov_b32 v{oob}, {OOB}
    v_and_b32 v{t}, 31, v{l}
    v_lshrrev_b32 v{h}, 5, v{l}
    s_lshl_b32 s{sT2}, s{sRb}, 5
    s_add_u32 s{sT2}, s{sT2}, s{sCg}
    s_lshl_b32 s{sT2}, s{sT2}, 2
    s_add_u32 s{sT2}, s{sT2}, s{sWave}
    s_mul_i32 s{sT1}, s{sT2}, {2*896}
    v_mul_u32_u24 v{z0}, 896, v{h}
    v_lshl_add_u32 v{z0}, v{t}, 4, v{z0}
    v_cmp_lt_u32 vcc, 27, v{t}|s_lshl_b32 s{sT2}, s{sT2}, 4|s_add_u32 s{sT2}, s{sT2}, {WS_ST}|v_cndmask_b32 v{z0}, v{z0}, v{oob}, vcc''')
    it += [(f'buffer_load_dwordx4 {v(vWP,4)}, v{z0}, {srd(SX)}, s{sT1} offen', 'srow'), (f'buffer_load_dwordx4 {v(vWP+4,4)}, v{z0}, {srd(SX)}, s{sT1} offen offset:448', 'srow')]
    it += items(f'''s_lshl_b32 s{sFh}, s{sHo}, 2
    s_add_u32 s{sFh}, s{sFh}, s{sG}
    s_lshl_b32 s{sFh}, s{sFh}, 4
    s_lshr_b32 s{sF2}, s{sU}, 1
    s_add_u32 s{sFh}, s{sFh}, s{sF2}
    s_lshl_b32 s{sFh}, s{sFh}, 7
    s_add_u32 s{sFh}, s{sFh}, {WS_FL + (4*128 if typ == 'KV' else 0)}
    s_mul_i32 s{sHo}, s{sHo}, {144*2048}''')
    if typ == 'KV':
        it += items(f'''s_lshl_b32 s{sF2}, s{sJ}, 2
        s_add_u32 s{sF2}, s{sF2}, s{sWave}
        s_lshl_b32 s{sF2}, s{sF2}, 3
        s_add_u32 s{sF2}, s{sF2}, s{sRb}
        s_lshl_b32 s{sF2}, s{sF2}, 7
        s_add_u32 s{sF2}, s{sF2}, {WS_KF}
        s_lshl_b32 s{sP}, s{sJ}, 3
        s_add_u32 s{sP}, s{sP}, s{sRb}
        s_lshl_b32 s{sP}, s{sP}, 2
        s_add_u32 s{sP}, s{sP}, s{sWave}
        s_lshl_b32 s{sP}, s{sP}, 11
        s_add_u32 s{sP}, s{sP}, {WS_KVP}''')
    else:
        it += items(f'''s_add_u32 s{sF2}, s{sFh}, {8*128}
        s_lshl_b32 s{sP}, s{sJ}, 12
        s_add_u32 s{sP}, s{sP}, s{sHo}
        s_add_u32 s{sP}, s{sP}, {112*2048}''')
    it += [lambda: k.wait('pf')] + [f'v_mov_b32 v{vJ+i}, -1' for i in range(4)]
    it += items(f'''v_lshl_add_u32 v{z0}, v{l}, 2, s{sT2}
    v_cmp_lt_u32 vcc, 5, v{l}|v_writelane_b32 v{z0}, s{sFh}, 4|v_writelane_b32 v{z0}, s{sF2}, 5|v_cndmask_b32 v{z0}, v{z0}, v{oob}, vcc
    v_cmp_eq_u32 vcc, 0, v{t}|v_lshlrev_b32 v{z1}, 3, v{h}|v_mov_b32 v{vOne}, 1|v_cndmask_b32 v{vMB+1}, v{oob}, v{z1}, vcc
    v_cmp_eq_u32 vcc, 0, v{l}|s_lshl_b32 s{sT0}, s{sCg}, 3|s_add_u32 s{sT0}, s{sT0}, s{sRb}|v_cndmask_b32 v{vF0}, v{oob}, v{l}, vcc
    s_mul_i32 s{sT0}, s{sT0}, 640
    s_add_u32 s{sT0}, s{sT0}, {WS_CS}
    v_lshl_add_u32 v{vCSt}, v{t}, 2, s{sT0}''')
    if typ == 'KV':
        it += items(f'''s_add_u32 s3, s{sWave}, 2|s_lshl_b32 s3, s3, 7|s_cmp_lt_u32 s{sWave}, 3|s_cselect_b32 s3, s3, {OOB}|v_mov_b32 v{z1}, s3
        s_lshl_b32 s3, s{sWave}, 7|s_cmp_lt_u32 s{sWave}, 2|s_cselect_b32 s3, s3, {OOB}|v_mov_b32 v{t}, s3''')
    else:
        it += items(f'''s_add_u32 s3, s{sWave}, 1|s_lshl_b32 s3, s3, 7|v_mov_b32 v{z1}, s3
        s_cmp_lt_u32 s{sWave}, 1|s_cselect_b32 s3, 0, {OOB}|v_mov_b32 v{t}, s3''')
    it += items(f'''s_mov_b32 s{sHm}, 0
    s_mov_b32 s{sHm+1}, -1
    v_cndmask_b32 v{z1}, v{z1}, v{t}, s[{sHm}:{sHm+1}]
    v_add_u32 v{vCSt}, v{vCSt}, v{z1}''')
    st = [(f'buffer_store_dword v{vJ}, v{z0}, {srd(SW)}, 0 offen sc1', 'fill'), (f'buffer_store_dword v{vJ}, v{vCSt}, {srd(SW)}, 0 offen sc1', 'fill')]
    st2 = [(f'buffer_store_dwordx4 {v(vJ,4)}, v{vL16}, {srd(SW)}, s{sP} offen offset:{1024*i} sc1', 'fill2') for i in range(2 if typ == 'KV' else 4)]
    return it, st, st2

def cs_items(k):
    a0, a1, a2, a3 = vZ, vZ+1, vZ+2, vZ+3
    it = []
    for r in range(2):
        lo, hi = (a0, a1) if r == 0 else (a2, a3)
        for i in range(16):
            x = vCR + 16*r + i
            if i == 0: it += [f'v_lshlrev_b32 v{lo}, 16, v{x}', f'v_and_b32 v{hi}, 0xffff0000, v{x}']
            else: it += [f'v_lshlrev_b32 v{vZ+4}, 16, v{x}', f'v_and_b32 v{x}, 0xffff0000, v{x}', f'v_add_f32 v{lo}, v{lo}, v{vZ+4}', f'v_add_f32 v{hi}, v{hi}, v{x}']
    it += items(f'''v_add_f32 v{a0}, v{a0}, v{a1}
    v_add_f32 v{a2}, v{a2}, v{a3}|s_cmp_eq_u32 s{sRb}, 7|s_cselect_b32 s{sT0}, 0, -1|v_permlane32_swap_b32 v{a0}, v{a2}
    v_add_f32 v{a0}, v{a0}, v{a2}
    v_cvt_pk_bf16_f32 v{a1}, v{a0}, v{a0}
    v_lshlrev_b32 v{a1}, 16, v{a1}
    v_sub_f32 v{a1}, v{a0}, v{a1}
    v_cvt_pk_bf16_f32 v{a1}, v{a0}, v{a1}
    v_and_b32 v{a1}, s{sT0}, v{a1}''')
    return it, [lambda: k.wait('fill'), (f'buffer_store_dword v{a1}, v{vCSt}, {srd(SW)}, 0 offen sc1', 'csst')]

def prefetch2(k):
    it = []
    for n, size in ((SD, 1792*896), (SO, 448*896)): it += [f's_mov_b32 s{n+2}, {size}', f's_mov_b32 s{n+3}, 0x20000']
    it += [f's_lshl_b32 s3, s{sWave}, 8\ns_add_u32 s3, s3, s2\nv_lshl_add_u32 v{vZ}, v{vL16}, 6, s3', f'v_lshlrev_b32 v{vZ}, 7, v{vZ}']
    it += [(f'buffer_load_dword a0, v{vZ}, {srd(SD)}, 0 offen', 'pf2'), (f'buffer_load_dword a1, v{vZ}, {srd(SO)}, 0 offen', 'pf2')]
    return it

def w2_addr_items():
    l, a_, b_, c_, d_ = vZ, vZ+1, vZ+2, vZ+3, vZ+4
    it = []
    for n, size in ((SD, 1792*896), (SO, 448*896), (SOUT, 2048*896)): it += [f's_mov_b32 s{n+2}, {size}', f's_mov_b32 s{n+3}, 0x20000']
    return it + items(f'''s_and_b32 s{sG2}, s2, 7
    s_lshl_b32 s{sG2}, s{sG2}, 2
    s_bfe_u32 s{sNb}, s2, 0x20003
    s_or_b32 s{sG2}, s{sG2}, s{sNb}
    s_lshr_b32 s{sNb}, s2, 5
    s_lshl_b32 s{sDb}, s{sNb}, 7
    s_mul_i32 s3, s{sWave}, {448*896}|s_add_u32 s{sDb}, s{sDb}, s3
    v_lshrrev_b32 v{l}, 4, v{vL16}
    v_lshrrev_b32 v{a_}, 3, v{l}
    v_mul_u32_u24 v{b_}, 896, v{a_}
    v_and_b32 v{a_}, 2, v{a_}
    v_lshlrev_b32 v{a_}, 1, v{a_}
    v_and_b32 v{c_}, 7, v{l}
    v_xor_b32 v{a_}, v{a_}, v{c_}
    v_lshl_add_u32 v{vDP}, v{a_}, 4, v{b_}
    s_cmp_eq_u32 s{sNb}, 7|s_cselect_b32 s3, {OOB}, 0|v_add_u32 v{vDP}, s3, v{vDP}
    v_add_u32 v{vDP+1}, 6144, v{vDP}
    v_add_u32 v{vDP+2}, {2*6144}, v{vDP}
    v_add_u32 v{vDP+3}, {3*6144}, v{vDP}
    v_bfe_u32 v{a_}, v{l}, 2, 2
    v_lshrrev_b32 v{b_}, 5, v{l}
    v_lshl_add_u32 v{b_}, v{b_}, 2, v{a_}
    v_bfe_u32 v{c_}, v{l}, 4, 1
    v_and_b32 v{d_}, 3, v{l}
    v_lshl_add_u32 v{c_}, v{c_}, 2, v{d_}
    v_lshlrev_b32 v{d_}, 7, v{b_}
    v_lshl_add_u32 v{d_}, v{c_}, 3, v{d_}
    v_add_u32 v{d_}, s{sMx}, v{d_}
    v_lshrrev_b32 v{a_}, 1, v{a_}
    v_lshl_add_u32 v{vDA}, v{a_}, 6, v{d_}
    v_xor_b32 v{a_}, 1, v{a_}
    v_lshl_add_u32 v{vDA+1}, v{a_}, 6, v{d_}
    v_mul_u32_u24 v{b_}, 56, v{b_}
    v_min_u32 v{c_}, 6, v{c_}
    v_lshl_add_u32 v{b_}, v{c_}, 3, v{b_}
    v_add_u32 v{vMB}, {L_PHI}, v{b_}
    s_add_u32 s3, s{sG2}, s{sNb}|s_and_b32 s3, s3, 3|s_lshl_b32 s3, s3, 2|s_lshr_b32 s{sT0}, 0x32103210, s3
    s_and_b32 s{sT0}, s{sT0}, 0xffff
    s_and_b32 s{sT1}, s{sG2}, 3
    s_add_u32 s{sT1}, s{sT1}, s{sNb}
    s_lshl_b32 s{sT1}, s{sT1}, 1
    s_lshr_b32 s{sT1}, 0x124924, s{sT1}
    s_and_b32 s{sT1}, s{sT1}, 3
    s_lshl_b32 s{sT1}, s{sT1}, 2
    s_lshr_b32 s{sT1}, 0x654654, s{sT1}
    s_lshl_b32 s{sT1}, s{sT1}, 16
    s_or_b32 s{sT1}, s{sT1}, s{sT0}''')

def kv_addr_items():
    a_, b_, l = vMB+2, vMB+3, vMB+4
    return [x.replace('|', '\n') for x in f'''v_lshrrev_b32 v{l}, 4, v{vL16}
        v_and_b32 v{a_}, 31, v{l}
        v_mul_u32_u24 v{a_}, {SP}, v{a_}
        v_and_b32 v{b_}, 32, v{l}
        s_mul_i32 s3, s{sWave}, {64*SP}|s_add_u32 s3, s3, {WB}|v_add3_u32 v{vS0}, v{a_}, v{b_}, s3
        v_lshrrev_b32 v{a_}, 4, v{l}
        v_lshlrev_b32 v{a_}, 3, v{a_}
        v_bfe_u32 v{b_}, v{l}, 2, 1
        v_add_u32 v{a_}, v{a_}, v{b_}
        v_bfe_u32 v{b_}, v{l}, 3, 1
        v_lshl_add_u32 v{a_}, v{b_}, 2, v{a_}
        v_mul_u32_u24 v{a_}, {SP}, v{a_}
        v_and_b32 v{b_}, 1, v{l}
        v_lshl_add_u32 v{a_}, v{b_}, 5, v{a_}
        v_bfe_u32 v{b_}, v{l}, 1, 1
        v_lshl_add_u32 v{a_}, v{b_}, 3, v{a_}
        v_add_u32 v{vS0+2}, {WB}, v{a_}
        s_lshl_b32 s3, s{sWave}, 3|s_lshr_b32 s3, 0x50401000, s3|s_and_b32 s3, s3, 0xff|v_add_u32 v{vS0+1}, s3, v{vS0+2}
        v_lshrrev_b32 v{a_}, 4, v{l}
        v_lshlrev_b32 v{a_}, 9, v{a_}
        v_and_b32 v{b_}, 15, v{l}
        v_lshl_add_u32 v{vS0+3}, v{b_}, 4, v{a_}'''.split('\n')]

def stats_items(k):
    X = vWP; Lo = 242; s0, s1, r1, t = 224, 225, 250, 251
    it = [lambda: k.wait('srow')]
    for i in range(8): it += [f'v_lshlrev_b32 v{Lo+i}, 16, v{X+i}', f'v_and_b32 v{X+i}, 0xffff0000, v{X+i}']
    it += [f'v_add_f32 v{s0}, v{Lo}, v{X}', f'v_add_f32 v{s1}, v{Lo+1}, v{X+1}']
    for i in range(2, 8): it += [f'v_add_f32 v{s0}, v{s0}, v{Lo+i}', f'v_add_f32 v{s1}, v{s1}, v{X+i}']
    def red(r):
        o_ = []
        for m in ('quad_perm:[1,0,3,2]', 'quad_perm:[2,3,0,1]', 'row_half_mirror', 'row_mirror'):
            o_.append(f's_nop 1\nv_add_f32_dpp v{r}, v{r}, v{r} {m} row_mask:0xf bank_mask:0xf')
        o_ += [f'v_mov_b32 v{t}, v{r}', f's_nop 1\nv_permlane16_swap_b32 v{r}, v{t}', f'v_add_f32 v{r}, v{r}, v{t}']
        return o_
    it += [f'v_add_f32 v{s0}, v{s0}, v{s1}'] + red(s0) + [f'v_mul_f32 v{s0}, {hex(f2u(-1.0/448))}, v{s0}']
    for i in range(8): it += [f'v_add_f32 v{Lo+i}, v{Lo+i}, v{s0}', f'v_add_f32 v{X+i}, v{X+i}, v{s0}']
    it += [f'v_mul_f32 v{s1}, v{Lo}, v{Lo}', f'v_mul_f32 v{r1}, v{X}, v{X}']
    for i in range(1, 8): it += [f'v_fmac_f32 v{s1}, v{Lo+i}, v{Lo+i}', f'v_fmac_f32 v{r1}, v{X+i}, v{X+i}']
    it += ['s_mov_b32 vcc_lo, 0xf0000000', 's_mov_b32 vcc_hi, 0xf0000000', f'v_add_f32 v{r1}, v{r1}, v{s1}', f'v_cndmask_b32 v{r1}, v{r1}, 0, vcc']
    it += red(r1) + [f'v_mov_b32 v{s1}, {hex(f2u(1e-5))}', f'v_fmac_f32 v{s1}, {hex(f2u(1.0/448))}, v{r1}']
    it += [lambda: k.wait('fill'), (f'buffer_store_dwordx2 v[{s0}:{s1}], v{vMB+1}, {srd(SW)}, s{sT2} offen sc1', 'stst')]
    return it

def st_loads():
    r = [f'buffer_load_dwordx2 v[{vST+2*tt}:{vST+2*tt+1}], v{vPA}, {srd(SW)}, s{sT2} offen offset:{256*tt} sc1' for tt in range(2)]
    r += [f'buffer_load_dword v{vCT+c}, v{vU0}, {srd(SW)}, s{sC} offen offset:{128*c} sc1' for c in range(5)]
    return r
def st_check():
    regs = [vST+i for i in range(4)] + [vCT+i for i in range(5)]
    r = [f'v_max3_u32 v{vU1}, v{regs[0]}, v{regs[1]}, v{regs[2]}']
    for i in range(3, 9, 2): r.append(f'v_max3_u32 v{vU1}, v{vU1}, v{regs[i]}, v{regs[i+1]}')
    return r

def main_loop(k, typ):
    o = k.opt
    t0 = 'b0'; k.nb = 1
    pend, t1 = batch(k, typ, 1)
    rs = read_setup(typ)
    for x in rs[:2]: k(x)
    rs = rs[2:]
    npre = o.get('pre1', 8)
    for g in pend[:npre]:
        for it in g: k.emit(it)
        if rs: k(rs.pop(0))
    for x in rs: k(x)
    pend = pend[npre:]
    k.stamp(1)
    k.wait(t0)
    k('s_barrier')
    k.stamp(2)
    for r in frag_reads(typ, 0, 0, 0): k(r)
    tags = {0: t0, 1: t1}
    ini, fills, fills2 = init_items(k, typ)
    csv, cspub = cs_items(k)
    lazy = list(ini)
    csr_all = cs_reads(typ)
    c0 = -2*math.sqrt(2/math.pi)*math.log2(math.e)
    steps = [(s, ks) for s in range(7) for ks in range(4)] + [(7, 0)]
    order = list(range(5)) if typ == 'KV' else [1, 2, 3, 4, 0]
    phase = 0
    for (s, ks) in steps:
        slot = s % 3
        b = (4*s + ks) & 1
        reads = []
        if s < 7:
            if ks < 3: reads = frag_reads(typ, b ^ 1, slot, ks+1)
            elif s < 6: reads = frag_reads(typ, b ^ 1, (s+1) % 3, 0)
            else: reads = [f'ds_read_b128 {a(fW(b^1,c),4)}, v{vU0} offset:{c*1024}' for c in order]
        if s == 0 and ks == 0:
            g2, tags[2] = batch(k, typ, 2)
            g2.append([f's_mov_b32 s{SPH+2}, {16*1568}', f's_mov_b32 s{SPH+3}, 0x20000', f's_and_b32 s{sC2}, s{sWave}, 1', f's_lshl_b32 s{sC2}, s{sC2}, 10', f's_add_u32 m0, s{sC2}, {L_PHI}',
                       f's_mul_i32 s{sB}, s{sJ}, 1568', f's_add_u32 s{sB}, s{sB}, s{sC2}', (f'buffer_load_dwordx4 v{vL16}, {srd(SPH)}, s{sB} offen lds', tags[2])])
            pend += g2
        if s == 0 and ks < 3: reads += csr_all[6*ks:6*ks+6]
        if phase == 0 and not lazy and (s, ks) >= (0, 3):
            lazy += fills + csv; phase = 1
        AT = tuple(o.get('atomat', (1, 3)))
        if phase == 1 and not lazy and (s, ks) > AT:
            lazy += cspub + (prefetch2(k) if o.get('pf2', 1) else []) + stats_items(k) + w2_addr_items(); phase = 2
        extra = []
        if (s, ks) == (4, 2):
            assert phase == 2
            extra += lazy; lazy = []
        if (s, ks) == (5, 0):
            assert all(g[-1][1][0] == 'd' for g in pend) and len(pend) < 8
            reads += [f'ds_read_b64_tr_b16 {pr(vWP+4*s_+2*j2)}, v{vMB} offset:{(16*s_+8*j2)*56}' for s_ in range(2) for j2 in range(2)]
            lazy += setup_early()
            if typ == 'KV': lazy += kv_addr_items()
        if (s, ks) == (5, 1):
            extra += [f'v_mov_b32_dpp v{vWP+i}, v{vWP+i} quad_perm:[2,3,2,3] row_mask:0xa bank_mask:0x8' for i in range(8)]
            extra += [f'v_cndmask_b32 v{vWP+i}, v{vWP+i}, 0, s[{sHm}:{sHm+1}]' for i in (6, 7)]
        if (s, ks) == (5, 1): extra += fills2
        for ci, at in ((0, (5, 2)), (1, (7, 0))):
            if (s, ks) == at:
                assert f'i{ci}' in k.done
                extra += [lambda ci=ci: k.wait(f'd{ci}')] + dreads(ci) + [k.mark(f'r{ci}')]
        if (s, ks) == tuple(o.get('stat', (6, 2))):
            extra.append(lambda: k.wait('stld'))
            extra += st_check()
            def chk2():
                L = k.A.label('L_st')
                k(f'v_cmp_eq_u32 vcc, -1, v{vU1}\ns_cbranch_vccnz {L}f\n{L}b:')
                k.tail.append(f's_nop 0\n{L}f:\ns_mov_b32 s{sSpin}, 0\n{L}l:\n' + '\n'.join(st_loads()) + f'\ns_add_u32 s{sSpin}, s{sSpin}, 1\ns_waitcnt vmcnt(0)\n' + '\n'.join(st_check()) +
                              f'\nv_cmp_eq_u32 vcc, -1, v{vU1}\ns_cbranch_vccz {L}b\ns_cmp_lt_u32 s{sSpin}, {o.get("spin", 200000)}\ns_cbranch_scc1 {L}l\ns_branch {L}b')
            extra.append(chk2)
            extra += [f'v_add_u32 v{vU0}, {L_CS}, v{vL16}', f's_lshl_b32 s3, s{sWave}, 2\nv_add_u32 v{vU1}, s3, v{vU0}']
            extra += [f'ds_write_b32 v{vU1}, v{vCT+c} offset:{c*1024}' for c in range(5)]
        if (s, ks) == (6, 3):
            for tt in range(2): extra += [f'v_cvt_pk_bf16_f32 v{vMB+4*tt+i}, v{vST+2*tt}, v{vST+2*tt}' for i in range(4)]
            for tt in range(2): extra.append(f'v_rsq_f32 v{vP3+2*tt}, v{vST+2*tt+1}')
            extra.append('s_nop 0')
            for tt in range(2):
                extra += [f'v_mul_f32 v{vU1}, v{vP3+2*tt}, v{vP3+2*tt}', f'v_mul_f32 v{vP2+2*tt}, {hex(f2u(c0))}, v{vP3+2*tt}', f'v_mul_f32 v{vP3+2*tt+1}, {hex(f2u(math.log2(math.e)))}, v{vP3+2*tt}',
                          f'v_mul_f32 v{vU1}, {hex(f2u(0.044715))}, v{vU1}', f'v_mul_f32 v{vP2+2*tt+1}, v{vP2+2*tt}, v{vU1}']
        k('s_waitcnt lgkmcnt(0)')
        mf = []
        for c in (order if s == 7 else range(5)):
            for tt in range(2):
                D = acc(c, tt); C = '0' if (s == 0 and ks == 0) else v(D, 16)
                A_, B = a(fW(b,c),4), (a(fX(b,tt),4) if s < 7 else v(vMB+4*tt, 4))
                mf.append(f'v_mfma_f32_32x32x16_bf16 {v(D,16)}, {A_}, {B}, {C}')
        gaps = [[] for _ in range(10)]
        if s == 7 and typ == 'Q': gaps[0].append('s_barrier')
        if ks == 3:
            assert s == 6 or all(g[-1][1] != tags[s+1] for g in pend)
            def bar(s=s):
                if s < 6: k.wait(tags[s+1], *(['fill'] if (s, 3) == AT else []))
                k('s_barrier')
            gaps[0].append(bar)
            if (s, 3) == AT:
                assert phase == 1 and not any(isinstance(x, tuple) for x in lazy)
                gaps[1] += [f's_mov_b32 s{SDBG+2}, 256\ns_mov_b32 s{SDBG+3}, 0x20000\ns_and_b32 s3, s2, 1\ns_lshl_b32 s3, s3, 7\ns_cmp_eq_u32 s{sWave}, 0\ns_cselect_b32 s3, s3, {OOB}\nv_or_b32 v{vPA}, s3, v{vF0}',
                            (f'buffer_atomic_add v{vOne}, v{vPA}, {srd(SDBG)}, 0 offen', 'atom')]
            IL = f'buffer_load_dword v{vPoll}, v{vPA}, {srd(SDBG)}, 0 offen sc1'
            if s == 4: gaps[1] += [f'v_lshlrev_b32 v{vPA}, 3, v{vL16}', (IL, 'ipoll')]
            if s == 5:
                gaps[1].append(lambda: gate(k, 'L_in', 'ipoll', IL, f'v_cmp_gt_u32 vcc, 128, v{vPoll}', 3))
                extra = items(f'''v_bfe_u32 v{vPA}, v{vL16}, 1, 8
                s_lshl_b32 s{sT2}, s{sRb}, 2
                s_add_u32 s{sT2}, s{sT2}, s{sWave}
                s_lshl_b32 s{sT2}, s{sT2}, 9
                s_add_u32 s{sT2}, s{sT2}, {WS_ST}
                v_lshrrev_b32 v{vU1}, 9, v{vL16}
                v_mul_u32_u24 v{vU1}, 640, v{vU1}
                v_lshrrev_b32 v{vU0}, 1, v{vPA}
                v_add_u32 v{vU0}, v{vU0}, v{vU1}
                s_lshl_b32 s{sC}, s{sCg}, 2
                s_add_u32 s{sC}, s{sC}, s{sWave}
                s_mul_i32 s{sC}, s{sC}, 1280
                s_add_u32 s{sC}, s{sC}, {WS_CS}''') + [(l, 'stld') for l in st_loads()] + extra
            if s + 3 <= 6:
                g_, tags[s+3] = batch(k, typ, s % 3); pend += g_
            else:
                for ci in {4: [0], 5: [1, 2], 6: [3]}[s]:
                    g_ = dbatch(ci)
                    if ci == 0: g_[0] = [f's_mov_b32 s{sMu}, s{sT1}'] + g_[0]
                    g_[-1] = [k.mark(f'i{ci}')] + g_[-1]
                    pend += g_
        rd = list(reads)
        gi = 1 if ks == 3 else 0
        while rd:
            gaps[gi] += rd[:3]; rd = rd[3:]; gi += 1
        remaining_ks = {3: 4, 0: 3, 1: 2, 2: 1}[ks]
        if (s, ks) == (6, 3): remaining_ks = 2
        if s == 7: remaining_ks = 1
        nd = min(-(-len(pend) // remaining_ks), o.get('rate', 5))
        if (s, ks) >= (4, 3): nd = min(len(pend), {(4,3): 4, (5,0): 4, (5,3): 0}.get((s, ks), 5))
        pos = {0: [], 1: [5], 2: [3, 7], 3: [2, 5, 8], 4: [2, 4, 6, 8], 5: [1, 3, 5, 7, 9]}[nd]
        for p in pos: gaps[p] += pend.pop(0)
        wt = lambda it: 3 if isinstance(it, tuple) else 1 if callable(it) else it.count('\n') + 1
        load_ = [sum(wt(x) for x in gp) for gp in gaps]
        cap = o.get('cap', 5)
        while sum(max(0, cap - x) for x in load_[1:]) < sum(wt(x) for x in extra): cap += 1
        gi = 1; q = list(extra); nx = len(q); q += lazy; used = 0
        for n_, it in enumerate(q):
            while gi < 10 and load_[gi] >= cap: gi += 1
            if gi == 10:
                if n_ >= nx: break
                gi = 9
            gaps[gi].append(it); load_[gi] += wt(it); used = n_ + 1
        lazy = lazy[max(0, used - nx):]
        for i in range(10):
            k(mf[i])
            for it in gaps[i]: k.emit(it)
        if ks == 3: k.stamp(3 + s, grp=2)
        if o.get('verbose'): print(typ, s, ks, 'load', load_, 'lazy', len(lazy), 'pend', len(pend), 'phase', phase)
    assert not pend and not lazy
    k.stamp(3)

def w2_background(k, wo_ok):
    GAP = k.opt.get('gap', 70); LAT = k.opt.get('dlat', 600)
    yes = lambda: True
    def issue(ci):
        gs = dbatch(ci)
        gs[0] = ['s_waitcnt lgkmcnt(0)'] + gs[0]; gs[-1] = gs[-1] + [k.mark(f'i{ci}')]
        for g in gs: k.bg.append((GAP, g, yes))
    def read(ci):
        r = dreads(ci)
        k.bg.append((16, [lambda: k.wait(f'd{ci}')] + r[:4], (lambda: not k.no_ds and k.t >= k.done[f'i{ci}'] + LAT) if ci < 4 else (lambda: not k.no_ds and f'd{ci}' not in k.vm)))
        for q in range(1, 4): k.bg.append((16, r[4*q:4*q+4] + ([k.mark(f'r{ci}')] if q == 3 else []), lambda: not k.no_ds))
    issue(4)
    for ci in (2, 3): read(ci); issue(ci + 3)
    for ci in (4, 5, 6): read(ci)
    gs = obatch(); gs[-1] = gs[-1] + [k.mark('wo')]
    if k.opt.get('x_nowo'): gs = [[k.mark('wo')]]
    for g in gs: k.bg2.append((k.opt.get('gapo', GAP), g, wo_ok))
    k.lastbg = k.t

def flag_store(k, sreg):
    k.vmem(f'buffer_store_dword v{vOne}, v{vF0}, {srd(SW)}, s{sreg} offen sc1', 'flag')

def hint_later(k):
    k.timed.append((k.t + k.opt.get('hint', 0), lambda: (flag_store(k, sF2), k.stamp(8, 4)), 'hint'))
    k.run_timed()

def flag_later(k, tag, sreg):
    def fn():
        k.wait(tag); flag_store(k, sreg); k.stamp(3, 4)
    k.timed.append((k.t + k.opt.get('drain', 800), fn, tag))

def ffn_unit(k, c, tt, seg):
    A_ = acc(c, tt); P1 = vST + 2*tt; P2 = vP2 + 2*tt; T = vCT
    for i in range(4): k.f(f'v_pk_mul_f32 {pr(T+2*i)}, {pr(A_+2*i)}, {pr(A_+2*i)}')
    for i in range(4): k.f(f'v_pk_fma_f32 {pr(T+2*i)}, {pr(T+2*i)}, {pr(P2)}, {pr(P2)} op_sel:[0,1,0] op_sel_hi:[1,1,0]')
    for i in range(4): k.f(f'v_pk_mul_f32 {pr(T+2*i)}, {pr(A_+2*i)}, {pr(T+2*i)}')
    for i in range(8): k.f(f'v_exp_f32 v{T+i}, v{T+i}')
    for i in range(4): k.f(f'v_pk_mul_f32 {pr(A_+2*i)}, {pr(A_+2*i)}, {pr(A_+8+2*i)}')
    for i in range(4): k.f(f'v_pk_fma_f32 {pr(T+2*i)}, {pr(T+2*i)}, {pr(P1)}, {pr(P1)} op_sel:[0,1,1] op_sel_hi:[1,1,1]')
    for i in range(8): k.f(f'v_rcp_f32 v{T+i}, v{T+i}')
    if tt == 0 and seg == 0: k.f(f's_lshl_b32 s{sC}, s{sKap}, 11\ns_add_u32 s{sC}, s{sC}, s{sHo}')
    elif tt == 0 and seg == 2: k.f(f's_add_u32 s{sC}, s{sC}, 4096')
    for i in range(4): k.f(f'v_pk_mul_f32 {pr(A_+2*i)}, {pr(A_+2*i)}, {pr(T+2*i)}')
    for i in range(4): k.f(f'v_cvt_pk_bf16_f32 v{A_+8+i}, v{A_+2*i}, v{A_+2*i+1}')
    if not k.opt.get('x_nohst'): k.vmem(f'buffer_store_dwordx4 {v(A_+8,4)}, v{vL16}, {srd(SW)}, s{sC} offen offset:{(seg&1)*2048+tt*1024} {k.opt.get("x_hfl", "sc1")}', 'hst')
    if c >= 2: k.stamp(4 + 2*(c-2) + tt, 6)
    k.lastbg = k.t - 30

def ffn_epilogue(k, typ, hooks={}):
    nat = 2 if typ == 'KV' else 1
    for c in range(nat, 5):
        for tt in range(2):
            if (c, tt) in hooks: hooks[(c, tt)]()
            ffn_unit(k, c, tt, c - nat)
    flag_later(k, 'hst', sFh)

def pack8(k, src, dst, n=8):
    for i in range(n): k.f(f'v_cvt_pk_bf16_f32 v{dst+i}, v{src+2*i}, v{src+2*i+1}')

def project(k, E):
    for tt in range(2): pack8(k, acc(0, tt), E + 8*tt)
    k('s_nop 1')
    for tt in range(2):
        P = acc(0, tt)
        k(f'v_mfma_f32_32x32x16_bf16 {v(P,16)}, {v(vWP,4)}, {v(E+8*tt,4)}, 0')
        k(f'v_mfma_f32_32x32x16_bf16 {v(P,16)}, {v(vWP+4,4)}, {v(E+8*tt+4,4)}, {v(P,16)}')

def softmaxes(k, M, F, after=None):
    T = [vT, vT + 4]; S = vCT
    R = range(2)
    P = [acc(0, 0), acc(0, 1)]
    for tt in R: k.f(f'v_max3_f32 v{T[tt]}, v{P[tt]}, v{P[tt]+1}, v{P[tt]+2}\nv_min3_f32 v{T[tt]+1}, v{P[tt]}, v{P[tt]+1}, v{P[tt]+2}')
    for i in range(3, 13, 2):
        for tt in R: k.f(f'v_max3_f32 v{T[tt]}, v{T[tt]}, v{P[tt]+i}, v{P[tt]+i+1}\nv_min3_f32 v{T[tt]+1}, v{T[tt]+1}, v{P[tt]+i}, v{P[tt]+i+1}')
    for tt in R: k.f(f'v_max_f32 v{T[tt]}, v{T[tt]}, v{P[tt]+13}\nv_min_f32 v{T[tt]+1}, v{T[tt]+1}, v{P[tt]+13}')
    for tt in R: k.f(f'v_mov_b32 v{T[tt]+2}, v{T[tt]}\nv_mov_b32 v{T[tt]+3}, v{T[tt]+1}')
    k.f('s_nop 0')
    for tt in R: k.f(f'v_permlane32_swap_b32 v{T[tt]}, v{T[tt]+2}\nv_permlane32_swap_b32 v{T[tt]+1}, v{T[tt]+3}')
    for tt in R: k.f(f'v_max_f32 v{T[tt]}, v{T[tt]}, v{T[tt]+2}\nv_min_f32 v{T[tt]+1}, v{T[tt]+1}, v{T[tt]+3}')
    for tt in R: k.f(f'v_pk_mul_f32 {pr(T[tt])}, {pr(T[tt])}, {pr(vP3+2*tt)} op_sel:[0,1] op_sel_hi:[1,1]')
    for tt in R:
        L = pr(vP3 + 2*tt); p = P[tt]; m = M[tt]; t = T[tt]; s_ = S + 4*tt
        for i in range(7): k.f(f'v_pk_fma_f32 {pr(m+2*i)}, {pr(p+2*i)}, {L}, {pr(t)} op_sel:[0,1,1] op_sel_hi:[1,1,1] neg_lo:[1,0,0] neg_hi:[1,0,0]')
        for i in range(7): k.f(f'v_pk_fma_f32 {pr(p+2*i)}, {pr(p+2*i)}, {L}, {pr(t)} op_sel:[0,1,0] op_sel_hi:[1,1,0] neg_lo:[0,0,1] neg_hi:[0,0,1]')
        for i in range(14): k.f(f'v_exp_f32 v{m+i}, v{m+i}')
        for i in range(14): k.f(f'v_exp_f32 v{p+i}, v{p+i}')
        k.f(f'v_pk_add_f32 {pr(s_+2)}, {pr(m)}, {pr(m+2)}\nv_pk_add_f32 {pr(s_)}, {pr(p)}, {pr(p+2)}')
        for i in range(2, 7): k.f(f'v_pk_add_f32 {pr(s_+2)}, {pr(s_+2)}, {pr(m+2*i)}\nv_pk_add_f32 {pr(s_)}, {pr(s_)}, {pr(p+2*i)}')
        k.f(f'v_add_f32 v{t+1}, v{s_+2}, v{s_+3}\nv_add_f32 v{t}, v{s_}, v{s_+1}\nv_add_f32 v{t+3}, v{s_+2}, v{s_+3}\nv_add_f32 v{t+2}, v{s_}, v{s_+1}')
        k.f(f's_waitcnt lgkmcnt(0)\nv_mov_b32 v{F[tt]+7}, 0')
        k.f(f'v_permlane32_swap_b32 v{t+1}, v{t+3}\nv_permlane32_swap_b32 v{t}, v{t+2}')
        k.f(f'v_pk_add_f32 {pr(t)}, {pr(t)}, {pr(t+2)}\nv_rcp_f32 v{t}, v{t}\nv_rcp_f32 v{t+1}, v{t+1}\nv_mov_b32 v{F[tt]+15}, 0')
        for i in range(7): k.f(f'v_pk_mul_f32 {pr(p+2*i)}, {pr(p+2*i)}, {pr(t)} op_sel_hi:[1,0]')
        for i in range(7): k.f(f'v_pk_mul_f32 {pr(m+2*i)}, {pr(m+2*i)}, {pr(t)} op_sel:[0,1] op_sel_hi:[1,1]')
        pack8(k, p, F[tt], 7); pack8(k, m, F[tt]+8, 7)
        if after: after(tt)

def kv_part(k):
    E = 192
    project(k, E)
    V = 168
    for tt in range(2):
        A_ = acc(1, tt)
        for i in range(16): k.f(f'v_mul_f32 v{A_+i}, v{A_+i}, v{vP3+2*tt}')
        k.f(f'v_cndmask_b32 v{A_+12}, v{A_+12}, 1.0, s[{sHm}:{sHm+1}]')
        k.f(f'v_cndmask_b32 v{A_+13}, v{A_+13}, 0, s[{sHm}:{sHm+1}]')
        pack8(k, A_, V + 8*tt)
        k.f(f'v_cndmask_b32 v{V+8*tt+7}, v{V+8*tt+7}, 0, s[{sHm}:{sHm+1}]')
        for q in range(2): k.f(f'ds_write_b128 v{vS0}, {v(V+8*tt+4*q,4)} offset:{tt*32*SP+128+16*q}')
    k.stamp(4, 3)
    def wr(tt):
        for sec in range(2):
            for q in range(2): k.f(f'ds_write_b128 v{vS0}, {v(168+8*sec+4*q,4)} offset:{tt*32*SP+64*sec+16*q}')
    softmaxes(k, [acc(1, 0), acc(1, 1)], [168, 168], after=wr)
    k.stamp(5, 3)
    k('s_waitcnt lgkmcnt(0)\ns_barrier')
    k.stamp(6, 3)
    D = 208
    D = 204
    def rd(kk):
        base = 12*(kk % 5)
        for j2 in range(2):
            im = (32*kk + 2*j2)*SP
            k(f'ds_read_b64_tr_b16 {pr(base+2*j2)}, v{vS0+1} offset:{im}')
            for dt in range(2): k(f'ds_read_b64_tr_b16 {pr(base+4+4*dt+2*j2)}, v{vS0+2} offset:{im+128+16*dt}')
    k.no_ds = True
    rd(0); rd(1)
    for kk in range(8):
        if kk + 2 < 8: rd(kk + 2)
        k.t += 30; k.tick()
        k(f's_waitcnt lgkmcnt({min(12, 6*(7-kk))})')
        base = 12*(kk % 5)
        for dt in range(2):
            k(f'v_mfma_f32_16x16x32_bf16 {v(D+4*dt,4)}, {v(base,4)}, {v(base+4+4*dt,4)}, {"0" if kk == 0 else v(D+4*dt,4)}')
    k('s_barrier\ns_nop 6')
    k.scratch_free = True; k.no_ds = False
    assert 'fill2' not in k.vm
    for dt in range(2): k.vmem(f'buffer_store_dwordx4 {v(D+4*dt,4)}, v{vS0+3}, {srd(SW)}, s{sP} offen offset:{256*dt} sc1', 'kvst')
    hint_later(k)

QF = [128, 144]
def q_part(k):
    project(k, 96)
    for x in setup_q(): k.f(x)
    k.f('s_nop 3')
    softmaxes(k, [64, 80], QF, after=lambda tt: (k.run_timed('hst'), k.vmem(FL_LOAD(0), 'smp0')) if tt == k.opt.get('qsamp', 0) else None)

AC = 0; HB = 64
vPB, vPK = 160, 161
vPoll1, vPoll2 = 162, 163
vOUT = 168
vOA = 170
vRW, vRR = 174, 175
vKW, vKR = 177, 178
vV = 179
XR = 180
vSum = 192
vN = 204
aOF, aKF = 224, 240

def setup_early():
    return [x.strip().replace('|', '\n') for x in f'''v_lshlrev_b32 v{vPB}, 3, v{vL16}
    v_mov_b32 v{vPoll1}, {OOB}
    v_cmp_gt_u32 vcc, {16*8}, v{vL16}|s_nop 1|v_cndmask_b32 v{vPK}, v{vPoll1}, v{vPB}, vcc
    v_cmp_gt_u32 vcc, {16*4}, v{vL16}|s_nop 1|v_cndmask_b32 v{vPB}, v{vPoll1}, v{vPB}, vcc
    s_lshl_b32 s{sB}, s{sG2}, 2
    s_add_u32 s{sB}, s{sB}, s{sWave}
    s_lshl_b32 s{sT1}, s{sB}, 11
    s_add_u32 s{sT1}, s{sT1}, {WS_FL}
    s_mul_i32 s{sB}, s{sB}, {16*896}
    s_lshl_b32 s{sB2}, s{sNb}, 7
    s_add_u32 s{sB}, s{sB}, s{sB2}
    s_add_u32 s{sB2}, s{sB}, {8*896}
    s_and_b32 s{sWi}, s{sG2}, 3
    s_mul_i32 s{sWi}, s{sWi}, 3584
    s_andn2_b32 s{sWi}, s{sWi}, 1023
    s_mul_i32 s{sWo}, s{sWave}, {14*1024}
    s_add_u32 s{sWo}, s{sWo}, {WB}
    s_mul_i32 s{sWg}, s{sWave}, {(112-448)*896}
    s_add_u32 s{sWg}, s{sWg}, s{sDb}
    s_mul_i32 s{sOb}, s{sG2}, {144*2048}
    s_mul_i32 s{sH0}, s{sWave}, {28*2048}
    s_add_u32 s{sH0}, s{sH0}, s{sOb}
    s_lshl_b32 s{sH}, s{sWave}, 14
    s_add_u32 s{sOb}, s{sOb}, s{sH}
    s_add_u32 s{sOb}, s{sOb}, {112*2048}'''.split('\n')]

def setup_q():
    return [x.strip().replace('|', '\n') for x in f'''v_add_u32 v{vKR}, {L_KVF}, v{vL16}
    s_lshl_b32 s3, s{sWave}, 10|v_add_u32 v{vKW}, s3, v{vKR}
    s_lshl_b32 s{sT2}, s{sJ}, 2
    s_add_u32 s{sT2}, s{sT2}, s{sWave}
    s_lshl_b32 s{sT2}, s{sT2}, 10
    s_add_u32 s{sT2}, s{sT2}, {WS_KF}
    s_lshl_b32 s{sKb}, s{sJ}, 5
    s_add_u32 s{sKb}, s{sKb}, s{sWave}
    s_lshl_b32 s{sKb}, s{sKb}, 11
    s_add_u32 s{sKb}, s{sKb}, {WS_KVP}'''.split('\n')]

def setup_late():
    T = vT + 8
    return [x.strip().replace('|', '\n') for x in f'''v_lshrrev_b32 v{T}, 7, v{vL16}
    v_mul_u32_u24 v{vOUT}, 896, v{T}
    v_and_b32 v{T+1}, 0x70, v{vL16}
    v_add_u32 v{vOUT}, v{vOUT}, v{T+1}
    v_mul_u32_u24 v{vRR}, {RP}, v{T}
    v_lshl_add_u32 v{vRR}, v{T+1}, 1, v{vRR}
    s_mul_i32 s3, s{sWave}, {16*RP}|v_add_u32 v{vRR}, s3, v{vRR}
    v_add_u32 v{vRR+1}, {2*XW}, v{vRR}
    v_bfe_u32 v{T}, v{vL16}, 4, 5
    v_mul_u32_u24 v{vRW}, {RP}, v{T}
    v_lshrrev_b32 v{T}, 9, v{vL16}
    v_lshl_add_u32 v{vRW}, v{T}, 4, v{vRW}
    v_add_u32 v{vRW}, s{sMx}, v{vRW}
    s_sub_u32 s3, s{sWo}, s{sMx}|v_add_u32 v{vOA}, s3, v{vDA}|v_add_u32 v{vOA+1}, s3, v{vDA+1}
    v_and_b32 v{T}, 0x200, v{vL16}
    v_sub_u32 v{vOA+2}, v{vOA}, v{T}
    v_sub_u32 v{vOA+3}, v{vOA+1}, v{T}'''.split('\n')] + [
        (f'buffer_load_dwordx4 {v(XR,4)}, v{vOUT}, {srd(SX)}, s{sB} offen', 'xr'), (f'buffer_load_dwordx4 {v(XR+4,4)}, v{vOUT}, {srd(SX)}, s{sB2} offen', 'xr')]

def o_steps(k):
    T = vT
    st = []
    st.append((0, [lambda: k.stamp(5, 4)] + [f'v_cvt_pk_bf16_f32 v{vSum+8+i}, v{vSum+2*i}, v{vSum+2*i+1}' for i in range(4)] + [f'ds_write_b128 v{vKW}, {v(vSum+8,4)}']))
    st.append((2, ['s_waitcnt lgkmcnt(0)', 's_barrier', lambda: k.stamp(6, 4)] + [f'ds_read_b128 {a(aKF+4*s_,4)}, v{vKR} offset:{s_*1024}' for s_ in range(4)]))
    mm = [f'v_mfma_f32_32x32x16_bf16 {v(vN+16*tt,16)}, {a(aKF+4*s_,4)}, {v(QF[tt]+4*s_,4)}, {"0" if s_ == 0 else v(vN+16*tt,16)}' for tt in range(2) for s_ in range(4)]
    st.append((3, ['s_waitcnt lgkmcnt(0)\n' + '\n'.join(mm) + '\ns_nop 7']))
    fin = []
    for tt in range(2):
        N = vN + 16*tt
        fin += [f'v_mov_b32 v{T}, v{N+12}', f'v_mov_b32 v{T+1}, v{N+12}', f'v_cndmask_b32 v{N+12}, v{N+12}, 0, s[{sHm}:{sHm+1}]', 's_nop 0', f'v_permlane32_swap_b32 v{T}, v{T+1}',
                f'v_add_f32 v{T}, {hex(f2u(1e-6))}, v{T+1}', f'v_rcp_f32 v{T}, v{T}', 's_nop 0']
        fin += [f'v_mul_f32 v{N+i}, v{N+i}, v{T}' for i in range(16)]
        fin += [f'v_cvt_pk_bf16_f32 v{N+i}, v{N+2*i}, v{N+2*i+1}' for i in range(8)]
        fin += [(f'buffer_store_dwordx4 {v(N+4*s_,4)}, v{vL16}, {srd(SW)}, s{sP} offen offset:{2048*s_+1024*tt} sc1', 'ost') for s_ in range(2)]
    fin.append(lambda: hint_later(k))
    st.append((0, fin))
    return st

FL_LOAD = lambda i: f'buffer_load_dword v{vPoll1}, v{vPB}, {srd(SW)}, s{sT1} offen offset:{512*i} sc1'
KF_LOAD = f'buffer_load_dword v{vPoll2}, v{vPK}, {srd(SW)}, s{sT2} offen sc1'

def validate(k, r0, r1, base, off):
    L = k.A.label('L_v')
    k(f's_mov_b32 s{sSpin}, 0\n{L}c:\nv_max3_u32 v{vV}, v{r0}, v{r0+1}, v{r0+2}\nv_max3_u32 v{vV}, v{vV}, v{r0+3}, v{r1}\nv_max3_u32 v{vV}, v{vV}, v{r1+1}, v{r1+2}\nv_max_u32 v{vV}, v{vV}, v{r1+3}')
    k(f'v_cmp_eq_u32 vcc, -1, v{vV}\ns_cbranch_vccnz {L}f\n{L}b:')
    k.tail.append(f'''{L}f:
    s_add_u32 s{sSpin}, s{sSpin}, 1
    s_cmp_gt_u32 s{sSpin}, {k.opt.get("spin", 200000)//64}
    s_cbranch_scc1 {L}b
    s_add_u32 s3, s{base}, {off}
    buffer_load_dwordx4 {v(r0,4)}, v{vL16}, {srd(SW)}, s3 offen sc1
    buffer_load_dwordx4 {v(r1,4)}, v{vL16}, {srd(SW)}, s3 offen offset:1024 sc1
    s_waitcnt vmcnt(0)
    s_branch {L}c''')

def o_only(k):
    spin(k, 'L_kq', KF_LOAD, f'v_cmp_eq_u32 vcc, -1, v{vPoll2}', None)
    k.vm = []
    for rb in range(8):
        k(f's_add_u32 s{sKc}, s{sKb}, {8192*rb}')
        for q in range(2): k.vmem(f'buffer_load_dwordx4 {v((8*rb if rb else vSum)+4*q,4)}, v{vL16}, {srd(SW)}, s{sKc} offen offset:{1024*q} sc1', f'kv{rb}')
    for rb in range(8):
        k.wait(f'kv{rb}')
        r = 8*rb if rb else vSum
        validate(k, r, r + 4, sKb, 8192*rb)
        if rb:
            for i in range(4): k(f'v_pk_add_f32 {pr(vSum+2*i)}, {pr(vSum+2*i)}, {pr(8*rb+2*i)}')
    for d, items in o_steps(k):
        for it in items: k.emit(it)
    k.run_timed('all')

def phase2(k, typ):
    o = k.opt
    Lend = f'L_end{typ}'
    if typ == 'Q':
        k.run_timed('all')
        L = k.A.label('L_p2')
        k(f's_cmp_lg_u32 s{sNb}, 7\ns_cbranch_scc1 {L}')
        sv = (list(k.vm), k.t)
        o_only(k)
        k(f's_branch {Lend}\n{L}:')
        k.vm, k.t = sv
    NQ = 16 if typ == 'Q' else 24
    DEPTH = o.get('depth', 6)
    SAMP = o.get('samp', DEPTH)
    assert 2*(DEPTH + 1) <= NQ
    ent = [('h', i) for i in range(36)]
    if typ == 'Q':
        P = o.get('kvpos', 4)
        for rb in range(8): ent.insert(P + (2 if o.get('kvint', 0) else 1)*rb, ('kv', rb))
    gates = {ent.index(('h', 0)): ('L_g0', FL_LOAD(0), vPoll1, 0xf), ent.index(('h', 16)): ('L_g1', FL_LOAD(1), vPoll1, 0xf), ent.index(('h', 28)): ('L_g2', FL_LOAD(2), vPoll1, 0xf)}
    if typ == 'Q': gates[ent.index(('kv', 0))] = ('L_g3', KF_LOAD, vPoll2, 0xff)
    samples = {}
    for gi, g in gates.items():
        if ent[gi] != ('h', 0): samples.setdefault(max(0, gi - SAMP), []).append(gi)
    fill = deque(); hold = 0; done_kv = [False]
    def flush_fill():
        while fill:
            it = fill.popleft()
            if not isinstance(it, int): k.emit(it)
    def load(e, half):
        kind, i = ent[e]
        if half == 0:
            for gi in samples.get(e, []): k.vmem(gates[gi][1], f'smp{gi}')
            if e in gates:
                nm, ld, reg, mask = gates[e]
                if (kind, i) == ('h', 16): k.run_timed('all')
                if (kind, i) == ('h', 28):
                    assert typ == 'KV' or done_kv[0]
                    flush_fill(); k.run_timed('all')
                if (kind, i) == ('h', 0): k.stamp(5)
                gate(k, nm, 'smp0' if (kind, i) == ('h', 0) else f'smp{e}', ld, f'v_cmp_eq_u32 vcc, -1, v{reg}', None)
                if kind == 'h':
                    k.stamp({0: 6, 16: 7, 28: 8}[i])
                    if i == 28: k.stamp(9, 4)
                else: k.stamp(4, 4)
            if kind == 'h':
                if i == 28: k(f's_mov_b32 s{sH}, s{sOb}')
                elif i < 28 and i % 4 == 0: k(f's_bfe_u32 s{sH}, s{sMu}, {hex(0x40000 + i)}\ns_lshl_b32 s{sH}, s{sH}, 13\ns_add_u32 s{sH}, s{sH}, s{sH0}')
                elif i % 2 == 0: k(f's_add_u32 s{sH}, s{sH}, 4096')
            else: k(f's_add_u32 s{sKc}, s{sKb}, {8192*i}')
        r = HB + 4*((2*e + half) % NQ)
        if kind == 'h': k.vmem(f'buffer_load_dwordx4 {v(r,4)}, v{vL16}, {srd(SW)}, s{sH} offen offset:{(i&1)*2048 + half*1024} sc1', f'e{e}')
        else: k.vmem(f'buffer_load_dwordx4 {v(r,4)}, v{vL16}, {srd(SW)}, s{sKc} offen offset:{half*1024} sc1', f'e{e}')
    def oreads(ko):
        jj, s_ = ko >> 1, ko & 1; r = []
        for n in range(2):
            for j2 in range(2):
                va = vOA + n + (2 if (s_ == 1 and j2 == 1) else 0)
                d = aOF + 8*(ko & 1) + 4*n + 2*j2
                r.append(f'ds_read_b64_tr_b16 a[{d}:{d+1}], v{va} offset:{(28*jj + 16*s_ + 8*j2)*128}')
        return r
    nxt = 0
    def more(upto):
        nonlocal nxt
        while nxt < min(upto, 2*len(ent)):
            load(nxt >> 1, nxt & 1); nxt += 1
    more(2*DEPTH)
    yield
    k.inp2 = True
    for x in setup_late(): k.emit(x); k.tick()
    if typ == 'Q': k.t += o.get('hlat', 500)
    def drain_fill(n):
        nonlocal hold
        while fill and n > 0:
            if isinstance(fill[0], int):
                if hold < fill[0]: return
                fill.popleft(); continue
            it = fill.popleft(); k.emit(it); n -= 1; hold = 0
    for e, (kind, i) in enumerate(ent):
        r0 = HB + 4*((2*e) % NQ); r1 = HB + 4*((2*e + 1) % NQ)
        if kind == 'kv':
            k.wait(f'e{e}')
            validate(k, r0, r1, sKb, 8192*i)
            for x in range(8):
                src = (r0 if x < 4 else r1 - 4) + x
                k(f'v_mov_b32 v{vSum+x}, v{src}' if i == 0 else f'v_add_f32 v{vSum+x}, v{vSum+x}, v{src}')
            if i == 7:
                for d, items in o_steps(k):
                    fill.append(d); fill.extend(items)
                hold = 0; done_kv[0] = True
            more(2*(e + DEPTH) + 2)
            k.t += 80; k.tick()
            if i == 7 and o.get('oblock', 1): flush_fill()
            continue
        if i < 28 and i % 4 == 0: k.force(f'r{i//4}')
        if i == 27:
            k.force('wo'); k.wait('wo')
            for r in oreads(0): k(r)
        k.wait(f'e{e}', extra='lgkmcnt(0)' if (i >= 28 or i % 4 == 0) else '')
        if i >= 28: validate(k, r0, r1, sOb, (i - 28)*2048)
        cnt = 0
        for tt in range(2):
            for n in range(2):
                D = AC + 32*n + 16*tt
                Af = a(8*i + 4*n, 4) if i < 28 else a(aOF + 8*((i-28) & 1) + 4*n, 4)
                k(f'v_mfma_f32_32x32x16_bf16 {v(D,16)}, {Af}, {v((r0, r1)[tt],4)}, {"0" if i == 0 else v(D,16)}')
                hold += 1
                if cnt == 0 and 28 <= i < 35:
                    for r in oreads(i - 27): k(r)
                if cnt == 1: more(2*(e + DEPTH) + 1)
                if cnt == 3: more(2*(e + DEPTH) + 2)
                drain_fill(5)
                if cnt in (0, 2): k.tick()
                cnt += 1
    assert not fill and not k.timed and not k.bg and not k.bg2
    k.stamp(9)
    k.wait('xr')
    for i in range(8): k(f'v_lshlrev_b32 v{128+2*i}, 16, v{XR+i}\nv_and_b32 v{128+2*i+1}, 0xffff0000, v{XR+i}')
    for tt in range(2):
        for n in range(2):
            for q in range(4): k(f'ds_write_b128 v{vRW}, {v(AC+32*n+16*tt+4*q,4)} offset:{tt*32*RP + n*128 + q*32}')
    k('s_waitcnt lgkmcnt(0)\ns_barrier')
    for it in range(2):
        for w in range(4):
            for hf in range(2):
                k(f'ds_read_b128 {v(64+32*it+8*w+4*hf,4)}, v{vRR+(w>>1)} offset:{(w&1)*XW + it*8*RP + 16*hf}')
    for it in range(2):
        for w in range(4):
            k(f's_waitcnt lgkmcnt({8*(1-it) + 2*(3-w)})')
            for i in range(4): k(f'v_pk_add_f32 {pr(128+8*it+2*i)}, {pr(128+8*it+2*i)}, {pr(64+32*it+8*w+2*i)}')
        for i in range(4): k(f'v_cvt_pk_bf16_f32 v{16+4*it+i}, v{128+8*it+2*i}, v{128+8*it+2*i+1}')
        k.vmem(f'buffer_store_dwordx4 {v(16+4*it,4)}, v{vOUT}, {srd(SOUT)}, s{sB2 if it else sB} offen {o.get("outfl", "sc1")}', 'out')
    k(f'{Lend}:')
    if o.get('probe'):
        k.stamp(10)
        k('s_waitcnt lgkmcnt(0)')
        if o['probe'][2] == 'rt': k('s_cmp_eq_u32 s98, 0\ns_cselect_b32 s98, s100, s98\ns_sub_u32 s98, s98, s100\ns_lshl_b32 s98, s98, 1')
        else: k('s_cmp_eq_u32 s98, 0\ns_cselect_b32 s98, s96, s98\ns_sub_u32 s98, s98, s96\ns_lshr_b32 s98, s98, 3')
        k(f's_add_u32 s98, s98, 3000\n{Lend}f:\ns_memrealtime s[{sC}:{sC+1}]\ns_waitcnt lgkmcnt(0)\ns_sub_u32 s3, s{sC}, s100\ns_cmp_lt_u32 s3, s98\ns_cbranch_scc1 {Lend}f')
    if o.get('fixdur'):
        k(f'{Lend}f:\ns_memrealtime s[{sC}:{sC+1}]\ns_waitcnt lgkmcnt(0)\ns_sub_u32 s3, s{sC}, s100\ns_cmp_lt_u32 s3, {o["fixdur"]}\ns_cbranch_scc1 {Lend}f')
    if o.get('stamps'):
        k(f'{"s_memrealtime" if o.get("rt") else "s_memtime"} s[{sA}:{sA+1}]\ns_memrealtime s[{sC}:{sC+1}]\ns_waitcnt lgkmcnt(0)')
        k(f's_lshl_b32 s3, s2, 2\ns_add_u32 s3, s3, s{sWave}\ns_lshl_b32 s3, s3, 6\ns_add_u32 s3, s3, {WS_STAMP}\nv_mov_b32 v40, s3\ns_mov_b64 exec, 1')
        k(f'v_mov_b32 v24, s100\nv_mov_b32 v25, s{sC}')
        for i in range(1, 10): k(f's_sub_u32 s3, s{STAMP0+2*i}, s{STAMP0}\nv_mov_b32 v{25+i}, s3')
        k(f's_sub_u32 s3, s{sA}, s{STAMP0}\nv_mov_b32 v35, s3')
        for q in range(3): k(f'buffer_store_dwordx4 {v(24+4*q,4)}, v40, {srd(SW)}, 0 offen offset:{16*q}')
    k('s_endpgm')
    for t in k.tail: k(t)
    k.tail = []

def body(k, typ):
    k.vm = list(k.vm0); k.reset_bg()
    main_loop(k, typ)
    k.scratch_free = (typ == 'Q')
    k.inp2 = False
    w2_background(k, lambda: k.scratch_free and (k.inp2 or not k.opt.get('wolate')))
    k.stamp(3, 3)
    p2 = phase2(k, typ)
    k('s_nop 3')
    if typ == 'Q':
        ffn_epilogue(k, typ)
        k.stamp(4); k.stamp(4, 3)
        q_part(k)
        k.stamp(5, 3)
    else:
        kv_part(k)
        k.stamp(7, 3); k.stamp(3, 6)
        hooks = {tuple(k.opt.get('ksamp', (3, 0))): lambda: k.vmem(FL_LOAD(0), 'smp0')}
        if k.opt.get('kstart', (4, 0)): hooks[tuple(k.opt.get('kstart', (4, 0)))] = lambda: next(p2)
        ffn_epilogue(k, typ, hooks)
        k.stamp(4); k.stamp(8, 3)
    for _ in p2: pass

def generate(opt):
    k = K(opt); name = NAME + '_kernel'
    kernel_begin(k.A, name)
    prologue(k)
    k.vm0 = list(k.vm)
    body(k, 'KV')
    k('L_typeQ:')
    body(k, 'Q')
    k('L_codeend:')
    txt = k.A.text()
    if opt.get('align', 1):
        import align
        txt = align.align(txt)[0]
    return assemble_file([(name, 256, 256, NLDS)], txt, [kernel_desc(name, 512, accum=256)])

if __name__ == '__main__':
    import json, hazard
    opt = json.loads(sys.argv[2]) if len(sys.argv) > 2 else {}
    txt = generate(opt)
    open(sys.argv[1], 'w').write(txt)
    e = hazard.check(txt)
    print(len(txt), 'bytes of text;', len(e), 'hazards')
```

```python
import sys, struct, math
from collections import deque
from asmgen import *

def f2u(x): return struct.unpack('<I', struct.pack('<f', x))[0]

WS_H    = 0
WS_KVP  = 10 << 20
WS_ST   = 12 << 20
WS_FL   = WS_ST + 32768
WS_CS   = WS_FL + 65536
WS_STAMP = 128 << 20
OOB = 0x40000000
NW = 8
XW = 24576
WB = 98304; WS_ = 20736
L_CS = WB + 57344
L_FLG = L_CS + 5120
L_PHI = 163840 - 2048
L_KVF = L_CS
SP = 208
NLDS = 163840

sWi, sP = 0, 1
sA, sA2, sB, sB2, sC, sC2 = 4, 5, 6, 7, 8, 9
sMx, sMa, sMf = 10, 11, 12
sT0, sT1, sT2 = 13, 14, 15
sFh, sF2 = 16, 17
sHm = 18
sG2, sNb, sDb, sHo = 20, 21, 22, 23
sSpin, sKap, sWave, sRb = 24, 25, 26, 27
SX, SQ, SG, SU, SD, SO, SW, SOUT, SDBG, SPH, SGU = 28, 32, 36, 40, 44, 48, 52, 56, 60, 64, 68
sG, sU, sJ, sCg, sSt, sXb, sQb, sFb = 72, 73, 74, 75, 76, 77, 78, 79
sMu, sH0, sFl, sRes = 32, 33, 34, 35
sH, sOb, sKb, sKf = 36, 37, 38, 39
sWo, sWg = 40, 41
sPl = 68
sOne = 42
SPF = 64
sPm, sPz = 18, 19
vPF = 111
STAMP0 = 80

def srd(n): return f's[{n}:{n+3}]'
def pr(r): return f'v[{r}:{r+1}]'
def items(t): return [x.strip().replace('|', '\n') for x in t.strip().split('\n')]

TRANS = ('v_exp_f32', 'v_rcp_f32', 'v_rsq_f32')
def cost(line):
    op = line.split()[0]
    if op.endswith(':') or op.startswith('.') or op.startswith(';'): return 0
    if op.startswith('v_mfma'): return 32 if '32x32' in op else 16
    if op in TRANS: return 8
    if op == 's_nop': return 4*(int(line.split()[1]) + 1)
    if op == 'ds_write_b128' or op.startswith('buffer_'): return 16
    return 4

class K:
    def __init__(self, opt):
        self.A = Asm(); self.vm = []; self.opt = opt
        self.t = 0; self.credit = 0; self.tail = []
        self.reset_bg()
    def reset_bg(self):
        self.bg = deque(); self.timed = []; self.lastbg = -10**9; self.inbg = False; self.done = {}
    def raw(self, t):
        for l in t.strip('\n').split('\n'):
            l = l.strip()
            if not l: continue
            self.A(l); c = cost(l)
            if l.startswith('v_mfma'): self.t += c; self.credit = c - 8
            else:
                u = min(c, self.credit); self.credit -= u; self.t += c - u
    def __call__(self, t): self.raw(t)
    def f(self, t):
        for l in t.strip('\n').split('\n'):
            l = l.strip()
            if l: self.raw(l); self.tick()
    def run_timed(self, force=None):
        for it in [x for x in self.timed if x[0] <= self.t or force == 'all' or x[2] == force]:
            self.timed.remove(it); it[1]()
    def pop_bg(self):
        g = self.bg.popleft()
        for it in g[1]: self.emit(it)
        self.lastbg = self.t
    def tick(self):
        if self.inbg: return
        self.inbg = True
        self.run_timed()
        if self.bg and self.t - self.lastbg >= self.bg[0][0]: self.pop_bg()
        self.inbg = False
    def flush(self):
        self.inbg = True
        while self.bg:
            self.pop_bg(); self.t += 40; self.run_timed()
        self.inbg = False
    def vmem(self, t, tag):
        if tag in self.opt.get('x_skip', []): return
        self.raw(t); self.vm.append(tag)
    def wait(self, *tags, extra=''):
        last = max((i for i, x in enumerate(self.vm) if x in tags), default=None)
        if last is None:
            if extra: self.raw(f's_waitcnt {extra}')
            return
        n = len(self.vm) - 1 - last
        assert n <= 63, n
        self.raw(f's_waitcnt vmcnt({n}) {extra}')
        self.vm = self.vm[len(self.vm)-n:] if n else []
    def stamp(self, i, grp=1):
        pb = self.opt.get('probe')
        if pb:
            if i == 0: self.A('s_memtime s[96:97]\ns_mov_b32 s98, 0')
            if [i, grp] == pb[:2]: self.A('s_memrealtime s[98:99]' if pb[2] == 'rt' else 's_memtime s[98:99]')
        if self.opt.get('stamps') and (i <= 2 or self.opt.get('stamps') == grp):
            self.A(f'{"s_memrealtime" if self.opt.get("rt") else "s_memtime"} s[{STAMP0+2*i}:{STAMP0+2*i+1}]')
    def emit(self, item):
        if callable(item): item()
        elif isinstance(item, tuple): self.vmem(*item)
        else: self.raw(item)
    def emit_all(self, its):
        for it in its: self.emit(it)

vXA = 96
vFA, vAP, vFP, vZF = 100, 103, 104, 107
vAA, vF3, vCA, vXP, vS0 = 100, 101, 102, 104, 108
vL16, vF0, vOne, vPoll, vPA = 112, 113, 114, 115, 116
vDA, vDP, vU0 = 117, 119, 123
vST, vP2, vP3 = 124, 128, 132
vMB = vT = 136
vCR, vWP = 64, 88
def acc(c, tt): return 32*c + 16*tt
def nT(role): return 2 if role == 'A' else 3
def fX(role, b, tt): return 112 - (2-b)*(8 + 4*nT(role)) + 4*tt
def fW(role, b, c): return fX(role, b, 0) + 8 + 4*c
def tile_id(typ, role, c):
    if typ == 'KV': return c if role == 'A' else 2 + c
    return (0, 4)[c] if role == 'A' else 1 + c

def post(k, sreg):
    k(f's_mov_b32 s{sOne}, 1\ns_atomic_add s{sOne}, s[{SW}:{SW+1}], s{sreg}')

def spin(k, name, load, conds, first_loaded=False):
    L = k.A.label(name)
    k(f's_mov_b32 s{sSpin}, 0')
    if first_loaded: k(f's_branch {L}c')
    k(f'{L}:\ns_add_u32 s{sSpin}, s{sSpin}, 1\ns_cmp_gt_u32 s{sSpin}, {k.opt.get("spin", 200000)}\ns_cbranch_scc1 {L}x\n' + (f's_sleep {k.opt["sleep"]}\n' if k.opt.get('sleep') else '') + load)
    k(f'{L}c:\ns_waitcnt lgkmcnt(0)')
    for r, n in conds: k(f's_cmp_lt_u32 s{r}, {n}\ns_cbranch_scc1 {L}')
    k(f'{L}x:')

def sync_post(k, n):
    k(f's_lshl_b32 s3, s{sWave}, 2\ns_add_u32 s3, s3, {L_FLG + 16*n}\nv_mov_b32 v{vPA}, s3\ns_mov_b64 exec, 1\ns_waitcnt lgkmcnt(0)\nds_write_b32 v{vPA}, v{vOne}\ns_mov_b64 exec, -1')
def sync_wait(k, n, R):
    L = k.A.label('L_sy')
    k(f'v_mov_b32 v{vPA}, {L_FLG + 16*n}\n{L}:\nds_read_b128 {v(R,4)}, v{vPA}\ns_waitcnt lgkmcnt(0)\nv_min3_u32 v{R}, v{R}, v{R+1}, v{R+2}\nv_min_u32 v{R}, v{R}, v{R+3}\nv_cmp_eq_u32 vcc, 0, v{R}\ns_cbranch_vccnz {L}')

def next_stage(first):
    return [] if first else [f's_add_u32 s{sSt}, s{sSt}, 1', f's_cmp_eq_u32 s{sSt}, 7', f's_cselect_b32 s{sSt}, 0, s{sSt}']

def xbatch(n_, slot):
    tag = f'b{n_}'; g = []
    for n in range(8):
        p = []
        if n == 0: p = next_stage(n_ == 0) + [f's_add_u32 m0, s{sMx}, {slot*8192}', f's_lshl_b32 s{sA}, s{sSt}, 7', f's_add_u32 s{sA}, s{sA}, s{sXb}']
        if n == 4: p = [f's_add_u32 m0, s{sMx}, {slot*8192+4096}', f's_add_u32 s{sA}, s{sA}, {32*896}']
        g.append(p + [(f'buffer_load_dwordx4 v{vXP+(n&3)}, {srd(SX)}, s{sA} offen offset:{(n&3)*1024} lds', tag)])
    return g

def wbatch(typ, n_, slot):
    tag = f'b{n_}'
    g = [next_stage(n_ == 0) + [f's_mul_i32 s{sB}, s{sSt}, {64*2688}', f's_add_u32 s{sB}, s{sB}, s{sQb}', f's_add_u32 m0, s{sMa}, {slot*WS_}',
         f's_mul_i32 s{sC}, s{sSt}, {64*3584}', (f'buffer_load_dwordx4 v{vAP}, {srd(SQ)}, s{sB} offen lds', tag)]]
    if typ == 'KV':
        g.append([f's_add_u32 m0, s{sMa}, {slot*WS_+4096}', f's_add_u32 s{sB2}, s{sB}, 896', (f'buffer_load_dwordx4 v{vAP}, {srd(SQ)}, s{sB2} offen lds', tag)])
        g.append([f's_add_u32 m0, s{sMf}, {slot*WS_}', f's_add_u32 s{sC}, s{sC}, s{sFb}', (f'buffer_load_dwordx4 v{vFP}, {srd(SGU)}, s{sC} offen lds', tag)])
        g.append([(f'buffer_load_dwordx4 v{vFP+1}, {srd(SGU)}, s{sC} offen offset:1024 lds', tag)])
        g.append([(f'buffer_load_dwordx4 v{vFP+2}, {srd(SGU)}, s{sC} offen offset:2048 lds', tag)])
    else:
        g.append([f's_add_u32 m0, s{sMf}, {slot*WS_}', f's_add_u32 s{sC}, s{sC}, s{sFb}', (f'buffer_load_dwordx4 v{vFP}, {srd(SG)}, s{sC} offen lds', tag)])
        g.append([f's_add_u32 s{sC2}, s{sC}, {8*3584-1024}', (f'buffer_load_dwordx4 v{vFP}, {srd(SG)}, s{sC2} offen offset:1024 lds', tag)])
        g.append([f's_add_u32 m0, s{sMf}, {slot*WS_+8192}', 's_nop 0', (f'buffer_load_dwordx4 v{vFP+1}, {srd(SU)}, s{sC} offen lds', tag)])
        g.append([(f'buffer_load_dwordx4 v{vFP+1}, {srd(SU)}, s{sC2} offen offset:1024 lds', tag)])
    return g

PSLOT = {'P': [8192 + 4096*j for j in (0, 1, 2, 3, 0, 1, 2)], 'S': [4096*(p & 1) for p in range(7)]}
def r2(typ, role): return 'P' if (typ == 'KV') == (role == 'A') else 'S'
def pbatch(role, p):
    g = []
    for n in range(4):
        pre = [f's_add_u32 m0, s{sMx}, {PSLOT[role][p]}', f's_add_u32 s{sA}, s{sDb}, {p*32*896}'] if n == 0 else []
        g.append(pre + [(f'buffer_load_dwordx4 v{vDP+n}, {srd(SD)}, s{sA} offen offset:{n*1024} lds', f'd{p}')])
    return g
def preads(role, p):
    return [f'ds_read_b64_tr_b16 a[{16*p+8*kl+4*n+2*j2}:{16*p+8*kl+4*n+2*j2+1}], v{vDA+n} offset:{PSLOT[role][p] + (16*kl + 8*j2)*128}'
            for kl in range(2) for n in range(2) for j2 in range(2)]
def obatch():
    g = []
    for n in range(14):
        p = []
        if n % 4 == 0: p = [f's_add_u32 m0, s{sWo}, {n*1024}', f's_add_u32 s{sA2}, s{sWg}, {(n >> 2)*32*896}']
        g.append(p + [(f'buffer_load_dwordx4 v{vDP+(n&3)}, {srd(SO)}, s{sA2} offen offset:{(n&3)*1024} lds', 'wo')])
    return g

def wread(typ, role, c, slot, ks, j2):
    row = 16*ks + 4*j2
    if role == 'A':
        if typ == 'KV' or c == 0: return vAA, slot*WS_ + c*4096 + row*64
        return vF3, slot*WS_ + row*128
    if typ == 'KV': return vFA, slot*WS_ + row*96 + c*32
    return vFA + c, slot*WS_ + row*128

def frag_reads(typ, role, b, slot, ks):
    r = [f'ds_read_b128 {a(fX(role,b,0),4)}, v{vXA+ks} offset:{slot*8192}']
    for c in range(nT(role)):
        for j2 in range(2):
            va, im = wread(typ, role, c, slot, ks, j2)
            r.append(f'ds_read_b64_tr_b16 {a(fW(role,b,c)+2*j2,2)}, v{va} offset:{im}')
        if c == 0: r.append(f'ds_read_b128 {a(fX(role,b,1),4)}, v{vXA+ks} offset:{slot*8192+4096}')
    return r

def coop_prefetch(k):
    P, B, S, R = 4, 5, 6, 7
    npf = k.opt.get('npf', 0)
    k(f'''s_mul_i32 s{B}, s{sG}, 896
    s_lshr_b32 s3, s{B}, 2
    s_andn2_b32 s3, s3, 127
    s_cmp_eq_u32 s{sWave}, 3
    s_cselect_b32 s{B}, s3, s{B}
    s_movk_i32 s{P}, 3584
    s_cselect_b32 s{P}, 2688, s{P}
    s_movk_i32 s{S}, 512
    s_cselect_b32 s{S}, 896, s{S}
    s_mov_b32 s{sPm}, 0x007f007f
    s_cselect_b32 s{sPm}, 0x07770777, s{sPm}
    s_lshl_b32 s{R}, s{sCg}, 1
    s_lshl_b32 s{sPz}, s{P}, 6
    s_mul_i32 s{SPF+2}, s{P}, 448
    s_and_b32 s{sT1}, s2, 4
    s_lshl_b32 s3, s{sT1}, 3
    s_add_u32 s3, s3, s{sCg}
    s_lshl_b32 s3, s3, 5
    s_cmp_eq_u32 s{sWave}, 0
    s_cselect_b32 s{R}, s3, s{R}
    s_cselect_b32 s{P}, 896, s{P}
    s_cselect_b32 s{B}, 0, s{B}
    s_cselect_b32 s{sPm}, -1, s{sPm}
    s_cselect_b32 s{sPz}, 128, s{sPz}
    s_cselect_b32 s{SPF+2}, {2048*896}, s{SPF+2}
    s_cselect_b32 s3, 0, 4
    s_cselect_b32 s{sT0}, 0, 15
    s_mov_b32 s{SPF+3}, 0x20000
    v_and_b32 v9, 31, v0
    v_lshrrev_b32 v2, s3, v9
    v_add_u32 v2, s{R}, v2
    v_mul_lo_u32 v2, v2, s{P}
    v_and_b32 v3, s{sT0}, v0
    v_lshrrev_b32 v4, 2, v3
    v_mad_u32_u24 v2, v4, s{S}, v2
    v_and_b32 v3, 3, v3
    v_lshl_add_u32 v2, v3, 7, v2
    v_add_u32 v{vPF}, s{B}, v2
    s_lshr_b32 s3, s{sT2}, 2
    s_add_u32 s3, s3, s{sT1}
    s_mul_i32 s3, s3, s{sPz}
    s_mov_b32 exec_lo, s{sPm}
    s_mov_b32 exec_hi, 0
    s_waitcnt lgkmcnt(0)
    buffer_load_dword a1, v{vPF}, {srd(SPF)}, s3 offen''')
    if npf == 3:
        L = k.A.label('L_pf')
        k(f's_cmp_ge_u32 s{sT2}, 4\ns_cbranch_scc1 {L}\ns_lshl_b32 s{sT0}, s{sPz}, 1\ns_add_u32 s3, s3, s{sT0}\nbuffer_load_dword a1, v{vPF}, {srd(SPF)}, s3 offen\n{L}:')
    k('s_mov_b64 exec, -1')

def coop_later(k, steps):
    def fn():
        k(f's_mov_b32 exec_lo, s{sPm}\ns_mov_b32 exec_hi, 0')
        for st in steps:
            k(f's_bitcmp1_b32 s2, 2\ns_cselect_b32 s3, {(st + 4) % 7}, {st}\ns_mul_i32 s3, s3, s{sPz}')
            k.vmem(f'buffer_load_dword a1, v{vPF}, {srd(SPF)}, s3 offen', 'pf1')
        k('s_mov_b64 exec, -1')
    return fn

def prologue(k):
    o = k.opt
    k(f's_cmp_lt_u32 s2, 256\ns_cbranch_scc1 L_go\ns_endpgm\nL_go:')
    k.stamp(0)
    if o.get('stamps') or o.get('fixdur') or o.get('probe'): k('s_memrealtime s[100:101]')
    for n, off in ((SX, 0), (SQ, 8), (SG, 40), (SU, 48)): k(f's_load_dwordx2 s[{n}:{n+1}], s[0:1], {off}')
    k(f'v_lshrrev_b32 v1, 6, v0\ns_getpc_b64 s[20:21]\nL_pc:\nv_readfirstlane_b32 s{sT2}, v1')
    k(f's_lshr_b32 s{sCg}, s2, 3\nv_and_b32 v2, 0x1e0, v0\nv_add_u32 v2, s{sCg}, v2\nv_lshlrev_b32 v2, 7, v2\nv_min_u32 v2, L_codeend-L_pc-4, v2')
    k(f's_mov_b32 exec_lo, 1\ns_mov_b32 exec_hi, 1\nglobal_load_dword a0, v2, s[20:21]\ns_mov_b64 exec, -1')
    k(f's_and_b32 s{sWave}, s{sT2}, 3\ns_lshl_b32 s3, s{sWave}, 3\ns_lshr_b32 s3, 0x08302800, s3\ns_and_b32 s3, s3, 0xff\ns_load_dwordx2 s[{SPF}:{SPF+1}], s[0:1], s3')
    for n, off in ((SW, 80), (SD, 56), (SO, 24), (SDBG, 72), (SDBG+2, 16), (SOUT, 64)): k(f's_load_dwordx2 s[{n}:{n+1}], s[0:1], {off}')
    k(f'v_and_b32 v0, 63, v0\ns_and_b32 s{sG}, s2, 3')
    if o.get('npf', 0): coop_prefetch(k)
    k(f's_and_b32 s{sRb}, s{sCg}, 3\ns_and_b32 s3, s2, 4\ns_or_b32 s{sRb}, s{sRb}, s3\ns_lshr_b32 s{sU}, s{sCg}, 2')
    if o.get('rot', (2, 0)) == 4: k(f's_and_b32 s{sSt}, s{sRb}, 4')
    else:
        ra, rb_ = o.get('rot', (2, 0))
        k(f's_mul_i32 s{sSt}, s{sRb}, {ra}\ns_mul_i32 s3, s{sU}, {rb_}\ns_add_u32 s{sSt}, s{sSt}, s3\ns_mul_i32 s3, s{sSt}, 37\ns_lshr_b32 s3, s3, 8\ns_mul_i32 s3, s3, 7\ns_sub_u32 s{sSt}, s{sSt}, s3')
    k(f's_lshr_b32 s{sJ}, s{sU}, 1\ns_lshl_b32 s3, s{sG}, 2\ns_or_b32 s{sJ}, s{sJ}, s3\ns_mul_i32 s{sKap}, s{sG}, 28')
    k(f'v_lshrrev_b32 v1, 3, v0\nv_and_b32 v2, 7, v0\nv_lshlrev_b32 v{vL16}, 4, v0\nv_and_b32 v14, 3, v0')
    k(f's_lshl_b32 s{sHo}, s{sRb}, 2\ns_add_u32 s{sHo}, s{sHo}, s{sWave}\ns_mul_i32 s{sMx}, s{sWave}, {XW}')
    for n, size in ((SX, 2048*896), (SQ, 448*2688), (SG, 448*3584), (SU, 448*3584), (SGU, 448*3584)):
        k(f's_mov_b32 s{n+2}, {size}\ns_mov_b32 s{n+3}, 0x20000')
    k(f's_cmp_ge_u32 s{sT2}, 4\ns_cbranch_scc1 L_proF')
    k(f'''v_mul_u32_u24 v3, 896, v1
    v_lshrrev_b32 v4, 1, v1
    v_xor_b32 v5, v2, v4
    v_lshl_add_u32 v{vXP}, v5, 4, v3
    v_xor_b32 v5, 4, v5
    v_lshl_add_u32 v{vXP+1}, v5, 4, v3
    v_add_u32 v{vXP+1}, 6144, v{vXP+1}
    v_add_u32 v{vXP+2}, {2*6144}, v{vXP}
    v_add_u32 v{vXP+3}, {2*6144}, v{vXP+1}
    s_mul_i32 s{sXb}, s{sHo}, {64*896}
    s_waitcnt lgkmcnt(0)''')
    k.stamp(3, 5)
    k(f's_lshl_b32 s3, s{sWave}, 5\ns_or_b32 s{sT1}, s3, s2\ns_cmp_ge_u32 s{sT1}, 32\ns_cbranch_scc1 L_nz')
    k(f's_lshl_b32 s3, s2, 11\ns_add_u32 s3, s3, {WS_FL}\nv_lshl_add_u32 v6, v0, 7, s3\nv_mov_b32 v7, 0\ns_mov_b64 exec, 0xffff\nglobal_store_dword v6, v7, s[{SW}:{SW+1}] sc1\ns_mov_b64 exec, -1\nL_nz:')
    for g in xbatch(0, 0): k.emit_all(g)
    k.stamp(4, 5)
    lane_setup(k)
    k(f's_bitcmp1_b32 s{sU}, 0\ns_cbranch_scc1 L_QA\ns_branch L_KVA')
    k('L_proF:')
    k(f'''v_lshrrev_b32 v6, 2, v0
    v_mul_u32_u24 v6, 2688, v6
    v_lshlrev_b32 v8, 4, v14
    v_min_u32 v8, 40, v8
    v_add_u32 v{vAP}, v6, v8
    s_mul_i32 s{sQb}, s{sWave}, {16*2688}
    s_mul_i32 s3, s{sJ}, 56
    s_add_u32 s{sQb}, s{sQb}, s3
    s_lshl_b32 s{sMa}, s{sWave}, 10
    s_add_u32 s{sMa}, s{sMa}, {WB}''')
    k(f's_bitcmp1_b32 s{sU}, 0\ns_cbranch_scc1 L_proFQ')
    for typ in ('KV', 'Q'):
        if typ == 'Q': k('L_proFQ:')
        kap_setup(k, typ); dma_setup(k, typ)
        k('s_waitcnt lgkmcnt(0)')
        if typ == 'KV': k(f's_cmp_lt_u32 s{sWave}, 2\ns_cselect_b32 s{SGU}, s{SG}, s{SU}\ns_cselect_b32 s{SGU+1}, s{SG+1}, s{SU+1}')
        k.stamp(3, 5)
        for g in wbatch(typ, 0, 0): k.emit_all(g)
        k.stamp(4, 5)
        lane_setup(k)
        k(f's_branch L_{typ}F')

def kap_setup(k, typ):
    if typ == 'KV':
        tbl = 0
        for j in range(16): tbl |= ([0,1,3,2][j & 3] if j < 8 else [1,0,2,3][j & 3]) << (2*j)
        k(f's_lshl_b32 s3, s{sJ}, 1\ns_lshr_b32 s3, {hex(tbl)}, s3\ns_and_b32 s3, s3, 3\ns_mul_i32 s3, s3, 3\ns_add_u32 s{sKap}, s{sKap}, s3\ns_add_u32 s{sKap}, s{sKap}, 16')
    else:
        k(f's_and_b32 s3, s{sJ}, 3\ns_lshl_b32 s3, s3, 2\ns_add_u32 s{sKap}, s{sKap}, s3')

def dma_setup(k, typ):
    if typ == 'KV':
        k(f's_add_u32 s{sQb}, s{sQb}, 896')
        k(f's_and_b32 s3, s{sWave}, 1\ns_mul_i32 s{sFb}, s3, {32*3584}\ns_lshl_b32 s{sT0}, s{sKap}, 5\ns_add_u32 s{sFb}, s{sFb}, s{sT0}')
        k(f's_mul_i32 s{sMf}, s3, 3072\ns_lshr_b32 s3, s{sWave}, 1\ns_mul_i32 s3, s3, 6272\ns_add_u32 s{sMf}, s{sMf}, s3\ns_add_u32 s{sMf}, s{sMf}, {WB+8192}')
        k(f's_movk_i32 s3, {3584-96}')
        for n in range(3):
            k(f'v_add_u32 v12, {64*n}, v0\nv_mul_u32_u24 v19, 171, v12\nv_lshrrev_b32 v19, 10, v19\nv_mad_u32_u24 v{vFP+n}, v19, s3, v{vL16}')
    else:
        k(f's_mul_i32 s{sFb}, s{sWave}, {16*3584}\ns_lshl_b32 s{sT0}, s{sKap}, 5\ns_add_u32 s{sFb}, s{sFb}, s{sT0}')
        k(f's_lshl_b32 s{sMf}, s{sWave}, 11\ns_add_u32 s{sMf}, s{sMf}, {WB+4096}')
        k(f'''v_and_b32 v12, 2, v1
        v_xor_b32 v12, v2, v12
        v_mul_u32_u24 v19, 3584, v1
        v_lshl_add_u32 v{vFP}, v12, 4, v19
        v_xor_b32 v12, 4, v12
        v_lshl_add_u32 v{vFP+1}, v12, 4, v19''')

def lane_setup(k):
    k(f'''v_and_b32 v9, 31, v0
    v_lshrrev_b32 v10, 5, v0
    v_bfe_u32 v18, v0, 1, 3
    v_lshlrev_b32 v12, 7, v9
    v_add_u32 v12, s{sMx}, v12''')
    for ks in range(4): k(f'v_or_b32 v13, {2*ks}, v10\nv_xor_b32 v13, v13, v18\nv_lshl_add_u32 v{vXA+ks}, v13, 4, v12')
    k(f'v_bfe_u32 v13, v0, 2, 2\nv_bfe_u32 v15, v0, 4, 1\nv_lshl_add_u32 v16, v10, 3, v13')

def read_setup(k, typ, role):
    if typ == 'KV':
        k(f'v_mul_u32_u24 v19, 96, v16\nv_mul_u32_u24 v20, 6272, v15\nv_lshlrev_b32 v12, 3, v14\nv_add3_u32 v19, v19, v20, v12')
        if role == 'F': k(f'v_add_u32 v{vFA}, {WB+8192}, v19')
        else: k(f's_min_u32 s3, s{sWave}, 2\ns_lshl_b32 s3, s3, 5\ns_add_u32 s3, s3, {WB+8192}\nv_add_u32 v{vCA}, s3, v19')
    else:
        k(f'v_lshlrev_b32 v19, 7, v16\nv_lshlrev_b32 v20, 13, v15\nv_lshlrev_b32 v12, 3, v14\nv_add3_u32 v19, v19, v20, v12\nv_add_u32 v19, {WB+4096}, v19\nv_lshrrev_b32 v20, 1, v13\nv_lshl_add_u32 v20, v15, 1, v20')
        if role == 'F':
            for seg in range(3): k(f'v_xor_b32 v12, {seg}, v20\nv_lshl_add_u32 v{vFA+seg}, v12, 5, v19')
        else: k(f'v_xor_b32 v12, 3, v20\nv_lshl_add_u32 v{vF3}, v12, 5, v19\nv_xor_b32 v12, s{sWave}, v20\nv_lshl_add_u32 v{vCA}, v12, 5, v19')
    if role == 'A':
        k(f'''v_lshl_add_u32 v17, v15, 2, v14
        v_cmp_lt_u32 vcc, 5, v17
        v_xor_b32 v18, 1, v17
        v_lshlrev_b32 v19, 6, v16
        v_cndmask_b32 v18, v17, v18, vcc
        v_add_u32 v19, {WB}, v19
        v_lshl_add_u32 v{vAA}, v18, 3, v19''')
        if typ == 'KV': k(f's_and_b32 s3, s{sWave}, 1\ns_lshl_b32 s3, s3, 12\nv_add_u32 v{vCA+1}, s3, v{vAA}')
        else: k(f'v_mov_b32 v{vCA+1}, v{vAA}')
        kap_setup(k, typ)
        k(f's_lshl_b32 s{sCg}, s{sG}, 3\ns_or_b32 s{sCg}, s{sCg}, s{sU}')
        k(f'v_mov_b32 v20, 0\nv_lshrrev_b32 v19, 2, v{vL16}\nv_add_u32 v19, {L_FLG}, v19\nds_write_b32 v19, v20')

def flag_addr_items(typ, role):
    return items(f'''s_mov_b32 s{SW+2}, {1 << 28}
    s_mov_b32 s{SW+3}, 0x20000
    s_lshl_b32 s{sFh}, s{sHo}, 2
    s_add_u32 s{sFh}, s{sFh}, s{sG}
    s_lshl_b32 s{sFh}, s{sFh}, 9
    s_add_u32 s{sFh}, s{sFh}, {WS_FL + (128 if (typ, role) == ('KV', 'F') else 0)}
    s_mul_i32 s{sHo}, s{sHo}, {144*2048}
    v_mov_b32 v{vPoll}, {OOB}
    v_mov_b32 v{vOne}, 1''')

vZ = 124
vCSt, vStSt = 108, 109
def cs_reads(typ, slot):
    p = 96 if typ == 'KV' else 128
    return [f'ds_read_b64_tr_b16 {pr(vCR+16*r+4*ks+2*j2)}, v{vCA+r} offset:{slot*WS_ + (16*ks+4*j2)*(64 if r else p)}' for r in range(2) for ks in range(4) for j2 in range(2)]

def init_items(k, typ):
    l, t, h, z0, z1, oob, m1, m0_ = vZ, vZ+1, vZ+2, vZ+3, vZ+4, vPoll, vZ+5, vZ+6
    it = flag_addr_items(typ, 'A') + items(f'''v_lshrrev_b32 v{l}, 4, v{vL16}
    v_and_b32 v{t}, 31, v{l}
    v_lshrrev_b32 v{h}, 5, v{l}
    s_lshl_b32 s{sT2}, s{sRb}, 5
    s_add_u32 s{sT2}, s{sT2}, s{sCg}
    s_lshl_b32 s{sT2}, s{sT2}, 2
    s_add_u32 s{sT2}, s{sT2}, s{sWave}
    s_mul_i32 s{sT1}, s{sT2}, {2*896}
    v_mul_u32_u24 v{z0}, 896, v{h}
    v_lshl_add_u32 v{z0}, v{t}, 4, v{z0}
    v_cmp_lt_u32 vcc, 27, v{t}|s_lshl_b32 s{sT2}, s{sT2}, 4|s_add_u32 s{sT2}, s{sT2}, {WS_ST}|v_cndmask_b32 v{z0}, v{z0}, v{oob}, vcc''')
    it.append(f'v_mov_b32 v{vS0+2}, v{z0}')
    k.srow = [(f'buffer_load_dwordx4 {v(vMB+4*i,4)}, v{vS0+2}, {srd(SX)}, s{sT1} offen offset:{448*i}', 'srow') for i in range(2)]
    if typ == 'KV':
        it += items(f'''s_lshl_b32 s{sF2}, s{sJ}, 2
        s_add_u32 s{sF2}, s{sF2}, s{sWave}
        s_andn2_b32 s3, s{sF2}, 1|s_add_u32 s{sF2}, s{sF2}, s3
        s_lshl_b32 s{sF2}, s{sF2}, 9
        s_add_u32 s{sF2}, s{sF2}, {WS_FL + 2*512 + 384}
        s_lshl_b32 s{sP}, s{sJ}, 2
        s_add_u32 s{sP}, s{sP}, s{sWave}
        s_lshl_b32 s{sP}, s{sP}, 3
        s_add_u32 s{sP}, s{sP}, s{sRb}
        s_lshl_b32 s{sP}, s{sP}, 10
        s_add_u32 s{sP}, s{sP}, {WS_KVP}''')
    else:
        it += items(f'''s_add_u32 s{sF2}, s{sFh}, 256
        s_lshl_b32 s{sP}, s{sJ}, 12
        s_add_u32 s{sP}, s{sP}, s{sHo}
        s_add_u32 s{sP}, s{sP}, {112*2048}''')
    it += items(f'''    v_cmp_eq_u32 vcc, 0, v{t}|v_lshlrev_b32 v{z1}, 3, v{h}|s_lshl_b32 s{sT0}, s{sCg}, 3|v_cndmask_b32 v{vStSt}, v{oob}, v{z1}, vcc
    s_add_u32 s{sT0}, s{sT0}, s{sRb}
    s_mul_i32 s{sT0}, s{sT0}, 640
    s_add_u32 s{sT0}, s{sT0}, {WS_CS}
    v_lshl_add_u32 v{vCSt}, v{t}, 2, s{sT0}''')
    if typ == 'KV':
        it += items(f'''s_add_u32 s3, s{sWave}, 2|s_lshl_b32 s3, s3, 7|s_cmp_lt_u32 s{sWave}, 3|s_cselect_b32 s3, s3, {OOB}|v_mov_b32 v{z1}, s3
        s_lshl_b32 s3, s{sWave}, 7|s_cmp_lt_u32 s{sWave}, 2|s_cselect_b32 s3, s3, {OOB}|v_mov_b32 v{t}, s3''')
    else:
        it += items(f'''s_add_u32 s3, s{sWave}, 1|s_lshl_b32 s3, s3, 7|v_mov_b32 v{z1}, s3
        s_cmp_lt_u32 s{sWave}, 1|s_cselect_b32 s3, 0, {OOB}|v_mov_b32 v{t}, s3''')
    it += items(f'''s_mov_b32 s{sHm}, 0
    s_mov_b32 s{sHm+1}, -1
    v_cndmask_b32 v{z1}, v{z1}, v{t}, s[{sHm}:{sHm+1}]
    v_add_u32 v{vCSt}, v{vCSt}, v{z1}''')
    st2 = [f'v_mov_b32 v{72+i}, -1' for i in range(4)]
    st2 += [(f'buffer_store_dwordx4 v[72:75], v{vL16}, {srd(SW)}, s{sP} offen offset:{1024*i} sc1', 'fill2') for i in range(2 if typ == 'KV' else 4)]
    return it, st2

def cs_items(k):
    a0, a1, a2, a3, t = vZ+6, vZ+7, vZ+8, vZ+9, vZ+10
    it = []
    for r in range(2):
        lo, hi = (a0, a1) if r == 0 else (a2, a3)
        for i in range(16):
            x = vCR + 16*r + i
            if i == 0: it += [f'v_lshlrev_b32 v{lo}, 16, v{x}', f'v_and_b32 v{hi}, 0xffff0000, v{x}']
            else: it += [f'v_lshlrev_b32 v{t}, 16, v{x}', f'v_and_b32 v{x}, 0xffff0000, v{x}', f'v_add_f32 v{lo}, v{lo}, v{t}', f'v_add_f32 v{hi}, v{hi}, v{x}']
    it += items(f'''v_add_f32 v{a0}, v{a0}, v{a1}
    v_add_f32 v{a2}, v{a2}, v{a3}|s_cmp_eq_u32 s{sRb}, 7|s_cselect_b32 s{sT0}, 0, -1|v_permlane32_swap_b32 v{a0}, v{a2}
    v_add_f32 v{a0}, v{a0}, v{a2}
    v_cvt_pk_bf16_f32 v{a1}, v{a0}, v{a0}
    v_lshlrev_b32 v{a1}, 16, v{a1}
    v_sub_f32 v{a1}, v{a0}, v{a1}
    v_cvt_pk_bf16_f32 v{a1}, v{a0}, v{a1}
    v_and_b32 v{a1}, s{sT0}, v{a1}''')
    return it, [(f'buffer_store_dword v{a1}, v{vCSt}, {srd(SW)}, 0 offen sc1', 'csst')]

def stats_items(k):
    X = vMB; Lo = 128; s1, s0, r1, t = 124, 125, 126, 127
    it = [lambda: k.wait('srow')]
    for i in range(8): it += [f'v_lshlrev_b32 v{Lo+i}, 16, v{X+i}', f'v_and_b32 v{X+i}, 0xffff0000, v{X+i}']
    it += [f'v_add_f32 v{s0}, v{Lo}, v{X}', f'v_add_f32 v{s1}, v{Lo+1}, v{X+1}']
    for i in range(2, 8): it += [f'v_add_f32 v{s0}, v{s0}, v{Lo+i}', f'v_add_f32 v{s1}, v{s1}, v{X+i}']
    def red(r):
        o_ = []
        for m in ('quad_perm:[1,0,3,2]', 'quad_perm:[2,3,0,1]', 'row_half_mirror', 'row_mirror'):
            o_.append(f's_nop 1\nv_add_f32_dpp v{r}, v{r}, v{r} {m} row_mask:0xf bank_mask:0xf')
        return o_ + [f'v_mov_b32 v{t}, v{r}', f's_nop 1\nv_permlane16_swap_b32 v{r}, v{t}', f'v_add_f32 v{r}, v{r}, v{t}']
    it += [f'v_add_f32 v{s0}, v{s0}, v{s1}'] + red(s0) + [f'v_mul_f32 v{s0}, {hex(f2u(-1.0/448))}, v{s0}']
    for i in range(8): it += [f'v_add_f32 v{Lo+i}, v{Lo+i}, v{s0}', f'v_add_f32 v{X+i}, v{X+i}, v{s0}']
    it += [f'v_mul_f32 v{s1}, v{Lo}, v{Lo}', f'v_mul_f32 v{r1}, v{X}, v{X}']
    for i in range(1, 8): it += [f'v_fmac_f32 v{s1}, v{Lo+i}, v{Lo+i}', f'v_fmac_f32 v{r1}, v{X+i}, v{X+i}']
    it += ['s_mov_b32 vcc_lo, 0xf0000000', 's_mov_b32 vcc_hi, 0xf0000000', f'v_add_f32 v{r1}, v{r1}, v{s1}', f'v_cndmask_b32 v{r1}, v{r1}, 0, vcc']
    it += red(r1) + [f'v_mov_b32 v{s1}, {hex(f2u(1e-5))}', f'v_fmac_f32 v{s1}, {hex(f2u(1.0/448))}, v{r1}']
    return it + [(f'buffer_store_dwordx2 v[{s1}:{s0}], v{vStSt}, {srd(SW)}, s{sT2} offen sc1', 'stst')]

def w2_addr_items(role, Z):
    l, a_, b_, c_, d_ = Z, Z+1, Z+2, Z+3, Z+4
    it = []
    for n, size in ((SD, 1792*896), (SO, 448*896), (SOUT, 2048*896)): it += [f's_mov_b32 s{n+2}, {size}', f's_mov_b32 s{n+3}, 0x20000']
    it += items(f'''s_and_b32 s{sG2}, s2, 7
    s_lshl_b32 s{sG2}, s{sG2}, 2
    s_bfe_u32 s{sNb}, s2, 0x20003
    s_or_b32 s{sG2}, s{sG2}, s{sNb}
    s_lshr_b32 s{sNb}, s2, 5
    s_lshl_b32 s{sDb}, s{sNb}, 7
    s_mul_i32 s3, s{sWave}, {448*896}|s_add_u32 s{sDb}, s{sDb}, s3
    v_lshrrev_b32 v{l}, 4, v{vL16}
    v_lshrrev_b32 v{a_}, 3, v{l}
    v_mul_u32_u24 v{b_}, 896, v{a_}
    v_and_b32 v{a_}, 2, v{a_}
    v_lshlrev_b32 v{a_}, 1, v{a_}
    v_and_b32 v{c_}, 7, v{l}
    v_xor_b32 v{a_}, v{a_}, v{c_}
    v_lshl_add_u32 v{vDP}, v{a_}, 4, v{b_}
    s_cmp_eq_u32 s{sNb}, 7|s_cselect_b32 s3, {OOB}, 0|v_add_u32 v{vDP}, s3, v{vDP}
    v_add_u32 v{vDP+1}, 6144, v{vDP}
    v_add_u32 v{vDP+2}, {2*6144}, v{vDP}
    v_add_u32 v{vDP+3}, {3*6144}, v{vDP}
    v_bfe_u32 v{a_}, v{l}, 2, 2
    v_lshrrev_b32 v{b_}, 5, v{l}
    v_lshl_add_u32 v{b_}, v{b_}, 2, v{a_}
    v_bfe_u32 v{c_}, v{l}, 4, 1
    v_and_b32 v{d_}, 3, v{l}
    v_lshl_add_u32 v{c_}, v{c_}, 2, v{d_}
    v_lshlrev_b32 v{d_}, 7, v{b_}
    v_lshl_add_u32 v{d_}, v{c_}, 3, v{d_}
    v_add_u32 v{d_}, s{sMx}, v{d_}
    v_lshrrev_b32 v{a_}, 1, v{a_}
    v_lshl_add_u32 v{vDA}, v{a_}, 6, v{d_}
    v_xor_b32 v{a_}, 1, v{a_}
    v_lshl_add_u32 v{vDA+1}, v{a_}, 6, v{d_}''')
    if role == 'A':
        it += items(f'''v_mul_u32_u24 v{b_}, 56, v{b_}
        v_min_u32 v{c_}, 6, v{c_}
        v_lshl_add_u32 v{b_}, v{c_}, 3, v{b_}
        v_add_u32 v{vU0}, {L_PHI}, v{b_}''')
    return it

def p2_scalar_items(k, role):
    it = items(f'''    s_lshl_b32 s{sRes}, s{sG2}, 2
    s_add_u32 s{sFl}, s{sRes}, s{sWave}
    s_lshl_b32 s{sFl}, s{sFl}, 9
    s_add_u32 s{sFl}, s{sFl}, {WS_FL}
    s_lshl_b32 s{sRes}, s{sRes}, 1
    s_add_u32 s{sRes}, s{sRes}, s{sWave}
    s_mul_i32 s{sRes}, s{sRes}, {8*896}
    s_lshl_b32 s{sH}, s{sNb}, 7
    s_add_u32 s{sRes}, s{sRes}, s{sH}
    s_mul_i32 s{sOb}, s{sG2}, {144*2048}
    s_mul_i32 s{sH0}, s{sWave}, {28*2048}
    s_add_u32 s{sH0}, s{sH0}, s{sOb}''')
    if role == 'P': it += [f's_add_u32 s{sRes}, s{sRes}, {32*896}']
    else:
        it += items(f'''s_mul_i32 s{sWo}, s{sWave}, {14*1024}
        s_add_u32 s{sWo}, s{sWo}, {WB}
        s_mul_i32 s{sWg}, s{sWave}, {(112-448)*896}
        s_add_u32 s{sWg}, s{sWg}, s{sDb}
        s_add_u32 s{sDb}, s{sDb}, {224*896}
        s_add_u32 s{sH0}, s{sH0}, {14*2048}
        s_lshl_b32 s{sH}, s{sWave}, 14
        s_add_u32 s{sOb}, s{sOb}, s{sH}
        s_add_u32 s{sOb}, s{sOb}, {112*2048}
        s_lshl_b32 s{sKf}, s{sJ}, 2
        s_add_u32 s{sKf}, s{sKf}, s{sWave}
        s_andn2_b32 s3, s{sKf}, 1|s_add_u32 s{sKf}, s{sKf}, s3
        s_lshl_b32 s{sKf}, s{sKf}, 9
        s_add_u32 s{sKf}, s{sKf}, {WS_FL + 2*512 + 384}
        s_lshl_b32 s{sKb}, s{sJ}, 2
        s_add_u32 s{sKb}, s{sKb}, s{sWave}
        s_lshl_b32 s{sKb}, s{sKb}, 13
        s_add_u32 s{sKb}, s{sKb}, {WS_KVP}''')
    return it

def prefetch2(k, Z, i):
    mode = k.opt.get('pf2', 2)
    if mode == 2:
        if i in (1, 2): return []
        if i == 0: it = [f'v_lshl_add_u32 v{Z}, v{vL16}, 4, s2', f'v_min_u32 v{Z}, 1567, v{Z}', f'v_lshlrev_b32 v{Z}, 7, v{Z}', f's_mul_i32 s3, s{sWave}, {448*896}\ns_add_u32 s3, s3, {224*896}\nv_add_u32 v{Z}, s3, v{Z}']
    if mode == 1 or i == 3:
        it = [f's_lshl_b32 s3, s{sWave}, 8\ns_add_u32 s3, s3, s2\nv_lshl_add_u32 v{Z}, v{vL16}, 6, s3', f'v_lshlrev_b32 v{Z}, 7, v{Z}'] if (i == 0 or mode == 2) else []
    def ld():
        k(f's_mov_b64 exec, {(0x1f if mode == 1 else 0x7f, 0x1e0, 0x1e00, 0xf)[i]}')
        k.vmem(f'buffer_load_dword v{Z+1}, v{Z}, {srd(SD if i < 3 else SO)}, 0 offen', 'pf2')
        k('s_mov_b64 exec, -1')
    return it + [ld]

def kv_addr_items():
    a_, b_, l = 76, 77, 78
    return items(f'''v_lshrrev_b32 v{l}, 4, v{vL16}
        v_and_b32 v{a_}, 31, v{l}
        v_mul_u32_u24 v{a_}, {SP}, v{a_}
        v_and_b32 v{b_}, 32, v{l}
        s_mul_i32 s3, s{sWave}, {64*SP}|s_add_u32 s3, s3, {WB}|v_add3_u32 v{vS0}, v{a_}, v{b_}, s3
        v_lshrrev_b32 v{a_}, 4, v{l}
        v_lshlrev_b32 v{a_}, 3, v{a_}
        v_bfe_u32 v{b_}, v{l}, 2, 1
        v_add_u32 v{a_}, v{a_}, v{b_}
        v_bfe_u32 v{b_}, v{l}, 3, 1
        v_lshl_add_u32 v{a_}, v{b_}, 2, v{a_}
        v_mul_u32_u24 v{a_}, {SP}, v{a_}
        v_and_b32 v{b_}, 1, v{l}
        v_lshl_add_u32 v{a_}, v{b_}, 5, v{a_}
        v_bfe_u32 v{b_}, v{l}, 1, 1
        v_lshl_add_u32 v{a_}, v{b_}, 3, v{a_}
        v_add_u32 v{vS0+2}, {WB}, v{a_}
        s_lshl_b32 s3, s{sWave}, 3|s_lshr_b32 s3, 0x50401000, s3|s_and_b32 s3, s3, 0xff|v_add_u32 v{vS0+1}, s3, v{vS0+2}
        v_bfe_u32 v{a_}, v{l}, 4, 1
        v_lshlrev_b32 v{a_}, 9, v{a_}
        v_lshrrev_b32 v{b_}, 5, v{l}
        v_lshl_add_u32 v{a_}, v{b_}, 8, v{a_}
        v_and_b32 v{b_}, 15, v{l}
        v_lshl_add_u32 v{vS0+3}, v{b_}, 4, v{a_}''')

vCL = 64
def st_loads(role):
    r = [f'buffer_load_dwordx2 v[{vST+2*tt}:{vST+2*tt+1}], v{vPA}, {srd(SW)}, s{sT2} offen offset:{256*tt} sc1' for tt in range(2)]
    if role == 'A': r += [f'buffer_load_dword v{vCL+c}, v{vF0}, {srd(SW)}, s{sC} offen offset:{128*c} sc1' for c in range(5)]
    return r
def st_check(role):
    regs = [vST+i for i in range(4)] + ([vCL+i for i in range(5)] if role == 'A' else [vST])
    r = [f'v_max3_u32 v{vPoll}, v{regs[0]}, v{regs[1]}, v{regs[2]}']
    for i in range(3, len(regs), 2): r.append(f'v_max3_u32 v{vPoll}, v{vPoll}, v{regs[i]}, v{regs[i+1]}')
    return r

def main_loop(k, typ, role):
    o = k.opt
    A_role = role == 'A'; R2 = r2(typ, role)
    mkb = (lambda n: xbatch(n, n % 3)) if A_role else (lambda n: wbatch(typ, n, n % 3))
    k.vm = ['b0']*(8 if A_role else 5)
    read_setup(k, typ, role)
    pend = mkb(1)
    npre = o.get('preA', 4) if A_role else o.get('preF', 5)
    for g in pend[:npre]: k.emit_all(g)
    pend = pend[npre:]
    k.stamp(1)
    if A_role:
        L = k.A.label('L_bt')
        k(f's_cmp_ge_u32 s{sT1}, 32\ns_cbranch_scc1 {L}\ns_and_b32 s3, s2, 1\ns_lshl_b32 s3, s3, 7\ns_mov_b32 s{sOne}, 1\ns_waitcnt vmcnt({len(k.vm)})\ns_atomic_add s{sOne}, s[{SDBG}:{SDBG+1}], s3\n{L}:')
    k.wait('b0', extra='lgkmcnt(0)')
    k('s_barrier')
    k.stamp(2)
    k.emit_all(frag_reads(typ, role, 0, 0, 0))
    if o.get('pm', 1) == 1: k(f's_setprio {2 if A_role else 1}')
    if o.get('pm', 1) == 2 and not A_role: k('s_setprio 1')
    LEAD = o.get('leadA' if A_role else 'leadF', o.get('lead', 2 if A_role else 3)); SPAN = o.get('span', 4)
    sched = {}
    allb = [(1, pend)] + [(n_, mkb(n_)) for n_ in range(2, 7)]
    wq = []
    for n_, gs in allb:
        need = 4*(n_ - 1) + 3
        hi = max(need - LEAD, min(need, n_)); lo = max(hi - SPAN, 0, 4*(n_ - 3) + 3)
        cnt = len(gs) + (1 if (n_ == 5 and not A_role) else 0)
        for i_ in range(cnt):
            st_ = lo + (i_*(hi - lo))//cnt
            sched[st_] = sched.get(st_, 0) + 1
        wq.append(gs)
    pend = []
    PS = o.get('ps', 4 if o.get('rot', (2, 0)) == 4 else 3); GS = o.get('gs', 5)
    if A_role:
        ini, fills2 = init_items(k, typ)
        csv, cspub = cs_items(k)
        lazy = list(ini)
        w_stat = (lambda st: st, stats_items(k))
        w_addr = (lambda st: (0, 0), w2_addr_items('A', 128) + p2_scalar_items(k, R2))
        if o.get('rot', (2, 0)) == 4: work = [w_stat, w_addr, (lambda st: (3, 2), csv + cspub)]
        else: work = [(lambda st: (0, 2), csv + cspub), w_stat, w_addr]
    else:
        phi = [f's_mov_b32 s{SPH}, s{SDBG+2}', f's_mov_b32 s{SPH+1}, s{SDBG+3}', f's_mov_b32 s{SPH+2}, {16*1568}', f's_mov_b32 s{SPH+3}, 0x20000', f's_and_b32 s{sC2}, s{sWave}, 1', f's_lshl_b32 s{sC2}, s{sC2}, 10', f's_add_u32 m0, s{sC2}, {L_PHI}',
               f's_mul_i32 s{sB}, s{sJ}, 1568', f's_add_u32 s{sB}, s{sB}, s{sC2}', (f'buffer_load_dwordx4 v{vL16}, {srd(SPH)}, s{sB} offen lds', 'b5')]
        lazy = []
    if not A_role: wq[4].append(phi)
    wq = [g for gs in wq for g in gs]
    LASTB = max(sched) + 1; P0 = max(LASTB, 19); P0 = (P0 // 4, P0 % 4)
    c0 = -2*math.sqrt(2/math.pi)*math.log2(math.e)
    n = nT(role); ng = 2*n; spare = False; CS_ = (GS, o.get('csamp', 2))
    order = [1, 0] if (typ, role) == ('Q', 'A') else list(range(n))
    for (s, ks) in [(s, ks) for s in range(7) for ks in range(4)] + [(7, 0)]:
        slot = s % 3; b = (4*s + ks) & 1
        reads = []; extra = []; pre_bar = []
        if s < 7:
            if ks < 3: reads = frag_reads(typ, role, b ^ 1, slot, ks+1)
            elif s < 6: reads = frag_reads(typ, role, b ^ 1, (s+1) % 3, 0)
            else: reads = [f'ds_read_b128 {a(fW(role,b^1,c),4)}, v{vU0} offset:{tile_id(typ,role,c)*1024}' for c in order]
        if A_role:
            ROT4 = o.get('rot', (2, 0)) == 4
            if s < (4 if ROT4 else 1) and ks in (0, 1):
                def csr(s=s, ks=ks):
                    L = k.A.label('L_cs')
                    if ROT4: k(f's_and_b32 s3, s{sRb}, 3\ns_cmp_lg_u32 s3, {s}\ns_cbranch_scc1 {L}')
                    k.emit_all(cs_reads(typ, s % 3)[8*ks:8*ks+8])
                    k(f'{L}:')
                extra.append(csr)
            SROW = [tuple(x) for x in o.get('srowat', [(0, 2), (1, 1)])]
            STAT = tuple(o.get('statat', divmod(4*max(SROW)[0] + max(SROW)[1] + 2, 4)))
            while work and (s, ks) >= work[0][0](STAT): lazy += work.pop(0)[1]
            if (s, ks) == (4, 2):
                assert not work
                extra += lazy; lazy = []
            for i_, at in enumerate(SROW):
                if (s, ks) == at: extra.append(k.srow[i_])
            if (s, ks) == (4, 3):
                reads += [f'ds_read_b64_tr_b16 {pr(vWP+4*s_+2*j2)}, v{vU0} offset:{(16*s_+8*j2)*56}' for s_ in range(2) for j2 in range(2)]
            if (s, ks) == tuple(o.get('fill2at', (5, 1))) and o.get('sent'): extra += fills2
            if (s, ks) == (5, 0):
                extra += [f'v_mov_b32_dpp v{vWP+i}, v{vWP+i} quad_perm:[2,3,2,3] row_mask:0xa bank_mask:0x8' for i in range(8)]
                extra += [f'v_cndmask_b32 v{vWP+i}, v{vWP+i}, 0, s[{sHm}:{sHm+1}]' for i in (6, 7)]
                if typ == 'KV': lazy += kv_addr_items()
            IL = f'buffer_load_dword v{vPoll}, v{vPA}, {srd(SDBG)}, 0 offen sc1'
            if (s, ks) == tuple(o.get('isamp', (PS - 1, 3))):
                extra += [f's_mov_b32 s{SDBG+2}, 256', f's_mov_b32 s{SDBG+3}, 0x20000', f'v_lshlrev_b32 v{vPA}, 3, v{vL16}', (IL, 'ipoll')]
            if (s, ks) == (PS, 3):
                assert not any(isinstance(x, tuple) and x[1] in ('stst', 'csst') for x in lazy + [y for w_ in work for y in w_[1]])
                def igate():
                    k.wait('ipoll')
                    L = k.A.label('L_in')
                    C = f'v_cmp_gt_u32 vcc, 16, v{vPoll}\ns_and_b32 s3, vcc_lo, 3'
                    k(f'{C}\ns_cbranch_scc1 {L}f\n{L}b:')
                    k.tail.append(f'{L}f:\ns_mov_b32 s{sSpin}, 0\n{L}l:\n{IL}\ns_add_u32 s{sSpin}, s{sSpin}, 1\ns_waitcnt vmcnt(0)\n{C}\ns_cbranch_scc0 {L}b\ns_cmp_lt_u32 s{sSpin}, {o.get("spin", 200000)}\ns_cbranch_scc1 {L}l\ns_branch {L}b')
                def publish():
                    k.wait('stst', 'csst')
                    k(f's_lshl_b32 s3, s{sRb}, 2\ns_add_u32 s3, s3, s{sG}\ns_lshl_b32 s3, s3, 11\ns_add_u32 s{sB}, s3, {WS_FL + 384}\ns_lshl_b32 s3, s{sCg}, 11\ns_add_u32 s{sT1}, s3, {WS_FL + 512 + 384}')
                    post(k, sB); post(k, sT1)
                pre_bar += [igate, publish]
            if (s, ks) == CS_:
                extra.append(f's_lshl_b32 s3, s{sRb}, 2\ns_add_u32 s3, s3, s{sWave}\ns_lshl_b32 s3, s3, 11\ns_add_u32 s{sB}, s3, {WS_FL + 384}\n'
                             f's_load_dword s{sPl}, s[{SW}:{SW+1}], s{sB}\ns_load_dword s{sPl+1}, s[{SW}:{SW+1}], s{sT1}')
            if (s, ks) == (GS, 3):
                def cgate():
                    L = k.A.label('L_sc')
                    k(f's_waitcnt lgkmcnt(0)\ns_min_u32 s3, s{sPl}, s{sPl+1}\ns_cmp_lt_u32 s3, 32\ns_cbranch_scc1 {L}f\n{L}b:')
                    k.tail.append(f'{L}f:\ns_mov_b32 s{sSpin}, 0\nv_mov_b32 v{vPA}, s{sB}\nv_writelane_b32 v{vPA}, s{sT1}, 1\n{L}l:\ns_sleep 4\ns_mov_b64 exec, 3\nbuffer_load_dword v{vPoll}, v{vPA}, {srd(SW)}, 0 offen sc1\n'
                                  f's_add_u32 s{sSpin}, s{sSpin}, 1\ns_waitcnt vmcnt(0)\nv_cmp_gt_u32 vcc, 32, v{vPoll}\ns_mov_b64 exec, -1\ns_cbranch_vccz {L}b\ns_cmp_lt_u32 s{sSpin}, {o.get("spin", 200000)}\ns_cbranch_scc1 {L}l\ns_branch {L}b')
                pre_bar.append(cgate)
        else:
            if (s, ks) == (0, 0): lazy += w2_addr_items('F', 124) + flag_addr_items(typ, 'F')
            if o.get('npf', 0):
                for at, steps in o.get('pf1at', [[(0, 0), [2, 3]], [(1, 2), [4, 5, 6]]]):
                    assert tuple(at) < (2, 3)
                    if (s, ks) == tuple(at): extra.append(coop_later(k, steps))
            for i_, at in enumerate(o.get('pf2at', [divmod(LASTB + o.get('pf2d', 1), 4)]*4)):
                if (s, ks) == tuple(at) and o.get('pf2', 1): extra += prefetch2(k, vZF, i_)
            if (s, ks) == P0:
                assert not wq and not lazy
                pre_bar += p2_scalar_items(k, R2)
            if (s, ks) == (6, 3) and o.get('endprio', 1): pre_bar.append('s_setprio 3')
        if R2 == 'P':
            if (s, ks) == P0: pend += pbatch('P', 0) + pbatch('P', 1)
            if (s, ks) == (5, 3): pend += pbatch('P', 2) + pbatch('P', 3)
            if (s, ks) == (6, 0): assert all(g[-1][1] != 'd1' for g in pend)
            if (s, ks) == (6, 3): assert all(g[-1][1] != 'd3' for g in pend)
            if (s, ks) == (6, 0): extra += [lambda: k.wait('d1')] + preads('P', 0) + preads('P', 1)
            if (s, ks) == (6, 1): pend += pbatch('P', 4) + pbatch('P', 5)
            if (s, ks) == (6, 3): extra += [lambda: k.wait('d3')] + preads('P', 2) + preads('P', 3)
            if (s, ks) == (7, 0): pend += pbatch('P', 6)
        elif (s, ks) == (6, 3): pend += pbatch('S', 0) + pbatch('S', 1)
        if (s, ks) == (GS, 3):
            extra += items(f'''v_bfe_u32 v{vPA}, v{vL16}, 1, 8
            s_lshl_b32 s{sT2}, s{sRb}, 2
            s_add_u32 s{sT2}, s{sT2}, s{sWave}
            s_lshl_b32 s{sT2}, s{sT2}, 9
            s_add_u32 s{sT2}, s{sT2}, {WS_ST}''')
            if A_role: extra += items(f'''v_lshrrev_b32 v{vPoll}, 9, v{vL16}
            v_mul_u32_u24 v{vPoll}, 640, v{vPoll}
            v_lshrrev_b32 v{vF0}, 1, v{vPA}
            v_add_u32 v{vF0}, v{vF0}, v{vPoll}
            s_lshl_b32 s{sC}, s{sCg}, 2
            s_add_u32 s{sC}, s{sC}, s{sWave}
            s_mul_i32 s{sC}, s{sC}, 1280
            s_add_u32 s{sC}, s{sC}, {WS_CS}''')
            extra += [(l, 'stld') for l in st_loads(role)]
        if (s, ks) == (6, 2):
            extra.append(lambda: k.wait('stld'))
            extra.append(f'v_add_u32 v{vU0}, {L_CS}, v{vL16}')
            if A_role:
                extra.append(f's_lshl_b32 s3, s{sWave}, 2\nv_add_u32 v{vPoll}, s3, v{vU0}')
                extra += [f'ds_write_b32 v{vPoll}, v{vCL+c} offset:{c*1024}' for c in range(5)]
        if (s, ks) == (6, 3):
            for tt in range(2): extra += [f'v_cvt_pk_bf16_f32 v{vMB+4*tt+i}, v{vST+2*tt+1}, v{vST+2*tt+1}' for i in range(4)]
            for tt in range(2): extra.append(f'v_rsq_f32 v{vP2+2*tt+1}, v{vST+2*tt}')
            extra.append('s_nop 0')
            for tt in range(2):
                kap = vP2 + 2*tt + 1
                if (typ, role) != ('KV', 'A'):
                    extra += [f'v_mul_f32 v{vPoll}, v{kap}, v{kap}', f'v_mul_f32 v{vP2+2*tt}, {hex(f2u(c0))}, v{kap}',
                              f'v_mul_f32 v{vPoll}, {hex(f2u(0.044715))}, v{vPoll}', f'v_mul_f32 v{vP3+2*tt}, v{vP2+2*tt}, v{vPoll}']
        k(f's_waitcnt lgkmcnt({2 if spare else 0})')
        spare = A_role and ((PS, 3) <= (s, ks) < (PS + 1, 1) or CS_ <= (s, ks) < (GS, 3))
        mf = []
        for c in (order if s == 7 else range(n)):
            for tt in range(2):
                D = acc(c, tt); C = '0' if (s == 0 and ks == 0) else v(D, 16)
                mf.append(f'v_mfma_f32_32x32x16_bf16 {v(D,16)}, {a(fW(role,b,c),4)}, {a(fX(role,b,tt),4) if s < 7 else v(vMB+4*tt, 4)}, {C}')
        gaps = [[] for _ in range(ng)]
        if s == 7 and typ == 'Q': gaps[0].append('s_barrier')
        if ks == 3:
            assert s == 6 or all(g[-1][1] != f'b{s+1}' for g in wq)
            def bar(s=s):
                k.stamp(3 + s, 7)
                if s < 6: k.wait(f'b{s+1}')
                k.stamp(3 + s, 8)
                k('s_barrier')
                k.stamp(3 + s, 9)
            pre_bar.append(bar)
        gaps[0] += pre_bar
        rd = list(reads); gi = 0
        per = max(4, -(-len(rd) // (ng - 1)))
        while rd:
            gaps[gi] += rd[:per]; rd = rd[per:]; gi += 1
        now = [wq.pop(0) for _ in range(sched.get(4*s + ks, 0))]
        while pend and len(now) < o.get('prate', 4): now.append(pend.pop(0))
        for i_, g_ in enumerate(now):
            if o.get('x_nodma'): g_ = []
            pos_ = ng - 1 if (A_role and o.get('dmaend')) else min(ng - 1, 1 + (i_*(ng - 1))//len(now))
            gaps[pos_] += g_
        wt = lambda it: 3 if isinstance(it, tuple) else 1 if callable(it) else it.count('\n') + 1
        budget = o.get('lazy', 36); q = list(extra); tot = sum(wt(x) for x in q)
        while lazy and tot < budget:
            q.append(lazy.pop(0)); tot += wt(q[-1])
        accw = 0
        pm = o.get('pm', 1)
        if A_role and pm == 1 and tot > 6: gaps[ng - 1] += ['s_setprio 0'] + q + ['s_setprio 2']
        elif A_role and pm == 2: gaps[ng - 1] += q
        else:
            for it in q:
                gaps[min(ng - 1, 1 + (accw*(ng - 1))//max(tot, 1))].append(it); accw += wt(it)
        if spare:
            last = max(i for i in range(ng) if any(callable(x) or (isinstance(x, str) and 'ds_' in x) for x in gaps[i]))
            gaps[last] += [f'ds_read_b32 a{2+i}, v{vL16}' for i in range(2)]
        for i in range(ng):
            k(mf[i]); k.emit_all(gaps[i])
        if ks == 3: k.stamp(3 + s, grp=2)
        if o.get('verbose'): print(typ, role, s, ks, [sum(wt(x) for x in gp) for gp in gaps], 'lazy', len(lazy), 'pend', len(pend))
    assert not pend and not lazy
    if o.get('x_endbar'): k('s_nop 15\ns_barrier')
    k.stamp(3); k.stamp(3, 3)

def ffn_unit(k, c, tt, plain=False):
    A_ = acc(c, tt); P1 = vST + 2*tt; P2 = vP2 + 2*tt; T = vT
    if plain:
        for i in range(8): k.f(f'v_mul_f32 v{T+i}, v{A_+i}, v{A_+i}')
        for i in range(8): k.f(f'v_fma_f32 v{T+i}, v{T+i}, v{vP3+2*tt}, v{P2}')
        for i in range(8): k.f(f'v_mul_f32 v{T+i}, v{A_+i}, v{T+i}')
        for i in range(8): k.f(f'v_exp_f32 v{T+i}, v{T+i}')
        for i in range(8): k.f(f'v_mul_f32 v{A_+i}, v{A_+i}, v{A_+8+i}')
        for i in range(8): k.f(f'v_fma_f32 v{T+i}, v{T+i}, v{P1}, v{P1}')
        for i in range(8): k.f(f'v_rcp_f32 v{T+i}, v{T+i}')
        for i in range(8): k.f(f'v_mul_f32 v{A_+i}, v{A_+i}, v{T+i}')
        for i in range(4): k.f(f'v_cvt_pk_bf16_f32 v{A_+8+i}, v{A_+2*i}, v{A_+2*i+1}')
        return
    for i in range(4): k.f(f'v_pk_mul_f32 {pr(T+2*i)}, {pr(A_+2*i)}, {pr(A_+2*i)}')
    for i in range(4): k.f(f'v_pk_fma_f32 {pr(T+2*i)}, {pr(T+2*i)}, {pr(vP3+2*tt)}, {pr(P2)} op_sel_hi:[1,0,0]')
    for i in range(4): k.f(f'v_pk_mul_f32 {pr(T+2*i)}, {pr(A_+2*i)}, {pr(T+2*i)}')
    for i in range(8): k.f(f'v_exp_f32 v{T+i}, v{T+i}')
    for i in range(4): k.f(f'v_pk_mul_f32 {pr(A_+2*i)}, {pr(A_+2*i)}, {pr(A_+8+2*i)}')
    for i in range(4): k.f(f'v_pk_fma_f32 {pr(T+2*i)}, {pr(T+2*i)}, {pr(P1)}, {pr(P1)} op_sel_hi:[1,0,0]')
    for i in range(8): k.f(f'v_rcp_f32 v{T+i}, v{T+i}')
    for i in range(4): k.f(f'v_pk_mul_f32 {pr(A_+2*i)}, {pr(A_+2*i)}, {pr(T+2*i)}')
    for i in range(4): k.f(f'v_cvt_pk_bf16_f32 v{A_+8+i}, v{A_+2*i}, v{A_+2*i+1}')

def h_store(k, c, tt, sreg, off):
    k.vmem(f'buffer_store_dwordx4 {v(acc(c,tt)+8,4)}, v{vL16}, {srd(SW)}, s{sreg} offen offset:{off} sc1', 'hst')

def pack8(k, src, dst, n=8):
    for i in range(n): k.f(f'v_cvt_pk_bf16_f32 v{dst+i}, v{src+2*i}, v{src+2*i+1}')

def project(k, E):
    for tt in range(2): pack8(k, acc(0, tt), E + 8*tt)
    k('s_nop 1')
    for tt in range(2):
        P = acc(0, tt)
        k(f'v_mfma_f32_32x32x16_bf16 {v(P,16)}, {v(vWP,4)}, {v(E+8*tt,4)}, 0')
        k(f'v_mfma_f32_32x32x16_bf16 {v(P,16)}, {v(vWP+4,4)}, {v(E+8*tt+4,4)}, {v(P,16)}')

def softmaxes(k, F, after=None, plain=False):
    T = [vT, vT + 4]; S = 96
    R = range(2); P = [acc(0, 0), acc(0, 1)]; M = [acc(1, 0), acc(1, 1)]
    for tt in R: k.f(f'v_max3_f32 v{T[tt]}, v{P[tt]}, v{P[tt]+1}, v{P[tt]+2}\nv_min3_f32 v{T[tt]+2}, v{P[tt]}, v{P[tt]+1}, v{P[tt]+2}')
    for i in range(3, 13, 2):
        for tt in R: k.f(f'v_max3_f32 v{T[tt]}, v{T[tt]}, v{P[tt]+i}, v{P[tt]+i+1}\nv_min3_f32 v{T[tt]+2}, v{T[tt]+2}, v{P[tt]+i}, v{P[tt]+i+1}')
    for tt in R: k.f(f'v_max_f32 v{T[tt]+1}, v{T[tt]}, v{P[tt]+13}\nv_min_f32 v{T[tt]+3}, v{T[tt]+2}, v{P[tt]+13}')
    for tt in R: k.f(f'v_max_f32 v{T[tt]}, v{T[tt]}, v{P[tt]+13}\nv_min_f32 v{T[tt]+2}, v{T[tt]+2}, v{P[tt]+13}')
    for tt in R: k.f(f'v_mul_f32 v{vP2+2*tt}, {hex(f2u(math.log2(math.e)))}, v{vP2+2*tt+1}')
    for tt in R: k.f(f'v_permlane32_swap_b32 v{T[tt]}, v{T[tt]+1}\nv_permlane32_swap_b32 v{T[tt]+2}, v{T[tt]+3}')
    for tt in R: k.f(f'v_max_f32 v{T[tt]}, v{T[tt]}, v{T[tt]+1}\nv_min_f32 v{T[tt]+2}, v{T[tt]+2}, v{T[tt]+3}')
    for tt in R: k.f(f'v_mul_f32 v{T[tt]}, v{T[tt]}, v{vP2+2*tt}\nv_mul_f32 v{T[tt]+2}, v{T[tt]+2}, v{vP2+2*tt}')
    for tt in R:
        L = pr(vP2 + 2*tt); p = P[tt]; m = M[tt]; t = T[tt]; s_ = S + 4*tt
        Ls = vP2 + 2*tt
        if plain:
            for i in range(14): k.f(f'v_fma_f32 v{m+i}, -v{p+i}, v{Ls}, v{t+2}')
            for i in range(14): k.f(f'v_fma_f32 v{p+i}, v{p+i}, v{Ls}, -v{t}')
        else:
            for i in range(7): k.f(f'v_pk_fma_f32 {pr(m+2*i)}, {pr(p+2*i)}, {L}, {pr(t+2)} op_sel_hi:[1,0,0] neg_lo:[1,0,0] neg_hi:[1,0,0]')
            for i in range(7): k.f(f'v_pk_fma_f32 {pr(p+2*i)}, {pr(p+2*i)}, {L}, {pr(t)} op_sel_hi:[1,0,0] neg_lo:[0,0,1] neg_hi:[0,0,1]')
        for i in range(14): k.f(f'v_exp_f32 v{m+i}, v{m+i}')
        for i in range(14): k.f(f'v_exp_f32 v{p+i}, v{p+i}')
        for i in range(1, 7):
            for d, x in ((s_+2, m), (s_, p)):
                src = x if i == 1 else d
                if plain: k.f(f'v_add_f32 v{d}, v{src}, v{x+2*i}\nv_add_f32 v{d+1}, v{src+1}, v{x+2*i+1}')
                else: k.f(f'v_pk_add_f32 {pr(d)}, {pr(src)}, {pr(x+2*i)}')
        k.f(f'v_add_f32 v{t+2}, v{s_+2}, v{s_+3}\nv_add_f32 v{t+3}, v{s_+2}, v{s_+3}\nv_add_f32 v{t}, v{s_}, v{s_+1}\nv_add_f32 v{t+1}, v{s_}, v{s_+1}')
        k.f(f's_waitcnt lgkmcnt(0)\nv_permlane32_swap_b32 v{t+2}, v{t+3}\nv_permlane32_swap_b32 v{t}, v{t+1}')
        k.f(f'v_add_f32 v{t+2}, v{t+2}, v{t+3}\nv_add_f32 v{t}, v{t}, v{t+1}\nv_rcp_f32 v{t+2}, v{t+2}\nv_rcp_f32 v{t}, v{t}\nv_mov_b32 v{F[tt]+7}, 0\nv_mov_b32 v{F[tt]+15}, 0')
        if plain:
            for i in range(14): k.f(f'v_mul_f32 v{p+i}, v{p+i}, v{t}')
            for i in range(14): k.f(f'v_mul_f32 v{m+i}, v{m+i}, v{t+2}')
        else:
            for i in range(7): k.f(f'v_pk_mul_f32 {pr(p+2*i)}, {pr(p+2*i)}, {pr(t)} op_sel_hi:[1,0]')
            for i in range(7): k.f(f'v_pk_mul_f32 {pr(m+2*i)}, {pr(m+2*i)}, {pr(t+2)} op_sel_hi:[1,0]')
        pack8(k, p, F[tt], 7); pack8(k, m, F[tt]+8, 7)
        if after: after(tt)

def s_chain(k, first, last, gap):
    for p in range(first, last + 1):
        k.bg.append((gap, [lambda p=p: k.wait(f'd{p-2}')] + preads('S', p - 2)))
        if p <= 6:
            gs = pbatch('S', p); gs[0] = ['s_waitcnt lgkmcnt(0)'] + gs[0]
            for i, g in enumerate(gs): k.bg.append((min(gap, 60) if i == 0 else 0, g))

def wo_issue(k, lim):
    for g in obatch():
        if len(k.vm) > lim:
            k(f's_waitcnt vmcnt({lim})'); k.vm = k.vm[-lim:]
        k.emit_all(g)

def kv_part(k):
    V = 64
    project(k, V)
    for tt in range(2):
        A_ = acc(1, tt)
        for i in range(16): k.f(f'v_mul_f32 v{A_+i}, v{A_+i}, v{vP2+2*tt+1}')
        k.f(f'v_cndmask_b32 v{A_+12}, v{A_+12}, 1.0, s[{sHm}:{sHm+1}]\nv_cndmask_b32 v{A_+13}, v{A_+13}, 0, s[{sHm}:{sHm+1}]')
        pack8(k, A_, V + 8*tt)
        k.f(f'v_cndmask_b32 v{V+8*tt+7}, v{V+8*tt+7}, 0, s[{sHm}:{sHm+1}]')
        for q in range(2): k.f(f'ds_write_b128 v{vS0}, {v(V+8*tt+4*q,4)} offset:{tt*32*SP+128+16*q}')
    k.stamp(4, 3)
    def wr(tt):
        for sec in range(2):
            for q in range(2): k.f(f'ds_write_b128 v{vS0}, {v(V+8*sec+4*q,4)} offset:{tt*32*SP+64*sec+16*q}')
    softmaxes(k, [V, V], after=wr, plain=k.opt.get('plainKA', 0))
    k.stamp(5, 3)
    sync_post(k, 0); sync_wait(k, 0, 80)
    k.stamp(6, 3)
    D = 136
    def rd(kk):
        base = 12*(kk % 5)
        for j2 in range(2):
            im = (32*kk + 2*j2)*SP
            k(f'ds_read_b64_tr_b16 {pr(base+2*j2)}, v{vS0+1} offset:{im}')
            for dt in range(2): k(f'ds_read_b64_tr_b16 {pr(base+4+4*dt+2*j2)}, v{vS0+2} offset:{im+128+16*dt}')
    rd(0); rd(1)
    for kk in range(8):
        if kk + 2 < 8: rd(kk + 2)
        k(f's_waitcnt lgkmcnt({min(12, 6*(7-kk))})')
        base = 12*(kk % 5)
        for dt in range(2):
            k(f'v_mfma_f32_16x16x32_bf16 {v(D+4*dt,4)}, {v(base,4)}, {v(base+4+4*dt,4)}, {"0" if kk == 0 else v(D+4*dt,4)}')
    sync_post(k, 1)
    sample_h(k, 'P')
    for i in range(4): k(f'v_cvt_pk_bf16_f32 v{D+i}, v{D+2*i}, v{D+2*i+1}')
    k(f's_nop 0\nv_permlane32_swap_b32 v{D}, v{D+2}\nv_permlane32_swap_b32 v{D+1}, v{D+3}')
    k.vmem(f'buffer_store_dwordx4 {v(D,4)}, v{vS0+3}, {srd(SW)}, s{sP} offen sc1', 'kvst')
    k.stamp(7, 3)

vV = 123
def validate(k, r0, r1, base, off):
    if not k.opt.get('sent'): return
    L = k.A.label('L_v')
    k(f's_mov_b32 s{sSpin}, 0\n{L}c:\nv_max3_u32 v{vV}, v{r0}, v{r0+1}, v{r0+2}\nv_max3_u32 v{vV}, v{vV}, v{r0+3}, v{r1}\nv_max3_u32 v{vV}, v{vV}, v{r1+1}, v{r1+2}\nv_max_u32 v{vV}, v{vV}, v{r1+3}')
    k(f'v_cmp_eq_u32 vcc, -1, v{vV}\ns_cbranch_vccnz {L}f\n{L}b:')
    k.tail.append(f'''{L}f:
    s_add_u32 s{sSpin}, s{sSpin}, 1
    s_cmp_gt_u32 s{sSpin}, {k.opt.get("spin", 200000)//64}
    s_cbranch_scc1 {L}b
    s_add_u32 s3, s{base}, {off}
    buffer_load_dwordx4 {v(r0,4)}, v{vL16}, {srd(SW)}, s3 offen sc1
    buffer_load_dwordx4 {v(r1,4)}, v{vL16}, {srd(SW)}, s3 offen offset:1024 sc1
    s_waitcnt vmcnt(0)
    s_branch {L}c''')

QF = [64, 80]
def o_part(k):
    k.stamp(5, 3)
    spin(k, 'L_kq', f's_load_dword s{sPl}, s[{SW}:{SW+1}], s{sKf} glc', [(sPl, 8)])
    k.stamp(6, 3)
    k(f's_add_u32 s{sC}, s{sKb}, 4096')
    for rb in range(8): k.vmem(f'buffer_load_dwordx4 {v(16+4*rb,4)}, v{vL16}, {srd(SW)}, s{sC if rb >= 4 else sKb} offen offset:{1024*(rb&3)} sc1', f'kv{rb}')
    k(f'v_add_u32 v96, {L_KVF}, v{vL16}\ns_lshl_b32 s3, s{sWave}, 10\nv_add_u32 v97, s3, v96')
    for rb in range(8):
        k.wait(f'kv{rb}')
        for i in range(4):
            x = 16 + 4*rb + i
            if rb == 0: k(f'v_lshlrev_b32 v{2*i}, 16, v{x}\nv_and_b32 v{2*i+1}, 0xffff0000, v{x}')
            else: k(f'v_lshlrev_b32 v{8+i}, 16, v{x}\nv_and_b32 v{x}, 0xffff0000, v{x}')
        if rb:
            for i in range(4): k(f'v_add_f32 v{2*i}, v{2*i}, v{8+i}\nv_add_f32 v{2*i+1}, v{2*i+1}, v{16+4*rb+i}')
    k.stamp(7, 3)
    for i in range(4): k(f'v_cvt_pk_bf16_f32 v{8+i}, v{2*i}, v{2*i+1}')
    k('ds_write_b128 v97, v[8:11]')
    sync_post(k, 0); sync_wait(k, 0, 12)
    for s_ in range(4): k(f'ds_read_b128 {v(16+4*s_,4)}, v96 offset:{s_*1024}')
    k('s_waitcnt lgkmcnt(0)')
    sample_h(k, 'S')
    for tt in range(2):
        for s_ in range(4): k(f'v_mfma_f32_32x32x16_bf16 {v(32+16*tt,16)}, {v(16+4*s_,4)}, {v(QF[tt]+4*s_,4)}, {"0" if s_ == 0 else v(32+16*tt,16)}')
    k('s_nop 7')
    T = vT
    for tt in range(2):
        N = 32 + 16*tt
        k(f'v_mov_b32 v{T}, v{N+12}\nv_mov_b32 v{T+1}, v{N+12}\nv_cndmask_b32 v{N+12}, v{N+12}, 0, s[{sHm}:{sHm+1}]\ns_nop 0\nv_permlane32_swap_b32 v{T}, v{T+1}')
        k(f'v_add_f32 v{T}, {hex(f2u(1e-6))}, v{T+1}\nv_rcp_f32 v{T}, v{T}\ns_nop 0')
        for i in range(16): k(f'v_mul_f32 v{N+i}, v{N+i}, v{T}')
        for i in range(8): k(f'v_cvt_pk_bf16_f32 v{N+i}, v{N+2*i}, v{N+2*i+1}')
        for s_ in range(2): k.vmem(f'buffer_store_dwordx4 {v(N+4*s_,4)}, v{vL16}, {srd(SW)}, s{sP} offen offset:{2048*s_+1024*tt} sc1', 'ost')
    k.stamp(8, 3)

HB, NQ = 64, 12
vOUT, vOA, vRW, vRR, XR = 124, 125, 129, 133, 140
def late_setup(role):
    T = 137
    it = items(f'''v_lshrrev_b32 v{T}, 7, v{vL16}
    v_mul_u32_u24 v{vOUT}, 896, v{T}
    v_and_b32 v{T+1}, 0x70, v{vL16}
    v_add_u32 v{vOUT}, v{vOUT}, v{T+1}''')
    it.append((f'buffer_load_dwordx4 {v(XR,4)}, v{vOUT}, {srd(SX)}, s{sRes} offen', 'xr'))
    it += items(f'''v_lshrrev_b32 v{T+1}, 3, v{T+1}
    v_xor_b32 v{T+1}, v{T+1}, v{T}
    v_lshlrev_b32 v{T}, 8, v{T}
    s_lshl_b32 s3, s{sWave}, 11|v_add_u32 v{T}, s3, v{T}
    v_lshl_add_u32 v{vRR}, v{T+1}, 4, v{T}
    v_xor_b32 v{vRR+1}, 16, v{vRR}
    v_add_u32 v{vRR+2}, {2*XW}, v{vRR}
    v_add_u32 v{vRR+3}, {2*XW}, v{vRR+1}''')
    it += items(f'''v_bfe_u32 v{T}, v{vL16}, 4, 5
    v_lshrrev_b32 v{T+1}, 9, v{vL16}
    v_and_b32 v{T+2}, 7, v{T}
    v_xor_b32 v{T+1}, v{T+1}, v{T+2}
    v_lshlrev_b32 v{T}, 8, v{T}
    v_lshl_add_u32 v{T}, v{T+1}, 4, v{T}
    v_add_u32 v{vRW}, s{sMx}, v{T}''')
    it += [f'v_xor_b32 v{vRW+q}, {32*q}, v{vRW}' for q in range(1, 4)]
    if role == 'S':
        it += items(f'''s_sub_u32 s3, s{sWo}, s{sMx}|v_add_u32 v{vOA}, s3, v{vDA}|v_add_u32 v{vOA+1}, s3, v{vDA+1}
        v_and_b32 v{T}, 0x200, v{vL16}
        v_sub_u32 v{vOA+2}, v{vOA}, v{T}
        v_sub_u32 v{vOA+3}, v{vOA+1}, v{T}''')
    return it

FL = lambda i, r=0: f's_add_u32 s3, s{sFl}, {128*i}\ns_load_dword s{sPl+r}, s[{SW}:{SW+1}], s3 glc'
def h_load(k, role, e, half):
    if half == 0:
        if role == 'S' and e == 14 - k.opt.get('samp', 3): k(FL(2))
        if e == 14:
            k.stamp(7)
            spin(k, 'L_go', FL(2), [(sPl, 4)], first_loaded=True)
            k.stamp(8)
            k(f's_mov_b32 s{sH}, s{sOb}')
        elif e == 0: k(f's_mov_b32 s{sH}, s{sH0}')
        elif e % 2 == 0: k(f's_add_u32 s{sH}, s{sH}, 4096')
    k.vmem(f'buffer_load_dwordx4 {v(HB + 4*((2*e + half) % NQ),4)}, v{vL16}, {srd(SW)}, s{sH} offen offset:{(e&1)*2048 + half*1024} sc1', f'e{e}')

def first_loads(k, role):
    k.stamp(6)
    for x in range(2*k.opt.get('depth', 4)): h_load(k, role, x >> 1, x & 1)

def sample_h(k, role):
    k(FL(0, 1))
    if role == 'S': k(FL(1, 2))

def wait_h(k, role):
    k.stamp(5)
    if role == 'S':
        k(FL(0, 1))
        spin(k, 'L_hS', FL(1), [(sPl, 4)])
        k(f's_mov_b32 s{sPl}, s{sPl+1}')
    spin(k, 'L_hP', FL(0), [(sPl, 8)], first_loaded=(role == 'S'))

def open_stream(k, role, tag, sreg, idle):
    L = k.A.label('L_os')
    if idle: k(f's_cmp_eq_u32 s{sNb}, 7\ns_cbranch_scc1 {L}')
    k(f's_waitcnt lgkmcnt(0)\ns_cmp_lt_u32 s{sPl+1}, 8\ns_cbranch_scc1 {L}')
    if role == 'S': k(f's_cmp_lt_u32 s{sPl+2}, 4\ns_cbranch_scc1 {L}')
    sv = list(k.vm)
    k.stamp(5)
    first_loads(k, role)
    drain_post(k, tag, sreg)
    k.stamp(4)
    k(f's_branch L_tail{role}\n{L}:')
    k.vm = sv
    drain_post(k, tag, sreg)
    k.stamp(4)
    if idle: k(f's_cmp_eq_u32 s{sNb}, 7\ns_cbranch_scc1 L_end{role}')
    k(f's_branch L_wait{role}')

def stream(k, role):
    o = k.opt
    DEPTH = o.get('depth', 4)
    assert 2*(DEPTH + 1) <= NQ
    nent = 14 if role == 'P' else 22
    k(f'L_wait{role}:')
    wait_h(k, role)
    k.vm = []
    first_loads(k, role)
    k(f'L_tail{role}:')
    if o.get('prio' + role): k(f's_setprio {o["prio" + role]}')
    nxt = 2*DEPTH
    def more(upto):
        nonlocal nxt
        while nxt < min(upto, 2*nent):
            h_load(k, role, nxt >> 1, nxt & 1); nxt += 1
    def oreads(ko):
        jj, s_ = ko >> 1, ko & 1
        return [f'ds_read_b64_tr_b16 {a(8*(ko & 1) + 4*n + 2*j2, 2)}, v{vOA + n + (2 if (s_ == 1 and j2 == 1) else 0)} offset:{(28*jj + 16*s_ + 8*j2)*128}' for n in range(2) for j2 in range(2)]
    k.emit_all(late_setup(role))
    for e in range(nent):
        r = [HB + 4*((2*e + h) % NQ) for h in range(2)]
        if role == 'S' and e == 13: k.emit_all(oreads(0))
        k.wait(f'e{e}', extra='lgkmcnt(0)' if (e >= 14 or e == 0) else '')
        if e >= 14: validate(k, r[0], r[1], sOb, (e - 14)*2048)
        cnt = 0
        for tt in range(2):
            for n in range(2):
                D = 32*n + 16*tt
                Af = a(8*e + 4*n, 4) if e < 14 else a(8*((e - 14) & 1) + 4*n, 4)
                k(f'v_mfma_f32_32x32x16_bf16 {v(D,16)}, {Af}, {v(r[tt],4)}, {"0" if e == 0 else v(D,16)}')
                if cnt == 0 and 14 <= e < 21: k.emit_all(oreads(e - 13))
                if cnt == 1: more(2*(e + DEPTH) + 1)
                if cnt == 3: more(2*(e + DEPTH) + 2)
                cnt += 1
    k.stamp(9)
    k.wait('xr')
    for i in range(4): k(f'v_lshlrev_b32 v{100+2*i}, 16, v{XR+i}\nv_and_b32 v{100+2*i+1}, 0xffff0000, v{XR+i}')
    if role == 'S':
        k(f's_sub_u32 s3, s{sWo}, s{sMx}')
        for q in range(4): k(f'v_add_u32 v{vOA+q}, s3, v{vRW+q}')
    else: k('s_nop 3')
    for tt in range(2):
        for n in range(2):
            for q in range(4):
                if role == 'P': k(f'ds_write_b128 v{vRW+q}, {v(32*n+16*tt+4*q,4)} offset:{8192 + tt*8192 + n*128}')
                else: k(f'ds_write_b128 v{(vOA if tt else vRW)+q}, {v(32*n+16*tt+4*q,4)} offset:{n*128}')
    if role == 'P': k(f'v_add_u32 v{vOA}, {WB}, v{vRR}\nv_add_u32 v{vOA+1}, {WB}, v{vRR+1}')
    k('s_waitcnt lgkmcnt(0)\ns_barrier')
    tt = 0 if role == 'S' else 1
    rd = []
    for p in range(4):
        for hf in range(2): rd.append((vRR + 2*(p >> 1) + hf, (p & 1)*XW + 8192 + tt*8192))
    for p in range(4):
        for hf in range(2): rd.append((vRR + 2*(p >> 1) + hf, (p & 1)*XW) if tt == 0 else (vOA + hf, p*14336))
    for i, (va, im) in enumerate(rd): k(f'ds_read_b128 {v(4*i,4)}, v{va} offset:{im}')
    for p in range(8):
        k(f's_waitcnt lgkmcnt({2*(7-p)})')
        for i in range(4): k(f'v_pk_add_f32 {pr(100+2*i)}, {pr(100+2*i)}, {pr(8*p+2*i)}')
    for i in range(4): k(f'v_cvt_pk_bf16_f32 v{96+i}, v{100+2*i}, v{100+2*i+1}')
    k.vmem(f'buffer_store_dwordx4 v[96:99], v{vOUT}, {srd(SOUT)}, s{sRes} offen {o.get("outfl", "sc1")}', 'out')

def finish(k, role):
    o = k.opt; L = f'L_end{role}'
    k(f'{L}:')
    if o.get('probe'):
        k.stamp(10)
        k('s_waitcnt lgkmcnt(0)')
        if o['probe'][2] == 'rt': k('s_cmp_eq_u32 s98, 0\ns_cselect_b32 s98, s100, s98\ns_sub_u32 s98, s98, s100\ns_lshl_b32 s98, s98, 1')
        else: k('s_cmp_eq_u32 s98, 0\ns_cselect_b32 s98, s96, s98\ns_sub_u32 s98, s98, s96\ns_lshr_b32 s98, s98, 3')
        if o.get('probex') is not None: k(f's_getreg_b32 s3, hwreg(HW_REG_XCC_ID)\ns_and_b32 s3, s3, 7\ns_cmp_eq_u32 s3, {o["probex"]}\ns_cselect_b32 s98, s98, -3000')
        k(f's_add_u32 s98, s98, 3000\n{L}f:\ns_memrealtime s[{sC}:{sC+1}]\ns_waitcnt lgkmcnt(0)\ns_sub_u32 s3, s{sC}, s100\ns_cmp_lt_u32 s3, s98\ns_cbranch_scc1 {L}f')
    if o.get('stamps'):
        k(f'{"s_memrealtime" if o.get("rt") else "s_memtime"} s[{sA}:{sA+1}]\ns_memrealtime s[{sC}:{sC+1}]\ns_waitcnt lgkmcnt(0)')
        k(f's_lshl_b32 s3, s2, 3\ns_add_u32 s3, s3, s{sWave}\ns_add_u32 s3, s3, {0 if role == "S" else 4}\ns_lshl_b32 s3, s3, 6\ns_add_u32 s3, s3, {WS_STAMP}\nv_mov_b32 v40, s3\ns_mov_b64 exec, 1')
        k(f'v_mov_b32 v24, s100\nv_mov_b32 v25, s{sC}')
        for i in range(1, 10): k(f's_sub_u32 s3, s{STAMP0+2*i}, s{STAMP0}\nv_mov_b32 v{25+i}, s3')
        k(f's_sub_u32 s3, s{sA}, s{STAMP0}\nv_mov_b32 v35, s3')
        for q in range(3): k(f'buffer_store_dwordx4 {v(24+4*q,4)}, v40, {srd(SW)}, 0 offen offset:{16*q}')
    k('s_endpgm')
    for t in k.tail: k(t)
    k.tail = []

def ffn3(k, hold, plain=0):
    k(f's_lshl_b32 s{sC}, s{sKap}, 11\ns_add_u32 s{sC}, s{sC}, s{sHo}\ns_add_u32 s{sC2}, s{sC}, 4096')
    q = []
    for u in range(6):
        c, tt = u >> 1, u & 1
        ffn_unit(k, c, tt, (plain >> u) & 1); q.append((c, tt))
        if u + 1 >= hold:
            for c_, t_ in q: h_store(k, c_, t_, sC2 if c_ == 2 else sC, (c_ & 1)*2048 + t_*1024)
            q = []

def drain_post(k, tag, sreg):
    if tag == 'hst' or not k.opt.get('sent'): k.wait(tag)
    post(k, sreg)

def path_P(k):
    o = k.opt
    k.reset_bg(); k('L_KVA:'); main_loop(k, 'KV', 'A')
    k(f's_setprio {o.get("prioKA", 1)}\ns_nop 4')
    kv_part(k)
    k('s_setprio 0')
    k.wait('d6')
    for p in (4, 5, 6): k.emit_all(preads('P', p))
    open_stream(k, 'P', 'kvst', sF2, False)
    k.reset_bg(); k('L_QF:'); main_loop(k, 'Q', 'F')
    k(f's_setprio {o.get("prioQF", 1)}\ns_nop 4')
    ffn3(k, o.get('holdQ', 0), o.get('plainQ', 0))
    k.stamp(4)
    k('s_setprio 0')
    k.wait('d6')
    for p in (4, 5, 6): k.emit_all(preads('P', p))
    drain_post(k, 'hst', sFh)
    k(f's_cmp_eq_u32 s{sNb}, 7\ns_cbranch_scc1 L_endP')
    stream(k, 'P')
    finish(k, 'P')

def path_S(k):
    o = k.opt
    k.reset_bg(); k('L_KVF:'); main_loop(k, 'KV', 'F')
    k(f's_setprio {o.get("prioKF", 0)}\ns_nop 4')
    nk = o.get('kchain', 1)
    s_chain(k, 2, nk, 0); k.flush()
    k.stamp(4, 3)
    k.lastbg = k.t
    s_chain(k, nk + 1, 8, o.get('cgap', 250))
    ffn3(k, o.get('holdK', 0), o.get('plainK', 63))
    k.stamp(4); k.stamp(5, 3)
    k('s_setprio 0')
    if o.get('kpost', 1):
        drain_post(k, 'hst', sFh); k.stamp(6, 3)
    k.flush()
    sync_wait(k, 1, 0)
    nwo = o.get('kwo', 6)
    ob = obatch()
    for g in ob[:nwo]: k.emit_all(g)
    if not o.get('kpost', 1):
        drain_post(k, 'hst', sFh); k.stamp(6, 3)
    for g in ob[nwo:]: k.emit_all(g)
    k.stamp(7, 3)
    k('s_branch L_waitS')
    k.reset_bg(); k('L_QA:'); main_loop(k, 'Q', 'A')
    k(f's_setprio 1\ns_add_u32 s{sC}, s{sKap}, 3\ns_lshl_b32 s{sC}, s{sC}, 11\ns_add_u32 s{sC}, s{sC}, s{sHo}')
    ob = obatch()
    for g in ob[:4]: k.emit_all(g)
    ob = ob[4:]
    for tt in range(2): ffn_unit(k, 1, tt, o.get('plainQA', 0))
    k('s_setprio 0')
    nq = o.get('qchain', 4); early = o.get('qearly', 1)
    if early:
        for tt in range(2): h_store(k, 1, tt, sC, tt*1024)
    for p in range(2, nq + 1):
        s_chain(k, p, p, 0); k.flush()
        if early and p == o.get('qpost', 3): drain_post(k, 'hst', sFh)
        for g in ob[:4]: k.emit_all(g)
        ob = ob[4:]
    k.stamp(4, 3)
    assert not ob
    if not early:
        for tt in range(2): h_store(k, 1, tt, sC, tt*1024)
        k.timed.append((k.t + o.get('drain', 500), lambda: drain_post(k, 'hst', sFh), 'hst'))
    k.lastbg = k.t
    s_chain(k, nq + 1, 8, o.get('qgap', 200))
    project(k, 64)
    k('s_nop 9')
    softmaxes(k, QF, plain=o.get('plainQS', 0))
    k.run_timed('all')
    k.flush()
    if o.get('prioQA', 1): k(f's_setprio {o.get("prioQA", 1)}')
    o_part(k)
    k('s_setprio 0')
    open_stream(k, 'S', 'ost', sF2, True)
    stream(k, 'S')
    finish(k, 'S')

def generate(opt):
    k = K(opt); name = NAME + '_kernel'
    kernel_begin(k.A, name)
    prologue(k)
    path_P(k)
    path_S(k)
    k('L_codeend:')
    txt = k.A.text()
    if opt.get('align', 1):
        import align
        txt = align.align(txt)[0]
    return assemble_file([(name, 256, 512, NLDS)], txt, [kernel_desc(name, 256, accum=144)])

if __name__ == '__main__':
    import json, hazard
    opt = json.loads(sys.argv[2]) if len(sys.argv) > 2 else {}
    txt = generate(opt)
    open(sys.argv[1], 'w').write(txt)
    e = hazard.check(txt)
    print(len(txt), 'bytes of text;', len(e), 'hazards')
```

```python
import sys, struct, math
from collections import deque
from asmgen import *

def f2u(x): return struct.unpack('<I', struct.pack('<f', x))[0]

WS_H    = 0
WS_KVP  = 10 << 20
WS_ST   = 12 << 20
WS_FL   = 13 << 20
CST = 128
WS_CS   = WS_ST + 32768
WS_STAMP = 128 << 20
OOB = 0x40000000
NW = 8
XW = 24576
WB = 98304; WS_ = 20736
L_CS = WB + 57344
L_FLG = L_CS + 5120
L_PHI = 163840 - 2048
L_KVF = L_CS
SP = 208
NLDS = 163840

sWi, sP = 0, 1
sA, sA2, sB, sB2, sC, sC2 = 4, 5, 6, 7, 8, 9
sMx, sMa, sMf = 10, 11, 12
sT0, sT1, sT2 = 13, 14, 15
sFh, sF2 = 16, 17
sHm = 18
sG2, sNb, sDb, sHo = 20, 21, 22, 23
sSpin, sKap, sWave, sRb = 24, 25, 26, 27
SX, SQ, SG, SU, SD, SO, SW, SOUT, SDBG, SPH, SGU = 28, 32, 36, 40, 44, 48, 52, 56, 60, 64, 68
sG, sU, sJ, sCg, sSt, sXb, sQb, sFb = 72, 73, 74, 75, 76, 77, 78, 79
sMu, sH0, sFl, sRes = 32, 33, 34, 35
sH, sOb, sKb, sKf = 36, 37, 38, 39
sWo, sWg = 40, 41
sPl = 68
sOne, sRo = 42, 43
SPF = 64
sPm, sPz = 18, 19
vPF = 111
STAMP0 = 80

def srd(n): return f's[{n}:{n+3}]'
def pr(r): return f'v[{r}:{r+1}]'
def items(t): return [x.strip().replace('|', '\n') for x in t.strip().split('\n')]

TRANS = ('v_exp_f32', 'v_rcp_f32', 'v_rsq_f32')
def cost(line):
    op = line.split()[0]
    if op.endswith(':') or op.startswith('.') or op.startswith(';'): return 0
    if op.startswith('v_mfma'): return 32 if '32x32' in op else 16
    if op in TRANS: return 8
    if op == 's_nop': return 4*(int(line.split()[1]) + 1)
    if op == 'ds_write_b128' or op.startswith('buffer_'): return 16
    return 4

class K:
    def __init__(self, opt):
        self.A = Asm(); self.vm = []; self.opt = opt
        self.t = 0; self.credit = 0; self.tail = []
        self.reset_bg()
    def reset_bg(self):
        self.bg = deque(); self.timed = []; self.lastbg = -10**9; self.inbg = False; self.done = {}
    def raw(self, t):
        for l in t.strip('\n').split('\n'):
            l = l.strip()
            if not l: continue
            self.A(l); c = cost(l)
            if l.startswith('v_mfma'): self.t += c; self.credit = c - 8
            else:
                u = min(c, self.credit); self.credit -= u; self.t += c - u
    def __call__(self, t): self.raw(t)
    def f(self, t):
        for l in t.strip('\n').split('\n'):
            l = l.strip()
            if l: self.raw(l); self.tick()
    def run_timed(self, force=None):
        for it in [x for x in self.timed if x[0] <= self.t or force == 'all' or x[2] == force]:
            self.timed.remove(it); it[1]()
    def pop_bg(self):
        g = self.bg.popleft()
        for it in g[1]: self.emit(it)
        self.lastbg = self.t
    def tick(self):
        if self.inbg: return
        self.inbg = True
        self.run_timed()
        if self.bg and self.t - self.lastbg >= self.bg[0][0]: self.pop_bg()
        self.inbg = False
    def flush(self):
        self.inbg = True
        while self.bg:
            self.pop_bg(); self.t += 40; self.run_timed()
        self.inbg = False
    def vmem(self, t, tag):
        if tag in self.opt.get('x_skip', []): return
        self.raw(t); self.vm.append(tag)
    def wait(self, *tags, extra=''):
        last = max((i for i, x in enumerate(self.vm) if x in tags), default=None)
        if last is None:
            if extra: self.raw(f's_waitcnt {extra}')
            return
        n = len(self.vm) - 1 - last
        assert n <= 63, n
        self.raw(f's_waitcnt vmcnt({n}) {extra}')
        self.vm = self.vm[len(self.vm)-n:] if n else []
    def stamp(self, i, grp=1):
        pb = self.opt.get('probe')
        if pb:
            if i == 0: self.A('s_memtime s[96:97]\ns_mov_b32 s98, 0')
            if [i, grp] == pb[:2]: self.A('s_memrealtime s[98:99]' if pb[2] == 'rt' else 's_memtime s[98:99]')
        if self.opt.get('stamps') and (i <= 2 or self.opt.get('stamps') == grp):
            self.A(f'{"s_memrealtime" if self.opt.get("rt") else "s_memtime"} s[{STAMP0+2*i}:{STAMP0+2*i+1}]')
    def emit(self, item):
        if callable(item): item()
        elif isinstance(item, tuple): self.vmem(*item)
        else: self.raw(item)
    def emit_all(self, its):
        for it in its: self.emit(it)

vXA = 96
vFA, vAP, vFP, vZF = 100, 103, 104, 107
vAA, vF3, vCA, vXP, vS0 = 100, 101, 102, 104, 108
vL16, vF0, vOne, vPoll, vPA = 112, 113, 114, 115, 116
vDA, vDP, vU0 = 117, 119, 123
vST, vP2, vP3 = 124, 128, 132
vMB = vT = 136
vCR, vWP = 64, 88
def acc(c, tt): return 32*c + 16*tt
def nT(role): return 2 if role == 'A' else 3
def fX(role, b, tt): return 112 - (2-b)*(8 + 4*nT(role)) + 4*tt
def fW(role, b, c): return fX(role, b, 0) + 8 + 4*c
def tile_id(typ, role, c):
    if typ == 'KV': return c if role == 'A' else 2 + c
    return (0, 4)[c] if role == 'A' else 1 + c

def post(k, sreg):
    k(f's_mov_b32 s{sOne}, 1\ns_atomic_add s{sOne}, s[{SW}:{SW+1}], s{sreg}')

def spin(k, name, load, conds, first_loaded=False):
    L = k.A.label(name)
    k(f's_mov_b32 s{sSpin}, 0')
    if first_loaded: k(f's_branch {L}c')
    k(f'{L}:\ns_add_u32 s{sSpin}, s{sSpin}, 1\ns_cmp_gt_u32 s{sSpin}, {k.opt.get("spin", 200000)}\ns_cbranch_scc1 {L}x\n' + (f's_sleep {k.opt["sleep"]}\n' if k.opt.get('sleep') else '') + load)
    k(f'{L}c:\ns_waitcnt lgkmcnt(0)')
    for r, n in conds: k(f's_cmp_lt_u32 s{r}, {n}\ns_cbranch_scc1 {L}')
    k(f'{L}x:')

def sync_post(k, n):
    k(f's_lshl_b32 s3, s{sWave}, 2\ns_add_u32 s3, s3, {L_FLG + 16*n}\nv_mov_b32 v{vPA}, s3\ns_mov_b64 exec, 1\ns_waitcnt lgkmcnt(0)\nds_write_b32 v{vPA}, v{vOne}\ns_mov_b64 exec, -1')
def sync_wait(k, n, R):
    L = k.A.label('L_sy')
    k(f'v_mov_b32 v{vPA}, {L_FLG + 16*n}\n{L}:\nds_read_b128 {v(R,4)}, v{vPA}\ns_waitcnt lgkmcnt(0)\nv_min3_u32 v{R}, v{R}, v{R+1}, v{R+2}\nv_min_u32 v{R}, v{R}, v{R+3}\nv_cmp_eq_u32 vcc, 0, v{R}\ns_cbranch_vccnz {L}')

def next_stage(first):
    return [] if first else [f's_add_u32 s{sSt}, s{sSt}, 1', f's_cmp_eq_u32 s{sSt}, 7', f's_cselect_b32 s{sSt}, 0, s{sSt}']

def xbatch(n_, slot):
    tag = f'b{n_}'; g = []
    for n in range(8):
        p = []
        if n == 0: p = next_stage(n_ == 0) + [f's_add_u32 m0, s{sMx}, {slot*8192}', f's_lshl_b32 s{sA}, s{sSt}, 7', f's_add_u32 s{sA}, s{sA}, s{sXb}']
        if n == 4: p = [f's_add_u32 m0, s{sMx}, {slot*8192+4096}', f's_add_u32 s{sA}, s{sA}, {32*896}']
        g.append(p + [(f'buffer_load_dwordx4 v{vXP+(n&3)}, {srd(SX)}, s{sA} offen offset:{(n&3)*1024} lds', tag)])
    return g

def wbatch(typ, n_, slot):
    tag = f'b{n_}'
    g = [next_stage(n_ == 0) + [f's_mul_i32 s{sB}, s{sSt}, {64*2688}', f's_add_u32 s{sB}, s{sB}, s{sQb}', f's_add_u32 m0, s{sMa}, {slot*WS_}',
         f's_mul_i32 s{sC}, s{sSt}, {64*3584}', (f'buffer_load_dwordx4 v{vAP}, {srd(SQ)}, s{sB} offen lds', tag)]]
    if typ == 'KV':
        g.append([f's_add_u32 m0, s{sMa}, {slot*WS_+4096}', f's_add_u32 s{sB2}, s{sB}, 896', (f'buffer_load_dwordx4 v{vAP}, {srd(SQ)}, s{sB2} offen lds', tag)])
        g.append([f's_add_u32 m0, s{sMf}, {slot*WS_}', f's_add_u32 s{sC}, s{sC}, s{sFb}', (f'buffer_load_dwordx4 v{vFP}, {srd(SGU)}, s{sC} offen lds', tag)])
        g.append([(f'buffer_load_dwordx4 v{vFP+1}, {srd(SGU)}, s{sC} offen offset:1024 lds', tag)])
        g.append([(f'buffer_load_dwordx4 v{vFP+2}, {srd(SGU)}, s{sC} offen offset:2048 lds', tag)])
    else:
        g.append([f's_add_u32 m0, s{sMf}, {slot*WS_}', f's_add_u32 s{sC}, s{sC}, s{sFb}', (f'buffer_load_dwordx4 v{vFP}, {srd(SG)}, s{sC} offen lds', tag)])
        g.append([f's_add_u32 s{sC2}, s{sC}, {8*3584-1024}', (f'buffer_load_dwordx4 v{vFP}, {srd(SG)}, s{sC2} offen offset:1024 lds', tag)])
        g.append([f's_add_u32 m0, s{sMf}, {slot*WS_+8192}', 's_nop 0', (f'buffer_load_dwordx4 v{vFP+1}, {srd(SU)}, s{sC} offen lds', tag)])
        g.append([(f'buffer_load_dwordx4 v{vFP+1}, {srd(SU)}, s{sC2} offen offset:1024 lds', tag)])
    return g

PSLOT = {'P': [8192 + 4096*j for j in (0, 1, 2, 3, 0, 1, 2)], 'S': [0, 4096, 20480, 8192, 12288, 16384, 0]}
def r2(typ, role): return 'P' if (typ == 'KV') == (role == 'A') else 'S'
def pbatch(role, p):
    g = []
    for n in range(4):
        pre = [f's_bfe_u32 s{sA}, s{sRo}, {hex(0x40000 + 4*p)}', f's_mul_i32 s{sA}, s{sA}, {32*896}', f's_add_u32 m0, s{sMx}, {PSLOT[role][p]}', f's_add_u32 s{sA}, s{sA}, s{sDb}'] if n == 0 else []
        g.append(pre + [(f'buffer_load_dwordx4 v{vDP+n}, {srd(SD)}, s{sA} offen offset:{n*1024} lds', f'd{p}')])
    return g
def preads(role, p):
    return [f'ds_read_b64_tr_b16 a[{16*p+8*kl+4*n+2*j2}:{16*p+8*kl+4*n+2*j2+1}], v{vDA+n} offset:{PSLOT[role][p] + (16*kl + 8*j2)*128}'
            for kl in range(2) for n in range(2) for j2 in range(2)]
def obatch():
    g = []
    for n in range(14):
        p = []
        if n % 4 == 0: p = [f's_add_u32 m0, s{sWo}, {n*1024}', f's_add_u32 s{sA2}, s{sWg}, {(n >> 2)*32*896}']
        g.append(p + [(f'buffer_load_dwordx4 v{vDP+(n&3)}, {srd(SO)}, s{sA2} offen offset:{(n&3)*1024} lds', 'wo')])
    return g

def wread(typ, role, c, slot, ks, j2):
    row = 16*ks + 4*j2
    if role == 'A':
        if typ == 'KV' or c == 0: return vAA, slot*WS_ + c*4096 + row*64
        return vF3, slot*WS_ + row*128
    if typ == 'KV': return vFA, slot*WS_ + row*96 + c*32
    return vFA + c, slot*WS_ + row*128

def frag_reads(typ, role, b, slot, ks):
    r = [f'ds_read_b128 {a(fX(role,b,0),4)}, v{vXA+ks} offset:{slot*8192}']
    for c in range(nT(role)):
        for j2 in range(2):
            va, im = wread(typ, role, c, slot, ks, j2)
            r.append(f'ds_read_b64_tr_b16 {a(fW(role,b,c)+2*j2,2)}, v{va} offset:{im}')
        if c == 0: r.append(f'ds_read_b128 {a(fX(role,b,1),4)}, v{vXA+ks} offset:{slot*8192+4096}')
    return r

def coop_prefetch(k):
    P, B, S, R = 4, 5, 6, 7
    npf = k.opt.get('npf', 0)
    k(f'''s_mul_i32 s{B}, s{sG}, 896
    s_lshr_b32 s3, s{B}, 2
    s_andn2_b32 s3, s3, 127
    s_cmp_eq_u32 s{sWave}, 3
    s_cselect_b32 s{B}, s3, s{B}
    s_movk_i32 s{P}, 3584
    s_cselect_b32 s{P}, 2688, s{P}
    s_movk_i32 s{S}, 512
    s_cselect_b32 s{S}, 896, s{S}
    s_mov_b32 s{sPm}, 0x007f007f
    s_cselect_b32 s{sPm}, 0x07770777, s{sPm}
    s_lshl_b32 s{R}, s{sCg}, 1
    s_lshl_b32 s{sPz}, s{P}, 6
    s_mul_i32 s{SPF+2}, s{P}, 448
    s_and_b32 s{sT1}, s2, 4
    s_lshl_b32 s3, s{sT1}, 3
    s_add_u32 s3, s3, s{sCg}
    s_lshl_b32 s3, s3, 5
    s_cmp_eq_u32 s{sWave}, 0
    s_cselect_b32 s{R}, s3, s{R}
    s_cselect_b32 s{P}, 896, s{P}
    s_cselect_b32 s{B}, 0, s{B}
    s_cselect_b32 s{sPm}, -1, s{sPm}
    s_cselect_b32 s{sPz}, 128, s{sPz}
    s_cselect_b32 s{SPF+2}, {2048*896}, s{SPF+2}
    s_cselect_b32 s3, 0, 4
    s_cselect_b32 s{sT0}, 0, 15
    s_mov_b32 s{SPF+3}, 0x20000
    v_and_b32 v9, 31, v0
    v_lshrrev_b32 v2, s3, v9
    v_add_u32 v2, s{R}, v2
    v_mul_lo_u32 v2, v2, s{P}
    v_and_b32 v3, s{sT0}, v0
    v_lshrrev_b32 v4, 2, v3
    v_mad_u32_u24 v2, v4, s{S}, v2
    v_and_b32 v3, 3, v3
    v_lshl_add_u32 v2, v3, 7, v2
    v_add_u32 v{vPF}, s{B}, v2
    s_lshr_b32 s3, s{sT2}, 2
    s_add_u32 s3, s3, s{sT1}
    s_mul_i32 s3, s3, s{sPz}
    s_mov_b32 exec_lo, s{sPm}
    s_mov_b32 exec_hi, 0
    s_waitcnt lgkmcnt(0)
    buffer_load_dword a1, v{vPF}, {srd(SPF)}, s3 offen''')
    if npf == 3:
        L = k.A.label('L_pf')
        k(f's_cmp_ge_u32 s{sT2}, 4\ns_cbranch_scc1 {L}\ns_lshl_b32 s{sT0}, s{sPz}, 1\ns_add_u32 s3, s3, s{sT0}\nbuffer_load_dword a1, v{vPF}, {srd(SPF)}, s3 offen\n{L}:')
    k('s_mov_b64 exec, -1')

def coop_later(k, steps):
    def fn():
        k(f's_mov_b32 exec_lo, s{sPm}\ns_mov_b32 exec_hi, 0')
        for st in steps:
            k(f's_bitcmp1_b32 s2, 2\ns_cselect_b32 s3, {(st + 4) % 7}, {st}\ns_mul_i32 s3, s3, s{sPz}')
            k.vmem(f'buffer_load_dword a1, v{vPF}, {srd(SPF)}, s3 offen', 'pf1')
        k('s_mov_b64 exec, -1')
    return fn

def touch(k, sh):
    L = k.A.label('L_tc'); tm = k.opt.get('tmask', 63)
    n = lambda size: hex((1 << min(32, -(-size >> sh))) - 1)
    on = lambda b, t: t if tm >> b & 1 else ''
    k(f'v_lshlrev_b32 v7, {sh}, v0\ns_mov_b32 exec_hi, 0\ns_cmp_lt_u32 s{sWave}, 2\ns_cbranch_scc1 {L}a\ns_cmp_eq_u32 s{sWave}, 2\ns_cbranch_scc1 {L}b')
    k(on(4, f'v_lshlrev_b32 v7, 21, v0\ns_mov_b32 exec_lo, 0x7f\nglobal_load_dword a4, v7, s[{SW}:{SW+1}]\n') + f's_branch {L}x')
    k(f'{L}b:\n' + on(3, f's_mov_b32 exec_lo, {n(1792*896)}\nglobal_load_dword a4, v7, s[{SD}:{SD+1}]\ns_mov_b32 exec_lo, {n(448*896)}\nglobal_load_dword a5, v7, s[{SO}:{SO+1}]\n') + f's_branch {L}x')
    k(f'{L}a:\ns_cmp_eq_u32 s{sWave}, 0\ns_cbranch_scc1 {L}c\n' + on(1, f's_mov_b32 exec_lo, {n(2048*896)}\nglobal_load_dword a4, v7, s[{SOUT}:{SOUT+1}]\n') + on(2, f's_mov_b32 exec_lo, 1\nglobal_load_dword a5, v7, s[{SDBG+2}:{SDBG+3}]\n') + f's_branch {L}x')
    k(f'{L}c:\n' + on(0, f's_mov_b32 exec_lo, 1\nglobal_load_dword a4, v7, s[{SDBG}:{SDBG+1}] offset:64 sc1\n') + on(5, f's_load_dword s{sPl}, s[{SW}:{SW+1}], 0\n') + f'{L}x:\ns_mov_b64 exec, -1')

def prologue(k):
    o = k.opt
    k(f's_cmp_lt_u32 s2, 256\ns_cbranch_scc1 L_go\ns_endpgm\nL_go:')
    k.stamp(0)
    if o.get('stamps') or o.get('fixdur') or o.get('probe'): k('s_memrealtime s[100:101]')
    for n, off in ((SX, 0), (SQ, 8), (SG, 40), (SU, 48)): k(f's_load_dwordx2 s[{n}:{n+1}], s[0:1], {off}')
    k(f'v_lshrrev_b32 v1, 6, v0\ns_getpc_b64 s[20:21]\nL_pc:\nv_readfirstlane_b32 s{sT2}, v1')
    k(f's_lshr_b32 s{sCg}, s2, 3\nv_and_b32 v2, 0x1e0, v0\nv_add_u32 v2, s{sCg}, v2\nv_lshlrev_b32 v2, 7, v2\nv_min_u32 v2, L_codeend-L_pc-4, v2')
    k(f's_mov_b32 exec_lo, 1\ns_mov_b32 exec_hi, 1\nglobal_load_dword a0, v2, s[20:21]\ns_mov_b64 exec, -1')
    k(f's_and_b32 s{sWave}, s{sT2}, 3\ns_lshl_b32 s3, s{sWave}, 3\ns_lshr_b32 s3, 0x08302800, s3\ns_and_b32 s3, s3, 0xff\ns_load_dwordx2 s[{SPF}:{SPF+1}], s[0:1], s3')
    for n, off in ((SW, 80), (SD, 56), (SO, 24), (SDBG, 72), (SDBG+2, 16), (SOUT, 64)): k(f's_load_dwordx2 s[{n}:{n+1}], s[0:1], {off}')
    k(f'v_and_b32 v0, 63, v0\ns_and_b32 s{sG}, s2, 3')
    if o.get('npf', 0): coop_prefetch(k)
    k(f's_and_b32 s{sRb}, s{sCg}, 3\ns_and_b32 s3, s2, 4\ns_or_b32 s{sRb}, s{sRb}, s3\ns_lshr_b32 s{sU}, s{sCg}, 2')
    if o.get('rot', (2, 0)) == 4: k(f's_and_b32 s{sSt}, s{sRb}, 4')
    else:
        ra, rb_ = o.get('rot', (2, 0))
        k(f's_mul_i32 s{sSt}, s{sRb}, {ra}\ns_mul_i32 s3, s{sU}, {rb_}\ns_add_u32 s{sSt}, s{sSt}, s3\ns_mul_i32 s3, s{sSt}, 37\ns_lshr_b32 s3, s3, 8\ns_mul_i32 s3, s3, 7\ns_sub_u32 s{sSt}, s{sSt}, s3')
    k(f's_lshr_b32 s{sJ}, s{sU}, 1\ns_lshl_b32 s3, s{sG}, 2\ns_or_b32 s{sJ}, s{sJ}, s3\ns_mul_i32 s{sKap}, s{sG}, 28')
    k(f'v_lshrrev_b32 v1, 3, v0\nv_and_b32 v2, 7, v0\nv_lshlrev_b32 v{vL16}, 4, v0\nv_and_b32 v14, 3, v0')
    k(f's_lshl_b32 s{sHo}, s{sRb}, 2\ns_add_u32 s{sHo}, s{sHo}, s{sWave}\ns_mul_i32 s{sMx}, s{sWave}, {XW}')
    for n, size in ((SX, 2048*896), (SQ, 448*2688), (SG, 448*3584), (SU, 448*3584), (SGU, 448*3584)):
        k(f's_mov_b32 s{n+2}, {size}\ns_mov_b32 s{n+3}, 0x20000')
    if o.get('x_delay'): k(f's_sleep {o["x_delay"]}')
    k(f's_cmp_ge_u32 s{sT2}, 4\ns_cbranch_scc1 L_proF')
    k(f'''v_mul_u32_u24 v3, 896, v1
    v_lshrrev_b32 v4, 1, v1
    v_xor_b32 v5, v2, v4
    v_lshl_add_u32 v{vXP}, v5, 4, v3
    v_xor_b32 v5, 4, v5
    v_lshl_add_u32 v{vXP+1}, v5, 4, v3
    v_add_u32 v{vXP+1}, 6144, v{vXP+1}
    v_add_u32 v{vXP+2}, {2*6144}, v{vXP}
    v_add_u32 v{vXP+3}, {2*6144}, v{vXP+1}
    s_mul_i32 s{sXb}, s{sHo}, {64*896}
    s_waitcnt lgkmcnt(0)''')
    k.stamp(3, 5)
    k(f's_lshl_b32 s3, s{sWave}, 5\ns_or_b32 s{sT1}, s3, s2\ns_cmp_ge_u32 s{sT1}, 32\ns_cbranch_scc1 L_nz')
    k(f's_mul_i32 s3, s2, {16*CST}\ns_add_u32 s3, s3, {WS_FL}\nv_mul_u32_u24 v6, {CST}, v0\nv_add_u32 v6, s3, v6\nv_mov_b32 v7, 0\ns_mov_b64 exec, 0xffff\nglobal_store_dword v6, v7, s[{SW}:{SW+1}] sc1\ns_mov_b64 exec, -1\nL_nz:')
    if o.get('touch') == 1: touch(k, o.get('tsh', 21))
    for g in xbatch(0, 0): k.emit_all(g)
    if o.get('touch') == 2: touch(k, o.get('tsh', 21))
    k.stamp(4, 5)
    lane_setup(k)
    k(f's_bitcmp1_b32 s{sU}, 0\ns_cbranch_scc1 L_QA\ns_branch L_KVA')
    k('L_proF:')
    k(f'''v_lshrrev_b32 v6, 2, v0
    v_mul_u32_u24 v6, 2688, v6
    v_lshlrev_b32 v8, 4, v14
    v_min_u32 v8, 40, v8
    v_add_u32 v{vAP}, v6, v8
    s_mul_i32 s{sQb}, s{sWave}, {16*2688}
    s_mul_i32 s3, s{sJ}, 56
    s_add_u32 s{sQb}, s{sQb}, s3
    s_lshl_b32 s{sMa}, s{sWave}, 10
    s_add_u32 s{sMa}, s{sMa}, {WB}''')
    k(f's_bitcmp1_b32 s{sU}, 0\ns_cbranch_scc1 L_proFQ')
    for typ in ('KV', 'Q'):
        if typ == 'Q': k('L_proFQ:')
        kap_setup(k, typ); dma_setup(k, typ)
        k('s_waitcnt lgkmcnt(0)')
        if typ == 'KV': k(f's_cmp_lt_u32 s{sWave}, 2\ns_cselect_b32 s{SGU}, s{SG}, s{SU}\ns_cselect_b32 s{SGU+1}, s{SG+1}, s{SU+1}')
        k.stamp(3, 5)
        for g in wbatch(typ, 0, 0): k.emit_all(g)
        k.stamp(4, 5)
        lane_setup(k)
        k(f's_branch L_{typ}F')

def kap_setup(k, typ):
    if typ == 'KV':
        tbl = 0
        for j in range(16): tbl |= ([0,1,3,2][j & 3] if j < 8 else [1,0,2,3][j & 3]) << (2*j)
        k(f's_lshl_b32 s3, s{sJ}, 1\ns_lshr_b32 s3, {hex(tbl)}, s3\ns_and_b32 s3, s3, 3\ns_mul_i32 s3, s3, 3\ns_add_u32 s{sKap}, s{sKap}, s3\ns_add_u32 s{sKap}, s{sKap}, 16')
    else:
        k(f's_and_b32 s3, s{sJ}, 3\ns_lshl_b32 s3, s3, 2\ns_add_u32 s{sKap}, s{sKap}, s3')

def dma_setup(k, typ):
    if typ == 'KV':
        k(f's_add_u32 s{sQb}, s{sQb}, 896')
        k(f's_and_b32 s3, s{sWave}, 1\ns_mul_i32 s{sFb}, s3, {32*3584}\ns_lshl_b32 s{sT0}, s{sKap}, 5\ns_add_u32 s{sFb}, s{sFb}, s{sT0}')
        k(f's_mul_i32 s{sMf}, s3, 3072\ns_lshr_b32 s3, s{sWave}, 1\ns_mul_i32 s3, s3, 6272\ns_add_u32 s{sMf}, s{sMf}, s3\ns_add_u32 s{sMf}, s{sMf}, {WB+8192}')
        k(f's_movk_i32 s3, {3584-96}')
        for n in range(3):
            k(f'v_add_u32 v12, {64*n}, v0\nv_mul_u32_u24 v19, 171, v12\nv_lshrrev_b32 v19, 10, v19\nv_mad_u32_u24 v{vFP+n}, v19, s3, v{vL16}')
    else:
        k(f's_mul_i32 s{sFb}, s{sWave}, {16*3584}\ns_lshl_b32 s{sT0}, s{sKap}, 5\ns_add_u32 s{sFb}, s{sFb}, s{sT0}')
        k(f's_lshl_b32 s{sMf}, s{sWave}, 11\ns_add_u32 s{sMf}, s{sMf}, {WB+4096}')
        k(f'''v_and_b32 v12, 2, v1
        v_xor_b32 v12, v2, v12
        v_mul_u32_u24 v19, 3584, v1
        v_lshl_add_u32 v{vFP}, v12, 4, v19
        v_xor_b32 v12, 4, v12
        v_lshl_add_u32 v{vFP+1}, v12, 4, v19''')

def lane_setup(k):
    k(f'''v_and_b32 v9, 31, v0
    v_lshrrev_b32 v10, 5, v0
    v_bfe_u32 v18, v0, 1, 3
    v_lshlrev_b32 v12, 7, v9
    v_add_u32 v12, s{sMx}, v12''')
    for ks in range(4): k(f'v_or_b32 v13, {2*ks}, v10\nv_xor_b32 v13, v13, v18\nv_lshl_add_u32 v{vXA+ks}, v13, 4, v12')
    k(f'v_bfe_u32 v13, v0, 2, 2\nv_bfe_u32 v15, v0, 4, 1\nv_lshl_add_u32 v16, v10, 3, v13')

def read_setup(k, typ, role):
    if typ == 'KV':
        k(f'v_mul_u32_u24 v19, 96, v16\nv_mul_u32_u24 v20, 6272, v15\nv_lshlrev_b32 v12, 3, v14\nv_add3_u32 v19, v19, v20, v12')
        if role == 'F': k(f'v_add_u32 v{vFA}, {WB+8192}, v19')
        else: k(f's_min_u32 s3, s{sWave}, 2\ns_lshl_b32 s3, s3, 5\ns_add_u32 s3, s3, {WB+8192}\nv_add_u32 v{vCA}, s3, v19')
    else:
        k(f'v_lshlrev_b32 v19, 7, v16\nv_lshlrev_b32 v20, 13, v15\nv_lshlrev_b32 v12, 3, v14\nv_add3_u32 v19, v19, v20, v12\nv_add_u32 v19, {WB+4096}, v19\nv_lshrrev_b32 v20, 1, v13\nv_lshl_add_u32 v20, v15, 1, v20')
        if role == 'F':
            for seg in range(3): k(f'v_xor_b32 v12, {seg}, v20\nv_lshl_add_u32 v{vFA+seg}, v12, 5, v19')
        else: k(f'v_xor_b32 v12, 3, v20\nv_lshl_add_u32 v{vF3}, v12, 5, v19\nv_xor_b32 v12, s{sWave}, v20\nv_lshl_add_u32 v{vCA}, v12, 5, v19')
    if role == 'A':
        k(f'''v_lshl_add_u32 v17, v15, 2, v14
        v_cmp_lt_u32 vcc, 5, v17
        v_xor_b32 v18, 1, v17
        v_lshlrev_b32 v19, 6, v16
        v_cndmask_b32 v18, v17, v18, vcc
        v_add_u32 v19, {WB}, v19
        v_lshl_add_u32 v{vAA}, v18, 3, v19''')
        if typ == 'KV': k(f's_and_b32 s3, s{sWave}, 1\ns_lshl_b32 s3, s3, 12\nv_add_u32 v{vCA+1}, s3, v{vAA}')
        else: k(f'v_mov_b32 v{vCA+1}, v{vAA}')
        kap_setup(k, typ)
        k(f's_lshl_b32 s{sCg}, s{sG}, 3\ns_or_b32 s{sCg}, s{sCg}, s{sU}')
        k(f'v_mov_b32 v20, 0\nv_lshrrev_b32 v19, 2, v{vL16}\nv_add_u32 v19, {L_FLG}, v19\nds_write_b32 v19, v20')

def flag_addr_items(typ, role):
    return items(f'''s_mov_b32 s{SW+2}, {1 << 28}
    s_mov_b32 s{SW+3}, 0x20000
    s_lshl_b32 s{sFh}, s{sHo}, 2
    s_add_u32 s{sFh}, s{sFh}, s{sG}
    s_mul_i32 s{sFh}, s{sFh}, {4*CST}
    s_add_u32 s{sFh}, s{sFh}, {WS_FL + (CST if (typ, role) == ('KV', 'F') else 0)}
    s_mul_i32 s{sHo}, s{sHo}, {144*2048}
    v_mov_b32 v{vPoll}, {OOB}
    v_mov_b32 v{vOne}, 1''')

vZ = 124
vCSt, vStSt = 108, 109
def cs_reads(typ, slot):
    p = 96 if typ == 'KV' else 128
    return [f'ds_read_b64_tr_b16 {pr(vCR+16*r+4*ks+2*j2)}, v{vCA+r} offset:{slot*WS_ + (16*ks+4*j2)*(64 if r else p)}' for r in range(2) for ks in range(4) for j2 in range(2)]

def init_items(k, typ):
    l, t, h, z0, z1, oob, m1, m0_ = vZ, vZ+1, vZ+2, vZ+3, vZ+4, vPoll, vZ+5, vZ+6
    it = flag_addr_items(typ, 'A') + items(f'''v_lshrrev_b32 v{l}, 4, v{vL16}
    v_and_b32 v{t}, 31, v{l}
    v_lshrrev_b32 v{h}, 5, v{l}
    s_lshl_b32 s{sT2}, s{sRb}, 5
    s_add_u32 s{sT2}, s{sT2}, s{sCg}
    s_lshl_b32 s{sT2}, s{sT2}, 2
    s_add_u32 s{sT2}, s{sT2}, s{sWave}
    s_mul_i32 s{sT1}, s{sT2}, {2*896}
    v_mul_u32_u24 v{z0}, 896, v{h}
    v_lshl_add_u32 v{z0}, v{t}, 4, v{z0}
    v_cmp_lt_u32 vcc, 27, v{t}|s_lshl_b32 s{sT2}, s{sT2}, 4|s_add_u32 s{sT2}, s{sT2}, {WS_ST}|v_cndmask_b32 v{z0}, v{z0}, v{oob}, vcc''')
    it.append(f'v_mov_b32 v{vS0+2}, v{z0}')
    k.srow = [(f'buffer_load_dwordx4 {v(vMB+4*i,4)}, v{vS0+2}, {srd(SX)}, s{sT1} offen offset:{448*i}', 'srow') for i in range(2)]
    if typ == 'KV':
        it += items(f'''s_lshl_b32 s{sF2}, s{sJ}, 2
        s_add_u32 s{sF2}, s{sF2}, s{sWave}
        s_andn2_b32 s3, s{sF2}, 1|s_add_u32 s{sF2}, s{sF2}, s3
        s_mul_i32 s{sF2}, s{sF2}, {4*CST}
        s_add_u32 s{sF2}, s{sF2}, {WS_FL + 11*CST}
        s_lshl_b32 s{sP}, s{sJ}, 2
        s_add_u32 s{sP}, s{sP}, s{sWave}
        s_lshl_b32 s{sP}, s{sP}, 3
        s_add_u32 s{sP}, s{sP}, s{sRb}
        s_lshl_b32 s{sP}, s{sP}, 10
        s_add_u32 s{sP}, s{sP}, {WS_KVP}''')
    else:
        it += items(f'''s_add_u32 s{sF2}, s{sFh}, {2*CST}
        s_lshl_b32 s{sP}, s{sJ}, 12
        s_add_u32 s{sP}, s{sP}, s{sHo}
        s_add_u32 s{sP}, s{sP}, {112*2048}''')
    it += items(f'''    v_cmp_eq_u32 vcc, 0, v{t}|v_lshlrev_b32 v{z1}, 3, v{h}|s_lshl_b32 s{sT0}, s{sCg}, 3|v_cndmask_b32 v{vStSt}, v{oob}, v{z1}, vcc
    s_add_u32 s{sT0}, s{sT0}, s{sRb}
    s_mul_i32 s{sT0}, s{sT0}, 640
    s_add_u32 s{sT0}, s{sT0}, {WS_CS}
    v_lshl_add_u32 v{vCSt}, v{t}, 2, s{sT0}''')
    if typ == 'KV':
        it += items(f'''s_add_u32 s3, s{sWave}, 2|s_lshl_b32 s3, s3, 7|s_cmp_lt_u32 s{sWave}, 3|s_cselect_b32 s3, s3, {OOB}|v_mov_b32 v{z1}, s3
        s_lshl_b32 s3, s{sWave}, 7|s_cmp_lt_u32 s{sWave}, 2|s_cselect_b32 s3, s3, {OOB}|v_mov_b32 v{t}, s3''')
    else:
        it += items(f'''s_add_u32 s3, s{sWave}, 1|s_lshl_b32 s3, s3, 7|v_mov_b32 v{z1}, s3
        s_cmp_lt_u32 s{sWave}, 1|s_cselect_b32 s3, 0, {OOB}|v_mov_b32 v{t}, s3''')
    it += items(f'''s_mov_b32 s{sHm}, 0
    s_mov_b32 s{sHm+1}, -1
    v_cndmask_b32 v{z1}, v{z1}, v{t}, s[{sHm}:{sHm+1}]
    v_add_u32 v{vCSt}, v{vCSt}, v{z1}''')
    st2 = [f'v_mov_b32 v{72+i}, -1' for i in range(4)]
    st2 += [(f'buffer_store_dwordx4 v[72:75], v{vL16}, {srd(SW)}, s{sP} offen offset:{1024*i} sc1', 'fill2') for i in range(2 if typ == 'KV' else 4)]
    return it, st2

def cs_items(k):
    a0, a1, a2, a3, t = vZ+6, vZ+7, vZ+8, vZ+9, vZ+10
    it = []
    for r in range(2):
        lo, hi = (a0, a1) if r == 0 else (a2, a3)
        for i in range(16):
            x = vCR + 16*r + i
            if i == 0: it += [f'v_lshlrev_b32 v{lo}, 16, v{x}', f'v_and_b32 v{hi}, 0xffff0000, v{x}']
            else: it += [f'v_lshlrev_b32 v{t}, 16, v{x}', f'v_and_b32 v{x}, 0xffff0000, v{x}', f'v_add_f32 v{lo}, v{lo}, v{t}', f'v_add_f32 v{hi}, v{hi}, v{x}']
    it += items(f'''v_add_f32 v{a0}, v{a0}, v{a1}
    v_add_f32 v{a2}, v{a2}, v{a3}|s_cmp_eq_u32 s{sRb}, 7|s_cselect_b32 s{sT0}, 0, -1|v_permlane32_swap_b32 v{a0}, v{a2}
    v_add_f32 v{a0}, v{a0}, v{a2}
    v_cvt_pk_bf16_f32 v{a1}, v{a0}, v{a0}
    v_lshlrev_b32 v{a1}, 16, v{a1}
    v_sub_f32 v{a1}, v{a0}, v{a1}
    v_cvt_pk_bf16_f32 v{a1}, v{a0}, v{a1}
    v_and_b32 v{a1}, s{sT0}, v{a1}''')
    return it, [(f'buffer_store_dword v{a1}, v{vCSt}, {srd(SW)}, 0 offen sc1', 'csst')]

def stats_items(k):
    X = vMB; Lo = 128; s1, s0, r1, t = 124, 125, 126, 127
    it = [lambda: k.wait('srow')]
    for i in range(8): it += [f'v_lshlrev_b32 v{Lo+i}, 16, v{X+i}', f'v_and_b32 v{X+i}, 0xffff0000, v{X+i}']
    it += [f'v_add_f32 v{s0}, v{Lo}, v{X}', f'v_add_f32 v{s1}, v{Lo+1}, v{X+1}']
    for i in range(2, 8): it += [f'v_add_f32 v{s0}, v{s0}, v{Lo+i}', f'v_add_f32 v{s1}, v{s1}, v{X+i}']
    def red(r):
        o_ = []
        for m in ('quad_perm:[1,0,3,2]', 'quad_perm:[2,3,0,1]', 'row_half_mirror', 'row_mirror'):
            o_.append(f's_nop 1\nv_add_f32_dpp v{r}, v{r}, v{r} {m} row_mask:0xf bank_mask:0xf')
        return o_ + [f'v_mov_b32 v{t}, v{r}', f's_nop 1\nv_permlane16_swap_b32 v{r}, v{t}', f'v_add_f32 v{r}, v{r}, v{t}']
    it += [f'v_add_f32 v{s0}, v{s0}, v{s1}'] + red(s0) + [f'v_mul_f32 v{s0}, {hex(f2u(-1.0/448))}, v{s0}']
    for i in range(8): it += [f'v_add_f32 v{Lo+i}, v{Lo+i}, v{s0}', f'v_add_f32 v{X+i}, v{X+i}, v{s0}']
    it += [f'v_mul_f32 v{s1}, v{Lo}, v{Lo}', f'v_mul_f32 v{r1}, v{X}, v{X}']
    for i in range(1, 8): it += [f'v_fmac_f32 v{s1}, v{Lo+i}, v{Lo+i}', f'v_fmac_f32 v{r1}, v{X+i}, v{X+i}']
    it += ['s_mov_b32 vcc_lo, 0xf0000000', 's_mov_b32 vcc_hi, 0xf0000000', f'v_add_f32 v{r1}, v{r1}, v{s1}', f'v_cndmask_b32 v{r1}, v{r1}, 0, vcc']
    it += red(r1) + [f'v_mov_b32 v{s1}, {hex(f2u(1e-5))}', f'v_fmac_f32 v{s1}, {hex(f2u(1.0/448))}, v{r1}']
    return it + [(f'buffer_store_dwordx2 v[{s1}:{s0}], v{vStSt}, {srd(SW)}, s{sT2} offen sc1', 'stst')]

def w2_addr_items(role, Z):
    l, a_, b_, c_, d_ = Z, Z+1, Z+2, Z+3, Z+4
    it = []
    for n, size in ((SD, 1792*896), (SO, 448*896), (SOUT, 2048*896)): it += [f's_mov_b32 s{n+2}, {size}', f's_mov_b32 s{n+3}, 0x20000']
    it += items(f'''s_and_b32 s{sG2}, s2, 7
    s_lshl_b32 s{sG2}, s{sG2}, 2
    s_bfe_u32 s{sNb}, s2, 0x20003
    s_or_b32 s{sG2}, s{sG2}, s{sNb}
    s_lshr_b32 s{sNb}, s2, 5
    s_lshl_b32 s{sDb}, s{sNb}, 7
    s_mul_i32 s3, s{sWave}, {448*896}|s_add_u32 s{sDb}, s{sDb}, s3
    v_lshrrev_b32 v{l}, 4, v{vL16}
    v_lshrrev_b32 v{a_}, 3, v{l}
    v_mul_u32_u24 v{b_}, 896, v{a_}
    v_and_b32 v{a_}, 2, v{a_}
    v_lshlrev_b32 v{a_}, 1, v{a_}
    v_and_b32 v{c_}, 7, v{l}
    v_xor_b32 v{a_}, v{a_}, v{c_}
    v_lshl_add_u32 v{vDP}, v{a_}, 4, v{b_}
    s_cmp_eq_u32 s{sNb}, 7|s_cselect_b32 s3, {OOB}, 0|v_add_u32 v{vDP}, s3, v{vDP}
    v_add_u32 v{vDP+1}, 6144, v{vDP}
    v_add_u32 v{vDP+2}, {2*6144}, v{vDP}
    v_add_u32 v{vDP+3}, {3*6144}, v{vDP}
    v_bfe_u32 v{a_}, v{l}, 2, 2
    v_lshrrev_b32 v{b_}, 5, v{l}
    v_lshl_add_u32 v{b_}, v{b_}, 2, v{a_}
    v_bfe_u32 v{c_}, v{l}, 4, 1
    v_and_b32 v{d_}, 3, v{l}
    v_lshl_add_u32 v{c_}, v{c_}, 2, v{d_}
    v_lshlrev_b32 v{d_}, 7, v{b_}
    v_lshl_add_u32 v{d_}, v{c_}, 3, v{d_}
    v_add_u32 v{d_}, s{sMx}, v{d_}
    v_lshrrev_b32 v{a_}, 1, v{a_}
    v_lshl_add_u32 v{vDA}, v{a_}, 6, v{d_}
    v_xor_b32 v{a_}, 1, v{a_}
    v_lshl_add_u32 v{vDA+1}, v{a_}, 6, v{d_}''')
    if role == 'A':
        it += items(f'''v_mul_u32_u24 v{b_}, 56, v{b_}
        v_min_u32 v{c_}, 6, v{c_}
        v_lshl_add_u32 v{b_}, v{c_}, 3, v{b_}
        v_add_u32 v{vU0}, {L_PHI}, v{b_}''')
    return it

def p2_scalar_items(k, role):
    it = [f's_and_b32 s3, s2, {k.opt.get("rotx", 7)}\ns_lshl_b32 s3, s3, 2\ns_lshr_b32 s{sRo}, 0x6543210, s3\ns_sub_u32 s3, 28, s3\ns_lshl_b32 s3, 0x6543210, s3\ns_or_b32 s{sRo}, s{sRo}, s3']
    it += items(f'''s_lshl_b32 s{sRes}, s{sG2}, 2
    s_add_u32 s{sFl}, s{sRes}, s{sWave}
    s_mul_i32 s{sFl}, s{sFl}, {4*CST}
    s_add_u32 s{sFl}, s{sFl}, {WS_FL}
    s_lshl_b32 s{sRes}, s{sRes}, 1
    s_add_u32 s{sRes}, s{sRes}, s{sWave}
    s_mul_i32 s{sRes}, s{sRes}, {8*896}
    s_lshl_b32 s{sH}, s{sNb}, 7
    s_add_u32 s{sRes}, s{sRes}, s{sH}
    s_mul_i32 s{sOb}, s{sG2}, {144*2048}
    s_mul_i32 s{sH0}, s{sWave}, {28*2048}
    s_add_u32 s{sH0}, s{sH0}, s{sOb}''')
    it += items(f'''s_mul_i32 s{sWo}, s{sWave}, {14*1024}
    s_add_u32 s{sWo}, s{sWo}, {WB}
    s_mul_i32 s{sWg}, s{sWave}, {(112-448)*896}
    s_add_u32 s{sWg}, s{sWg}, s{sDb}''')
    if role == 'P': it += [f's_add_u32 s{sMu}, s{sRes}, {32*896}']
    else:
        it += items(f'''s_add_u32 s{sDb}, s{sDb}, {224*896}
        s_add_u32 s{sH0}, s{sH0}, {14*2048}
        s_lshl_b32 s{sH}, s{sWave}, 14
        s_add_u32 s{sOb}, s{sOb}, s{sH}
        s_add_u32 s{sOb}, s{sOb}, {112*2048}
        s_lshl_b32 s{sKf}, s{sJ}, 2
        s_add_u32 s{sKf}, s{sKf}, s{sWave}
        s_andn2_b32 s3, s{sKf}, 1|s_add_u32 s{sKf}, s{sKf}, s3
        s_mul_i32 s{sKf}, s{sKf}, {4*CST}
        s_add_u32 s{sKf}, s{sKf}, {WS_FL + 11*CST}
        s_lshl_b32 s{sKb}, s{sJ}, 2
        s_add_u32 s{sKb}, s{sKb}, s{sWave}
        s_lshl_b32 s{sKb}, s{sKb}, 13
        s_add_u32 s{sKb}, s{sKb}, {WS_KVP}''')
    return it

def prefetch2(k, Z, i):
    mode = k.opt.get('pf2', 2)
    if mode == 2:
        if i in (1, 2): return []
        if i == 0: it = [f'v_lshl_add_u32 v{Z}, v{vL16}, 4, s2', f'v_min_u32 v{Z}, 1567, v{Z}', f'v_lshlrev_b32 v{Z}, 7, v{Z}', f's_mul_i32 s3, s{sWave}, {448*896}\ns_add_u32 s3, s3, {224*896}\nv_add_u32 v{Z}, s3, v{Z}']
    if mode == 1 or i == 3:
        it = [f's_lshl_b32 s3, s{sWave}, 8\ns_add_u32 s3, s3, s2\nv_lshl_add_u32 v{Z}, v{vL16}, 6, s3', f'v_lshlrev_b32 v{Z}, 7, v{Z}'] if (i == 0 or mode == 2) else []
    def ld():
        k(f's_mov_b64 exec, {(0x1f if mode == 1 else 0x7f, 0x1e0, 0x1e00, 0xf)[i]}')
        k.vmem(f'buffer_load_dword v{Z+1}, v{Z}, {srd(SD if i < 3 else SO)}, 0 offen', 'pf2')
        k('s_mov_b64 exec, -1')
    return it + [ld]

def kv_addr_items():
    a_, b_, l = 76, 77, 78
    return items(f'''v_lshrrev_b32 v{l}, 4, v{vL16}
        v_and_b32 v{a_}, 31, v{l}
        v_mul_u32_u24 v{a_}, {SP}, v{a_}
        v_and_b32 v{b_}, 32, v{l}
        s_mul_i32 s3, s{sWave}, {64*SP}|s_add_u32 s3, s3, {WB}|v_add3_u32 v{vS0}, v{a_}, v{b_}, s3
        v_lshrrev_b32 v{a_}, 4, v{l}
        v_lshlrev_b32 v{a_}, 3, v{a_}
        v_bfe_u32 v{b_}, v{l}, 2, 1
        v_add_u32 v{a_}, v{a_}, v{b_}
        v_bfe_u32 v{b_}, v{l}, 3, 1
        v_lshl_add_u32 v{a_}, v{b_}, 2, v{a_}
        v_mul_u32_u24 v{a_}, {SP}, v{a_}
        v_and_b32 v{b_}, 1, v{l}
        v_lshl_add_u32 v{a_}, v{b_}, 5, v{a_}
        v_bfe_u32 v{b_}, v{l}, 1, 1
        v_lshl_add_u32 v{a_}, v{b_}, 3, v{a_}
        v_add_u32 v{vS0+2}, {WB}, v{a_}
        s_lshl_b32 s3, s{sWave}, 3|s_lshr_b32 s3, 0x50401000, s3|s_and_b32 s3, s3, 0xff|v_add_u32 v{vS0+1}, s3, v{vS0+2}
        v_bfe_u32 v{a_}, v{l}, 4, 1
        v_lshlrev_b32 v{a_}, 9, v{a_}
        v_lshrrev_b32 v{b_}, 5, v{l}
        v_lshl_add_u32 v{a_}, v{b_}, 8, v{a_}
        v_and_b32 v{b_}, 15, v{l}
        v_lshl_add_u32 v{vS0+3}, v{b_}, 4, v{a_}''')

vCL = 64
def st_loads(role):
    r = [f'buffer_load_dwordx2 v[{vST+2*tt}:{vST+2*tt+1}], v{vPA}, {srd(SW)}, s{sT2} offen offset:{256*tt} sc1' for tt in range(2)]
    if role == 'A': r += [f'buffer_load_dword v{vCL+c}, v{vF0}, {srd(SW)}, s{sC} offen offset:{128*c} sc1' for c in range(5)]
    return r
def st_check(role):
    regs = [vST+i for i in range(4)] + ([vCL+i for i in range(5)] if role == 'A' else [vST])
    r = [f'v_max3_u32 v{vPoll}, v{regs[0]}, v{regs[1]}, v{regs[2]}']
    for i in range(3, len(regs), 2): r.append(f'v_max3_u32 v{vPoll}, v{vPoll}, v{regs[i]}, v{regs[i+1]}')
    return r

def main_loop(k, typ, role):
    o = k.opt
    A_role = role == 'A'; R2 = r2(typ, role)
    mkb = (lambda n: xbatch(n, n % 3)) if A_role else (lambda n: wbatch(typ, n, n % 3))
    k.vm = ['b0']*(8 if A_role else 5)
    read_setup(k, typ, role)
    pend = mkb(1)
    npre = o.get('preA', 4) if A_role else o.get('preF', 5)
    for g in pend[:npre]: k.emit_all(g)
    pend = pend[npre:]
    k.stamp(1)
    if A_role:
        L = k.A.label('L_bt')
        k(f's_cmp_ge_u32 s{sT1}, 32\ns_cbranch_scc1 {L}\ns_and_b32 s3, s2, 1\ns_lshl_b32 s3, s3, 7\ns_mov_b32 s{sOne}, 1\ns_waitcnt vmcnt({len(k.vm)})\ns_atomic_add s{sOne}, s[{SDBG}:{SDBG+1}], s3\n{L}:')
    k.wait('b0', extra='lgkmcnt(0)')
    k('s_barrier')
    k.stamp(2)
    k.emit_all(frag_reads(typ, role, 0, 0, 0))
    if o.get('pm', 1) == 1: k(f's_setprio {2 if A_role else 1}')
    if o.get('pm', 1) == 2 and not A_role: k('s_setprio 1')
    LEAD = o.get('leadA' if A_role else 'leadF', o.get('lead', 2 if A_role else 3)); SPAN = o.get('span', 4)
    sched = {}
    allb = [(1, pend)] + [(n_, mkb(n_)) for n_ in range(2, 7)]
    wq = []
    for n_, gs in allb:
        need = 4*(n_ - 1) + 3
        hi = max(need - LEAD, min(need, n_)); lo = max(hi - SPAN, 0, 4*(n_ - 3) + 3)
        cnt = len(gs) + (1 if (n_ == 5 and not A_role) else 0)
        for i_ in range(cnt):
            st_ = lo + (i_*(hi - lo))//cnt
            sched[st_] = sched.get(st_, 0) + 1
        wq.append(gs)
    pend = []
    PS = o.get('ps', 4 if o.get('rot', (2, 0)) == 4 else 3); GS = o.get('gs', 5)
    if A_role:
        ini, fills2 = init_items(k, typ)
        csv, cspub = cs_items(k)
        lazy = list(ini)
        w_stat = (lambda st: st, stats_items(k))
        w_addr = (lambda st: (0, 0), w2_addr_items('A', 128) + p2_scalar_items(k, R2))
        if o.get('rot', (2, 0)) == 4: work = [w_stat, w_addr, (lambda st: (3, 2), csv + cspub)]
        else: work = [(lambda st: (0, 2), csv + cspub), w_stat, w_addr]
    else:
        phi = [f's_mov_b32 s{SPH}, s{SDBG+2}', f's_mov_b32 s{SPH+1}, s{SDBG+3}', f's_mov_b32 s{SPH+2}, {16*1568}', f's_mov_b32 s{SPH+3}, 0x20000', f's_and_b32 s{sC2}, s{sWave}, 1', f's_lshl_b32 s{sC2}, s{sC2}, 10', f's_add_u32 m0, s{sC2}, {L_PHI}',
               f's_mul_i32 s{sB}, s{sJ}, 1568', f's_add_u32 s{sB}, s{sB}, s{sC2}', (f'buffer_load_dwordx4 v{vL16}, {srd(SPH)}, s{sB} offen lds', 'b5')]
        lazy = []
    if not A_role: wq[4].append(phi)
    wq = [g for gs in wq for g in gs]
    LASTB = max(sched) + 1; P0 = max(LASTB, 19); P0 = (P0 // 4, P0 % 4)
    c0 = -2*math.sqrt(2/math.pi)*math.log2(math.e)
    n = nT(role); ng = 2*n; spare = False; CS_ = (GS, o.get('csamp', 2))
    order = [1, 0] if (typ, role) == ('Q', 'A') else list(range(n))
    for (s, ks) in [(s, ks) for s in range(7) for ks in range(4)] + [(7, 0)]:
        slot = s % 3; b = (4*s + ks) & 1
        reads = []; extra = []; pre_bar = []
        if s < 7:
            if ks < 3: reads = frag_reads(typ, role, b ^ 1, slot, ks+1)
            elif s < 6: reads = frag_reads(typ, role, b ^ 1, (s+1) % 3, 0)
            else: reads = [f'ds_read_b128 {a(fW(role,b^1,c),4)}, v{vU0} offset:{tile_id(typ,role,c)*1024}' for c in order]
        if A_role:
            ROT4 = o.get('rot', (2, 0)) == 4
            if s < (4 if ROT4 else 1) and ks in (0, 1):
                def csr(s=s, ks=ks):
                    L = k.A.label('L_cs')
                    if ROT4: k(f's_and_b32 s3, s{sRb}, 3\ns_cmp_lg_u32 s3, {s}\ns_cbranch_scc1 {L}')
                    k.emit_all(cs_reads(typ, s % 3)[8*ks:8*ks+8])
                    k(f'{L}:')
                extra.append(csr)
            SROW = [tuple(x) for x in o.get('srowat', [(0, 2), (1, 1)])]
            STAT = tuple(o.get('statat', divmod(4*max(SROW)[0] + max(SROW)[1] + 2, 4)))
            while work and (s, ks) >= work[0][0](STAT): lazy += work.pop(0)[1]
            if (s, ks) == (4, 2):
                assert not work
                extra += lazy; lazy = []
            for i_, at in enumerate(SROW):
                if (s, ks) == at: extra.append(k.srow[i_])
            if (s, ks) == (4, 3):
                reads += [f'ds_read_b64_tr_b16 {pr(vWP+4*s_+2*j2)}, v{vU0} offset:{(16*s_+8*j2)*56}' for s_ in range(2) for j2 in range(2)]
            if (s, ks) == tuple(o.get('fill2at', (5, 1))) and o.get('sent'): extra += fills2
            if (s, ks) == (5, 0):
                extra += [f'v_mov_b32_dpp v{vWP+i}, v{vWP+i} quad_perm:[2,3,2,3] row_mask:0xa bank_mask:0x8' for i in range(8)]
                extra += [f'v_cndmask_b32 v{vWP+i}, v{vWP+i}, 0, s[{sHm}:{sHm+1}]' for i in (6, 7)]
                if typ == 'KV': lazy += kv_addr_items()
            IL = f'buffer_load_dword v{vPoll}, v{vPA}, {srd(SDBG)}, 0 offen sc1'
            if (s, ks) == tuple(o.get('isamp', (PS - 1, 3))):
                extra += [f's_mov_b32 s{SDBG+2}, 256', f's_mov_b32 s{SDBG+3}, 0x20000', f'v_lshlrev_b32 v{vPA}, 3, v{vL16}', (IL, 'ipoll')]
            if (s, ks) == (PS, 3):
                assert not any(isinstance(x, tuple) and x[1] in ('stst', 'csst') for x in lazy + [y for w_ in work for y in w_[1]])
                def igate():
                    k.wait('ipoll')
                    L = k.A.label('L_in')
                    C = f'v_cmp_gt_u32 vcc, 16, v{vPoll}\ns_and_b32 s3, vcc_lo, 3'
                    k(f'{C}\ns_cbranch_scc1 {L}f\n{L}b:')
                    k.tail.append(f'{L}f:\ns_mov_b32 s{sSpin}, 0\n{L}l:\n{IL}\ns_add_u32 s{sSpin}, s{sSpin}, 1\ns_waitcnt vmcnt(0)\n{C}\ns_cbranch_scc0 {L}b\ns_cmp_lt_u32 s{sSpin}, {o.get("spin", 200000)}\ns_cbranch_scc1 {L}l\ns_branch {L}b')
                def publish():
                    k.wait('stst', 'csst')
                    k(f's_lshl_b32 s3, s{sRb}, 2\ns_add_u32 s3, s3, s{sG}\ns_mul_i32 s3, s3, {16*CST}\ns_add_u32 s{sB}, s3, {WS_FL + 3*CST}\ns_mul_i32 s3, s{sCg}, {16*CST}\ns_add_u32 s{sT1}, s3, {WS_FL + 7*CST}')
                    post(k, sB); post(k, sT1)
                pre_bar += [igate, publish]
            if (s, ks) == CS_:
                extra.append(f's_lshl_b32 s3, s{sRb}, 2\ns_add_u32 s3, s3, s{sWave}\ns_mul_i32 s3, s3, {16*CST}\ns_add_u32 s{sB}, s3, {WS_FL + 3*CST}\n'
                             f's_load_dword s{sPl}, s[{SW}:{SW+1}], s{sB}\ns_load_dword s{sPl+1}, s[{SW}:{SW+1}], s{sT1}')
            if (s, ks) == (GS, 3):
                def cgate():
                    L = k.A.label('L_sc')
                    k(f's_waitcnt lgkmcnt(0)\ns_min_u32 s3, s{sPl}, s{sPl+1}\ns_cmp_lt_u32 s3, 32\ns_cbranch_scc1 {L}f\n{L}b:')
                    k.tail.append(f'{L}f:\ns_mov_b32 s{sSpin}, 0\nv_mov_b32 v{vPA}, s{sB}\nv_writelane_b32 v{vPA}, s{sT1}, 1\n{L}l:\ns_sleep 4\ns_mov_b64 exec, 3\nbuffer_load_dword v{vPoll}, v{vPA}, {srd(SW)}, 0 offen sc1\n'
                                  f's_add_u32 s{sSpin}, s{sSpin}, 1\ns_waitcnt vmcnt(0)\nv_cmp_gt_u32 vcc, 32, v{vPoll}\ns_mov_b64 exec, -1\ns_cbranch_vccz {L}b\ns_cmp_lt_u32 s{sSpin}, {o.get("spin", 200000)}\ns_cbranch_scc1 {L}l\ns_branch {L}b')
                pre_bar.append(cgate)
        else:
            if (s, ks) == (0, 0): lazy += w2_addr_items('F', 124) + flag_addr_items(typ, 'F')
            if o.get('npf', 0):
                for at, steps in o.get('pf1at', [[(0, 0), [2, 3]], [(1, 2), [4, 5, 6]]]):
                    assert tuple(at) < (2, 3)
                    if (s, ks) == tuple(at): extra.append(coop_later(k, steps))
            for i_, at in enumerate(o.get('pf2at', [(3, 2)]*4)):
                if (s, ks) == tuple(at) and o.get('pf2', 1): extra += prefetch2(k, vZF, i_)
            if (s, ks) == P0:
                assert not wq and not lazy
                pre_bar += p2_scalar_items(k, R2)
            if (s, ks) == (6, 3) and o.get('endprio', 1): pre_bar.append('s_setprio 3')
        if R2 == 'P':
            if (s, ks) == P0: pend += pbatch('P', 0) + pbatch('P', 1)
            if (s, ks) == (5, 3): pend += pbatch('P', 2) + pbatch('P', 3)
            if (s, ks) == (6, 0): assert all(g[-1][1] != 'd1' for g in pend)
            if (s, ks) == (6, 3): assert all(g[-1][1] != 'd3' for g in pend)
            if (s, ks) == (6, 0): extra += [lambda: k.wait('d1')] + preads('P', 0) + preads('P', 1)
            if (s, ks) == (6, 1): pend += pbatch('P', 4) + pbatch('P', 5)
            if (s, ks) == (6, 3): extra += [lambda: k.wait('d3')] + preads('P', 2) + preads('P', 3)
            if (s, ks) == (7, 0): pend += pbatch('P', 6)
        elif (s, ks) == (6, 3): pend += pbatch('S', 0) + pbatch('S', 1)
        if (s, ks) == (GS, 3):
            extra += items(f'''v_bfe_u32 v{vPA}, v{vL16}, 1, 8
            s_lshl_b32 s{sT2}, s{sRb}, 2
            s_add_u32 s{sT2}, s{sT2}, s{sWave}
            s_lshl_b32 s{sT2}, s{sT2}, 9
            s_add_u32 s{sT2}, s{sT2}, {WS_ST}''')
            if A_role: extra += items(f'''v_lshrrev_b32 v{vPoll}, 9, v{vL16}
            v_mul_u32_u24 v{vPoll}, 640, v{vPoll}
            v_lshrrev_b32 v{vF0}, 1, v{vPA}
            v_add_u32 v{vF0}, v{vF0}, v{vPoll}
            s_lshl_b32 s{sC}, s{sCg}, 2
            s_add_u32 s{sC}, s{sC}, s{sWave}
            s_mul_i32 s{sC}, s{sC}, 1280
            s_add_u32 s{sC}, s{sC}, {WS_CS}''')
            extra += [(l, 'stld') for l in st_loads(role)]
        if (s, ks) == (6, 2):
            extra.append(lambda: k.wait('stld'))
            extra.append(f'v_add_u32 v{vU0}, {L_CS}, v{vL16}')
            if A_role:
                extra.append(f's_lshl_b32 s3, s{sWave}, 2\nv_add_u32 v{vPoll}, s3, v{vU0}')
                extra += [f'ds_write_b32 v{vPoll}, v{vCL+c} offset:{c*1024}' for c in range(5)]
        if (s, ks) == (6, 3):
            for tt in range(2): extra += [f'v_cvt_pk_bf16_f32 v{vMB+4*tt+i}, v{vST+2*tt+1}, v{vST+2*tt+1}' for i in range(4)]
            for tt in range(2): extra.append(f'v_rsq_f32 v{vP2+2*tt+1}, v{vST+2*tt}')
            extra.append('s_nop 0')
            for tt in range(2):
                kap = vP2 + 2*tt + 1
                if (typ, role) != ('KV', 'A'):
                    extra += [f'v_mul_f32 v{vPoll}, v{kap}, v{kap}', f'v_mul_f32 v{vP2+2*tt}, {hex(f2u(c0))}, v{kap}',
                              f'v_mul_f32 v{vPoll}, {hex(f2u(0.044715))}, v{vPoll}', f'v_mul_f32 v{vP3+2*tt}, v{vP2+2*tt}, v{vPoll}']
        k(f's_waitcnt lgkmcnt({2 if spare else 0})')
        spare = A_role and ((PS, 3) <= (s, ks) < (PS + 1, 1) or CS_ <= (s, ks) < (GS, 3))
        mf = []
        for c in (order if s == 7 else range(n)):
            for tt in range(2):
                D = acc(c, tt); C = '0' if (s == 0 and ks == 0) else v(D, 16)
                mf.append(f'v_mfma_f32_32x32x16_bf16 {v(D,16)}, {a(fW(role,b,c),4)}, {a(fX(role,b,tt),4) if s < 7 else v(vMB+4*tt, 4)}, {C}')
        gaps = [[] for _ in range(ng)]
        if s == 7 and typ == 'Q': gaps[0].append('s_barrier')
        if ks == 3:
            assert s == 6 or all(g[-1][1] != f'b{s+1}' for g in wq)
            def bar(s=s):
                k.stamp(3 + s, 7)
                if s < 6: k.wait(f'b{s+1}')
                k.stamp(3 + s, 8)
                k('s_barrier')
                k.stamp(3 + s, 9)
            pre_bar.append(bar)
        gaps[0] += pre_bar
        rd = list(reads); gi = 0
        per = max(4, -(-len(rd) // (ng - 1)))
        while rd:
            gaps[gi] += rd[:per]; rd = rd[per:]; gi += 1
        now = [wq.pop(0) for _ in range(sched.get(4*s + ks, 0))]
        while pend and len(now) < o.get('prate', 4): now.append(pend.pop(0))
        for i_, g_ in enumerate(now):
            if o.get('x_nodma'): g_ = []
            pos_ = ng - 1 if (A_role and o.get('dmaend')) else min(ng - 1, 1 + (i_*(ng - 1))//len(now))
            gaps[pos_] += g_
        wt = lambda it: 3 if isinstance(it, tuple) else 1 if callable(it) else it.count('\n') + 1
        budget = o.get('lazy', 36); q = list(extra); tot = sum(wt(x) for x in q)
        while lazy and tot < budget:
            q.append(lazy.pop(0)); tot += wt(q[-1])
        accw = 0
        pm = o.get('pm', 1)
        if A_role and pm == 1 and tot > 6: gaps[ng - 1] += ['s_setprio 0'] + q + ['s_setprio 2']
        elif A_role and pm == 2: gaps[ng - 1] += q
        else:
            for it in q:
                gaps[min(ng - 1, 1 + (accw*(ng - 1))//max(tot, 1))].append(it); accw += wt(it)
        if spare:
            last = max(i for i in range(ng) if any(callable(x) or (isinstance(x, str) and 'ds_' in x) for x in gaps[i]))
            gaps[last] += [f'ds_read_b32 a{2+i}, v{vL16}' for i in range(2)]
        for i in range(ng):
            k(mf[i]); k.emit_all(gaps[i])
        if ks == 3: k.stamp(3 + s, grp=2)
        if o.get('verbose'): print(typ, role, s, ks, [sum(wt(x) for x in gp) for gp in gaps], 'lazy', len(lazy), 'pend', len(pend))
    assert not pend and not lazy
    if o.get('x_endbar'): k('s_nop 15\ns_barrier')
    k.stamp(3); k.stamp(3, 3)

def ffn_unit(k, c, tt, plain=False):
    A_ = acc(c, tt); P1 = vST + 2*tt; P2 = vP2 + 2*tt; T = vT
    if plain:
        for i in range(8): k.f(f'v_mul_f32 v{T+i}, v{A_+i}, v{A_+i}')
        for i in range(8): k.f(f'v_fma_f32 v{T+i}, v{T+i}, v{vP3+2*tt}, v{P2}')
        for i in range(8): k.f(f'v_mul_f32 v{T+i}, v{A_+i}, v{T+i}')
        for i in range(8): k.f(f'v_exp_f32 v{T+i}, v{T+i}')
        for i in range(8): k.f(f'v_mul_f32 v{A_+i}, v{A_+i}, v{A_+8+i}')
        for i in range(8): k.f(f'v_fma_f32 v{T+i}, v{T+i}, v{P1}, v{P1}')
        for i in range(8): k.f(f'v_rcp_f32 v{T+i}, v{T+i}')
        for i in range(8): k.f(f'v_mul_f32 v{A_+i}, v{A_+i}, v{T+i}')
        for i in range(4): k.f(f'v_cvt_pk_bf16_f32 v{A_+8+i}, v{A_+2*i}, v{A_+2*i+1}')
        return
    for i in range(4): k.f(f'v_pk_mul_f32 {pr(T+2*i)}, {pr(A_+2*i)}, {pr(A_+2*i)}')
    for i in range(4): k.f(f'v_pk_fma_f32 {pr(T+2*i)}, {pr(T+2*i)}, {pr(vP3+2*tt)}, {pr(P2)} op_sel_hi:[1,0,0]')
    for i in range(4): k.f(f'v_pk_mul_f32 {pr(T+2*i)}, {pr(A_+2*i)}, {pr(T+2*i)}')
    for i in range(8): k.f(f'v_exp_f32 v{T+i}, v{T+i}')
    for i in range(4): k.f(f'v_pk_mul_f32 {pr(A_+2*i)}, {pr(A_+2*i)}, {pr(A_+8+2*i)}')
    for i in range(4): k.f(f'v_pk_fma_f32 {pr(T+2*i)}, {pr(T+2*i)}, {pr(P1)}, {pr(P1)} op_sel_hi:[1,0,0]')
    for i in range(8): k.f(f'v_rcp_f32 v{T+i}, v{T+i}')
    for i in range(4): k.f(f'v_pk_mul_f32 {pr(A_+2*i)}, {pr(A_+2*i)}, {pr(T+2*i)}')
    for i in range(4): k.f(f'v_cvt_pk_bf16_f32 v{A_+8+i}, v{A_+2*i}, v{A_+2*i+1}')

def h_store(k, c, tt, sreg, off):
    k.vmem(f'buffer_store_dwordx4 {v(acc(c,tt)+8,4)}, v{vL16}, {srd(SW)}, s{sreg} offen offset:{off} sc1', 'hst')

def pack8(k, src, dst, n=8):
    for i in range(n): k.f(f'v_cvt_pk_bf16_f32 v{dst+i}, v{src+2*i}, v{src+2*i+1}')

def project(k, E):
    for tt in range(2): pack8(k, acc(0, tt), E + 8*tt)
    k('s_nop 1')
    for tt in range(2):
        P = acc(0, tt)
        k(f'v_mfma_f32_32x32x16_bf16 {v(P,16)}, {v(vWP,4)}, {v(E+8*tt,4)}, 0')
        k(f'v_mfma_f32_32x32x16_bf16 {v(P,16)}, {v(vWP+4,4)}, {v(E+8*tt+4,4)}, {v(P,16)}')

def softmaxes(k, F, after=None, plain=False):
    T = [vT, vT + 4]; S = 96
    R = range(2); P = [acc(0, 0), acc(0, 1)]; M = [acc(1, 0), acc(1, 1)]
    for tt in R: k.f(f'v_max3_f32 v{T[tt]}, v{P[tt]}, v{P[tt]+1}, v{P[tt]+2}\nv_min3_f32 v{T[tt]+2}, v{P[tt]}, v{P[tt]+1}, v{P[tt]+2}')
    for i in range(3, 13, 2):
        for tt in R: k.f(f'v_max3_f32 v{T[tt]}, v{T[tt]}, v{P[tt]+i}, v{P[tt]+i+1}\nv_min3_f32 v{T[tt]+2}, v{T[tt]+2}, v{P[tt]+i}, v{P[tt]+i+1}')
    for tt in R: k.f(f'v_max_f32 v{T[tt]+1}, v{T[tt]}, v{P[tt]+13}\nv_min_f32 v{T[tt]+3}, v{T[tt]+2}, v{P[tt]+13}')
    for tt in R: k.f(f'v_max_f32 v{T[tt]}, v{T[tt]}, v{P[tt]+13}\nv_min_f32 v{T[tt]+2}, v{T[tt]+2}, v{P[tt]+13}')
    for tt in R: k.f(f'v_mul_f32 v{vP2+2*tt}, {hex(f2u(math.log2(math.e)))}, v{vP2+2*tt+1}')
    for tt in R: k.f(f'v_permlane32_swap_b32 v{T[tt]}, v{T[tt]+1}\nv_permlane32_swap_b32 v{T[tt]+2}, v{T[tt]+3}')
    for tt in R: k.f(f'v_max_f32 v{T[tt]}, v{T[tt]}, v{T[tt]+1}\nv_min_f32 v{T[tt]+2}, v{T[tt]+2}, v{T[tt]+3}')
    for tt in R: k.f(f'v_mul_f32 v{T[tt]}, v{T[tt]}, v{vP2+2*tt}\nv_mul_f32 v{T[tt]+2}, v{T[tt]+2}, v{vP2+2*tt}')
    for tt in R:
        L = pr(vP2 + 2*tt); p = P[tt]; m = M[tt]; t = T[tt]; s_ = S + 4*tt
        Ls = vP2 + 2*tt
        if plain:
            for i in range(14): k.f(f'v_fma_f32 v{m+i}, -v{p+i}, v{Ls}, v{t+2}')
            for i in range(14): k.f(f'v_fma_f32 v{p+i}, v{p+i}, v{Ls}, -v{t}')
        else:
            for i in range(7): k.f(f'v_pk_fma_f32 {pr(m+2*i)}, {pr(p+2*i)}, {L}, {pr(t+2)} op_sel_hi:[1,0,0] neg_lo:[1,0,0] neg_hi:[1,0,0]')
            for i in range(7): k.f(f'v_pk_fma_f32 {pr(p+2*i)}, {pr(p+2*i)}, {L}, {pr(t)} op_sel_hi:[1,0,0] neg_lo:[0,0,1] neg_hi:[0,0,1]')
        for i in range(14): k.f(f'v_exp_f32 v{m+i}, v{m+i}')
        for i in range(14): k.f(f'v_exp_f32 v{p+i}, v{p+i}')
        for i in range(1, 7):
            for d, x in ((s_+2, m), (s_, p)):
                src = x if i == 1 else d
                if plain: k.f(f'v_add_f32 v{d}, v{src}, v{x+2*i}\nv_add_f32 v{d+1}, v{src+1}, v{x+2*i+1}')
                else: k.f(f'v_pk_add_f32 {pr(d)}, {pr(src)}, {pr(x+2*i)}')
        k.f(f'v_add_f32 v{t+2}, v{s_+2}, v{s_+3}\nv_add_f32 v{t+3}, v{s_+2}, v{s_+3}\nv_add_f32 v{t}, v{s_}, v{s_+1}\nv_add_f32 v{t+1}, v{s_}, v{s_+1}')
        k.f(f's_waitcnt lgkmcnt(0)\nv_permlane32_swap_b32 v{t+2}, v{t+3}\nv_permlane32_swap_b32 v{t}, v{t+1}')
        k.f(f'v_add_f32 v{t+2}, v{t+2}, v{t+3}\nv_add_f32 v{t}, v{t}, v{t+1}\nv_rcp_f32 v{t+2}, v{t+2}\nv_rcp_f32 v{t}, v{t}\nv_mov_b32 v{F[tt]+7}, 0\nv_mov_b32 v{F[tt]+15}, 0')
        if plain:
            for i in range(14): k.f(f'v_mul_f32 v{p+i}, v{p+i}, v{t}')
            for i in range(14): k.f(f'v_mul_f32 v{m+i}, v{m+i}, v{t+2}')
        else:
            for i in range(7): k.f(f'v_pk_mul_f32 {pr(p+2*i)}, {pr(p+2*i)}, {pr(t)} op_sel_hi:[1,0]')
            for i in range(7): k.f(f'v_pk_mul_f32 {pr(m+2*i)}, {pr(m+2*i)}, {pr(t+2)} op_sel_hi:[1,0]')
        pack8(k, p, F[tt], 7); pack8(k, m, F[tt]+8, 7)
        if after: after(tt)

def s_chain(k, first, last, gap):
    for p in range(first, last + 1):
        k.bg.append((gap, [lambda p=p: k.wait(f'd{p-2}')] + preads('S', p - 2)))
        if p <= 6:
            gs = pbatch('S', p); gs[0] = ['s_waitcnt lgkmcnt(0)'] + gs[0]
            for i, g in enumerate(gs): k.bg.append((min(gap, 60) if i == 0 else 0, g))

def wo_issue(k, lim):
    for g in obatch():
        if len(k.vm) > lim:
            k(f's_waitcnt vmcnt({lim})'); k.vm = k.vm[-lim:]
        k.emit_all(g)

def kv_part(k):
    V = 64
    project(k, V)
    for tt in range(2):
        A_ = acc(1, tt)
        for i in range(16): k.f(f'v_mul_f32 v{A_+i}, v{A_+i}, v{vP2+2*tt+1}')
        k.f(f'v_cndmask_b32 v{A_+12}, v{A_+12}, 1.0, s[{sHm}:{sHm+1}]\nv_cndmask_b32 v{A_+13}, v{A_+13}, 0, s[{sHm}:{sHm+1}]')
        pack8(k, A_, V + 8*tt)
        k.f(f'v_cndmask_b32 v{V+8*tt+7}, v{V+8*tt+7}, 0, s[{sHm}:{sHm+1}]')
        for q in range(2): k.f(f'ds_write_b128 v{vS0}, {v(V+8*tt+4*q,4)} offset:{tt*32*SP+128+16*q}')
    k.stamp(4, 3)
    def wr(tt):
        for sec in range(2):
            for q in range(2): k.f(f'ds_write_b128 v{vS0}, {v(V+8*sec+4*q,4)} offset:{tt*32*SP+64*sec+16*q}')
    softmaxes(k, [V, V], after=wr, plain=k.opt.get('plainKA', 0))
    k.stamp(5, 3)
    sync_post(k, 0); sync_wait(k, 0, 80)
    k.stamp(6, 3)
    D = 136
    def rd(kk):
        base = 12*(kk % 5)
        for j2 in range(2):
            im = (32*kk + 2*j2)*SP
            k(f'ds_read_b64_tr_b16 {pr(base+2*j2)}, v{vS0+1} offset:{im}')
            for dt in range(2): k(f'ds_read_b64_tr_b16 {pr(base+4+4*dt+2*j2)}, v{vS0+2} offset:{im+128+16*dt}')
    rd(0); rd(1)
    for kk in range(8):
        if kk + 2 < 8: rd(kk + 2)
        k(f's_waitcnt lgkmcnt({min(12, 6*(7-kk))})')
        base = 12*(kk % 5)
        for dt in range(2):
            k(f'v_mfma_f32_16x16x32_bf16 {v(D+4*dt,4)}, {v(base,4)}, {v(base+4+4*dt,4)}, {"0" if kk == 0 else v(D+4*dt,4)}')
    sync_post(k, 1)
    if not k.opt.get('woA', 0): sample_h(k, 'P')
    else: k('s_nop 0')
    for i in range(4): k(f'v_cvt_pk_bf16_f32 v{D+i}, v{D+2*i}, v{D+2*i+1}')
    k(f's_nop 0\nv_permlane32_swap_b32 v{D}, v{D+2}\nv_permlane32_swap_b32 v{D+1}, v{D+3}')
    k.vmem(f'buffer_store_dwordx4 {v(D,4)}, v{vS0+3}, {srd(SW)}, s{sP} offen sc1', 'kvst')
    k.stamp(7, 3)

vV = 123
def validate(k, r0, r1, base, off):
    if not k.opt.get('sent'): return
    L = k.A.label('L_v')
    k(f's_mov_b32 s{sSpin}, 0\n{L}c:\nv_max3_u32 v{vV}, v{r0}, v{r0+1}, v{r0+2}\nv_max3_u32 v{vV}, v{vV}, v{r0+3}, v{r1}\nv_max3_u32 v{vV}, v{vV}, v{r1+1}, v{r1+2}\nv_max_u32 v{vV}, v{vV}, v{r1+3}')
    k(f'v_cmp_eq_u32 vcc, -1, v{vV}\ns_cbranch_vccnz {L}f\n{L}b:')
    k.tail.append(f'''{L}f:
    s_add_u32 s{sSpin}, s{sSpin}, 1
    s_cmp_gt_u32 s{sSpin}, {k.opt.get("spin", 200000)//64}
    s_cbranch_scc1 {L}b
    s_add_u32 s3, s{base}, {off}
    buffer_load_dwordx4 {v(r0,4)}, v{vL16}, {srd(SW)}, s3 offen sc1
    buffer_load_dwordx4 {v(r1,4)}, v{vL16}, {srd(SW)}, s3 offen offset:1024 sc1
    s_waitcnt vmcnt(0)
    s_branch {L}c''')

QF = [64, 80]
def o_part(k):
    k.stamp(5, 3)
    spin(k, 'L_kq', f's_load_dword s{sPl}, s[{SW}:{SW+1}], s{sKf} glc', [(sPl, 8)])
    k.stamp(6, 3)
    k(f's_add_u32 s{sC}, s{sKb}, 4096')
    for rb in range(8): k.vmem(f'buffer_load_dwordx4 {v(16+4*rb,4)}, v{vL16}, {srd(SW)}, s{sC if rb >= 4 else sKb} offen offset:{1024*(rb&3)} sc1', f'kv{rb}')
    k(f'v_add_u32 v96, {L_KVF}, v{vL16}\ns_lshl_b32 s3, s{sWave}, 10\nv_add_u32 v97, s3, v96')
    for rb in range(8):
        k.wait(f'kv{rb}')
        for i in range(4):
            x = 16 + 4*rb + i
            if rb == 0: k(f'v_lshlrev_b32 v{2*i}, 16, v{x}\nv_and_b32 v{2*i+1}, 0xffff0000, v{x}')
            else: k(f'v_lshlrev_b32 v{8+i}, 16, v{x}\nv_and_b32 v{x}, 0xffff0000, v{x}')
        if rb:
            for i in range(4): k(f'v_add_f32 v{2*i}, v{2*i}, v{8+i}\nv_add_f32 v{2*i+1}, v{2*i+1}, v{16+4*rb+i}')
    k.stamp(7, 3)
    for i in range(4): k(f'v_cvt_pk_bf16_f32 v{8+i}, v{2*i}, v{2*i+1}')
    k('ds_write_b128 v97, v[8:11]')
    sync_post(k, 0); sync_wait(k, 0, 12)
    for s_ in range(4): k(f'ds_read_b128 {v(16+4*s_,4)}, v96 offset:{s_*1024}')
    k('s_waitcnt lgkmcnt(0)')
    sample_h(k, 'S')
    for tt in range(2):
        for s_ in range(4): k(f'v_mfma_f32_32x32x16_bf16 {v(32+16*tt,16)}, {v(16+4*s_,4)}, {v(QF[tt]+4*s_,4)}, {"0" if s_ == 0 else v(32+16*tt,16)}')
    k('s_nop 7')
    T = vT
    for tt in range(2):
        N = 32 + 16*tt
        k(f'v_mov_b32 v{T}, v{N+12}\nv_mov_b32 v{T+1}, v{N+12}\nv_cndmask_b32 v{N+12}, v{N+12}, 0, s[{sHm}:{sHm+1}]\ns_nop 0\nv_permlane32_swap_b32 v{T}, v{T+1}')
        k(f'v_add_f32 v{T}, {hex(f2u(1e-6))}, v{T+1}\nv_rcp_f32 v{T}, v{T}\ns_nop 0')
        for i in range(16): k(f'v_mul_f32 v{N+i}, v{N+i}, v{T}')
        for i in range(8): k(f'v_cvt_pk_bf16_f32 v{N+i}, v{N+2*i}, v{N+2*i+1}')
        for s_ in range(2): k.vmem(f'buffer_store_dwordx4 {v(N+4*s_,4)}, v{vL16}, {srd(SW)}, s{sP} offen offset:{2048*s_+1024*tt} sc1', 'ost')
    k.stamp(8, 3)

HB, NQ = 64, 12
vOUT, vOA, vRW, vRR, XR = 123, 124, 128, 132, 136
def late_setup(role):
    T = 119
    it = []
    if role == 'P':
        it += items(f'''v_lshrrev_b32 v{T}, 7, v{vL16}
        v_mul_u32_u24 v{vOUT}, 896, v{T}
        v_and_b32 v{T+1}, 0x70, v{vL16}
        v_add_u32 v{vOUT}, v{vOUT}, v{T+1}''')
        it += items(f'''v_lshrrev_b32 v{T+1}, 3, v{T+1}
        v_xor_b32 v{T+1}, v{T+1}, v{T}
        v_lshlrev_b32 v{T}, 8, v{T}
        s_lshl_b32 s3, s{sWave}, 11|v_add_u32 v{T}, s3, v{T}
        v_lshl_add_u32 v{vRR}, v{T+1}, 4, v{T}
        v_xor_b32 v{vRR+1}, 16, v{vRR}
        v_add_u32 v{vRR+2}, {2*XW}, v{vRR}
        v_add_u32 v{vRR+3}, {2*XW}, v{vRR+1}
        v_add_u32 v{vOA}, {WB}, v{vRR}
        v_add_u32 v{vOA+1}, {WB}, v{vRR+1}''')
    it += items(f'''v_bfe_u32 v{T}, v{vL16}, 4, 5
    v_lshrrev_b32 v{T+1}, 9, v{vL16}
    v_and_b32 v{T+2}, 7, v{T}
    v_xor_b32 v{T+1}, v{T+1}, v{T+2}
    v_lshlrev_b32 v{T}, 8, v{T}
    v_lshl_add_u32 v{T}, v{T+1}, 4, v{T}
    v_add_u32 v{vRW}, s{sMx}, v{T}''')
    it += [f'v_xor_b32 v{vRW+q}, {32*q}, v{vRW}' for q in range(1, 4)]
    if role == 'S':
        it += items(f'''s_sub_u32 s3, s{sWo}, s{sMx}|v_add_u32 v{vOA}, s3, v{vDA}|v_add_u32 v{vOA+1}, s3, v{vDA+1}|v_add_u32 v{vRR}, s3, v{vRW}|v_add_u32 v{vRR+1}, s3, v{vRW+1}|v_add_u32 v{vRR+2}, s3, v{vRW+2}|v_add_u32 v{vRR+3}, s3, v{vRW+3}
        v_and_b32 v{T}, 0x200, v{vL16}
        v_sub_u32 v{vOA+2}, v{vOA}, v{T}
        v_sub_u32 v{vOA+3}, v{vOA+1}, v{T}''')
    return it

def halves(role):
    hs = [(e, tt) for e in range(14) for tt in range(2)]
    if role == 'S': hs += [(e, tt) for tt in range(2) for e in range(14, 22)]
    return hs

FL = lambda i, r=0: f's_add_u32 s3, s{sFl}, {CST*i}\ns_load_dword s{sPl+r}, s[{SW}:{SW+1}], s3 glc'
def h_load(k, role, x):
    e, tt = halves(role)[x]
    if role == 'S' and x == 28 - 2*k.opt.get('samp', 3): k(FL(2))
    if x == 28:
        k.stamp(7)
        spin(k, 'L_go', FL(2), [(sPl, 4)], first_loaded=True)
        k.stamp(8)
    if e == 14: k(f's_mov_b32 s{sH}, s{sOb}')
    elif e < 14 and x % 4 == 0: k(f's_bfe_u32 s{sH}, s{sRo}, {hex(0x40000 + x)}\ns_lshl_b32 s{sH}, s{sH}, 12\ns_add_u32 s{sH}, s{sH}, s{sH0}')
    elif e > 14 and e % 2 == 0: k(f's_add_u32 s{sH}, s{sH}, 4096')
    k.vmem(f'buffer_load_dwordx4 {v(HB + 4*(x % NQ),4)}, v{vL16}, {srd(SW)}, s{sH} offen offset:{(e&1)*2048 + tt*1024} sc1', f'e{x}')

def first_loads(k, role):
    k.stamp(6)
    for x in range(2*k.opt.get('depth', 4)): h_load(k, role, x)

def sample_h(k, role):
    k(FL(0, 1))
    if role == 'S': k(FL(1, 2))

def wait_h(k, role):
    k.stamp(5)
    if role == 'S':
        k(FL(0, 1))
        spin(k, 'L_hS', FL(1), [(sPl, 4)])
        k(f's_mov_b32 s{sPl}, s{sPl+1}')
    spin(k, 'L_hP', FL(0), [(sPl, 8)], first_loaded=(role == 'S'))

def open_stream(k, role, tag, sreg, idle):
    L = k.A.label('L_os')
    if idle: k(f's_cmp_eq_u32 s{sNb}, 7\ns_cbranch_scc1 {L}')
    k(f's_waitcnt lgkmcnt(0)\ns_cmp_lt_u32 s{sPl+1}, 8\ns_cbranch_scc1 {L}')
    if role == 'S': k(f's_cmp_lt_u32 s{sPl+2}, 4\ns_cbranch_scc1 {L}')
    sv = list(k.vm)
    k.stamp(5)
    first_loads(k, role)
    drain_post(k, tag, sreg)
    k.stamp(4)
    k(f's_branch L_tail{role}\n{L}:')
    k.vm = sv
    drain_post(k, tag, sreg)
    k.stamp(4)
    if idle: k(f's_cmp_eq_u32 s{sNb}, 7\ns_cbranch_scc1 L_end{role}')
    k(f's_branch L_wait{role}')

def stream(k, role):
    o = k.opt
    DEPTH = 2*o.get('depth', 4)
    assert DEPTH + 2 <= NQ
    hs = halves(role)
    k(f'L_wait{role}:')
    wait_h(k, role)
    k.vm = []
    first_loads(k, role)
    k(f'L_tail{role}:')
    if o.get('prio' + role): k(f's_setprio {o["prio" + role]}')
    def oreads(ko):
        jj, s_ = ko >> 1, ko & 1
        return [f'ds_read_b64_tr_b16 {a(8*ko + 4*n + 2*j2, 2)}, v{vOA + n + (2 if (s_ == 1 and j2 == 1) else 0)} offset:{(28*jj + 16*s_ + 8*j2)*128}' for n in range(2) for j2 in range(2)]
    def writes(tt, n):
        if role == 'P': return [f'ds_write_b128 v{vRW+q}, {v(32*n+16*tt+4*q,4)} offset:{8192 + tt*8192 + n*128}' for q in range(4)]
        return [f'ds_write_b128 v{(vRR if tt else vRW)+q}, {v(32*n+16*tt+4*q,4)} offset:{n*128}' for q in range(4)]
    def mm(x, n):
        e, tt = hs[x]; D = 32*n + 16*tt
        k(f'v_mfma_f32_32x32x16_bf16 {v(D,16)}, {a(8*(e % 14) + 4*n, 4)}, {v(HB + 4*(x % NQ),4)}, {"0" if e == 0 else v(D,16)}')
    k.emit_all(late_setup(role))
    NL = 4 if role == 'S' else 0
    fill = []
    for x in range(len(hs) - NL):
        e, tt = hs[x]
        if e >= 14 or tt == 0: k.wait(f'e{x if e >= 14 else x+1}', extra='lgkmcnt(0)' if x in (0, 28) else '')
        if role == 'P' and x == 0: sync_post(k, 2)
        if role == 'P' and x == 20:
            for i in range(2): k.vmem(f'buffer_load_dwordx4 {v(XR+4*i,4)}, v{vOUT}, {srd(SX)}, s{sMu if i else sRes} offen', 'xr')
        mm(x, 0)
        if role == 'S':
            if x == 8: sync_wait(k, 2, 136)
            if 17 <= x < 25: k.emit_all(oreads(x - 17))
            if x == 36: k('s_nop 7'); fill = writes(0, 0) + writes(0, 1)
        k.emit_all(fill[:1]); fill = fill[1:]
        mm(x, 1)
        if x + DEPTH < len(hs): h_load(k, role, x + DEPTH)
        k.emit_all(fill[:1]); fill = fill[1:]
    if role == 'S':
        assert not fill
        xs = range(len(hs) - NL, len(hs))
        for x in xs:
            k.wait(f'e{x}'); mm(x, 0)
        k('s_waitcnt lgkmcnt(0)\ns_barrier')
        for x in xs: mm(x, 1)
        k.stamp(9)
        k('s_nop 5'); k.emit_all(writes(1, 0))
        k('s_nop 1'); k.emit_all(writes(1, 1))
        k('s_waitcnt lgkmcnt(0)\ns_barrier')
        return
    k.stamp(9)
    k.wait('xr')
    SUM = 64
    for i in range(8): k(f'v_lshlrev_b32 v{SUM+2*i}, 16, v{XR+i}\nv_and_b32 v{SUM+2*i+1}, 0xffff0000, v{XR+i}')
    sync_wait(k, 5, 136)
    for tt in range(2):
        for n in range(2): k.emit_all(writes(tt, n))
    sync_post(k, 3); sync_wait(k, 3, 136)
    def gather(tt, rd):
        for i, (va, im) in enumerate(rd): k(f'ds_read_b128 {v(4*i,4)}, v{va} offset:{im}')
        for p in range(4):
            k(f's_waitcnt lgkmcnt({2*(3-p)})')
            for i in range(8): k(f'v_add_f32 v{SUM+8*tt+i}, v{SUM+8*tt+i}, v{8*p+i}')
    for tt in range(2): gather(tt, [(vRR + 2*(p >> 1) + hf, (p & 1)*XW + 8192 + tt*8192) for p in range(4) for hf in range(2)])
    for tt in range(2):
        k('s_barrier')
        gather(tt, [(vRR + 2*(p >> 1) + hf, (p & 1)*XW) if tt == 0 else (vOA + hf, p*14336) for p in range(4) for hf in range(2)])
        for i in range(4): k(f'v_cvt_pk_bf16_f32 v{80+4*tt+i}, v{SUM+8*tt+2*i}, v{SUM+8*tt+2*i+1}')
        k.vmem(f'buffer_store_dwordx4 {v(80+4*tt,4)}, v{vOUT}, {srd(SOUT)}, s{sMu if tt else sRes} offen {o.get("outfl", "sc1")}', 'out')

def finish(k, role):
    o = k.opt; L = f'L_end{role}'
    k(f'{L}:')
    if o.get('probe'):
        k.stamp(10)
        k('s_waitcnt lgkmcnt(0)')
        if o['probe'][2] == 'rt': k('s_cmp_eq_u32 s98, 0\ns_cselect_b32 s98, s100, s98\ns_sub_u32 s98, s98, s100\ns_lshl_b32 s98, s98, 1')
        else: k('s_cmp_eq_u32 s98, 0\ns_cselect_b32 s98, s96, s98\ns_sub_u32 s98, s98, s96\ns_lshr_b32 s98, s98, 3')
        if o.get('probex') is not None: k(f's_getreg_b32 s3, hwreg(HW_REG_XCC_ID)\ns_and_b32 s3, s3, 7\ns_cmp_eq_u32 s3, {o["probex"]}\ns_cselect_b32 s98, s98, -3000')
        k(f's_add_u32 s98, s98, 3000\n{L}f:\ns_memrealtime s[{sC}:{sC+1}]\ns_waitcnt lgkmcnt(0)\ns_sub_u32 s3, s{sC}, s100\ns_cmp_lt_u32 s3, s98\ns_cbranch_scc1 {L}f')
    if o.get('stamps'):
        k(f'{"s_memrealtime" if o.get("rt") else "s_memtime"} s[{sA}:{sA+1}]\ns_memrealtime s[{sC}:{sC+1}]\ns_waitcnt lgkmcnt(0)')
        k(f's_lshl_b32 s3, s2, 3\ns_add_u32 s3, s3, s{sWave}\ns_add_u32 s3, s3, {0 if role == "S" else 4}\ns_lshl_b32 s3, s3, 6\ns_add_u32 s3, s3, {WS_STAMP}\nv_mov_b32 v40, s3\ns_mov_b64 exec, 1')
        k(f'v_mov_b32 v24, s100\nv_mov_b32 v25, s{sC}')
        for i in range(1, 10): k(f's_sub_u32 s3, s{STAMP0+2*i}, s{STAMP0}\nv_mov_b32 v{25+i}, s3')
        k(f's_sub_u32 s3, s{sA}, s{STAMP0}\nv_mov_b32 v35, s3')
        for q in range(3): k(f'buffer_store_dwordx4 {v(24+4*q,4)}, v40, {srd(SW)}, 0 offen offset:{16*q}')
    k('s_endpgm')
    for t in k.tail: k(t)
    k.tail = []

def ffn3(k, hold, plain=0):
    k(f's_lshl_b32 s{sC}, s{sKap}, 11\ns_add_u32 s{sC}, s{sC}, s{sHo}\ns_add_u32 s{sC2}, s{sC}, 4096')
    q = []
    for u in range(6):
        c, tt = u >> 1, u & 1
        ffn_unit(k, c, tt, (plain >> u) & 1); q.append((c, tt))
        if u + 1 >= hold:
            for c_, t_ in q: h_store(k, c_, t_, sC2 if c_ == 2 else sC, (c_ & 1)*2048 + t_*1024)
            q = []

def drain_post(k, tag, sreg):
    if tag == 'hst' or not k.opt.get('sent'): k.wait(tag)
    post(k, sreg)

def p_release(k):
    k.wait('d6')
    for p in (4, 5, 6): k.emit_all(preads('P', p))
    k.timed.append((k.t + 120, lambda: sync_post(k, 4), 'rel'))

def s_issue(k, ps):
    for p in ps:
        for g in pbatch('S', p): k.emit_all(g)
def s_collect(k):
    k.wait('d6')
    for p in range(1, 7): k.emit_all(preads('S', p))
    sync_post(k, 5)

def path_P(k):
    o = k.opt
    k.reset_bg(); k('L_KVA:'); main_loop(k, 'KV', 'A')
    k(f's_setprio {o.get("prioKA", 1)}\ns_nop 4')
    k.timed.append((k.t + o.get('relK', 600), lambda: p_release(k), 'rel'))
    kv_part(k)
    assert not k.timed
    k('s_setprio 0')
    if o.get('woA', 0):
        sync_wait(k, 1, 0)
        ob = obatch(); nwo = o.get('kwo', 6)
        for g in ob[:nwo]: k.emit_all(g)
        drain_post(k, 'kvst', sF2)
        k.stamp(4)
        for g in ob[nwo:]: k.emit_all(g)
        k('s_branch L_waitP')
    else: open_stream(k, 'P', 'kvst', sF2, False)
    k.reset_bg(); k('L_QF:'); main_loop(k, 'Q', 'F')
    k(f's_setprio {o.get("prioQF", 1)}\ns_nop 4')
    k.timed.append((k.t + o.get('relQ', 100), lambda: p_release(k), 'rel'))
    ffn3(k, o.get('holdQ', 0), o.get('plainQ', 0))
    assert not k.timed
    k.stamp(4)
    k('s_setprio 0')
    drain_post(k, 'hst', sFh)
    k(f's_cmp_eq_u32 s{sNb}, 7\ns_cbranch_scc1 L_endP')
    stream(k, 'P')
    finish(k, 'P')

def path_S(k):
    o = k.opt
    k.reset_bg(); k('L_KVF:'); main_loop(k, 'KV', 'F')
    k(f's_setprio {o.get("prioKF", 0)}\ns_nop 4')
    def more():
        k.wait('d0'); k.emit_all(preads('S', 0))
        sync_wait(k, 4, 96)
        s_issue(k, (2, 3, 4, 5, 6))
        k.stamp(4, 3)
    k.timed.append((k.t + o.get('issK', 200), more, 'iss'))
    ffn3(k, o.get('holdK', 0), o.get('plainK', 0))
    assert not k.timed
    k.stamp(4); k.stamp(5, 3)
    k('s_setprio 0')
    s_collect(k)
    ob = [] if o.get('woA', 0) else obatch()
    nwo = o.get('kwo', 6)
    if ob: sync_wait(k, 1, 0)
    for g in ob[:nwo]: k.emit_all(g)
    drain_post(k, 'hst', sFh); k.stamp(6, 3)
    for g in ob[nwo:]: k.emit_all(g)
    k.stamp(7, 3)
    k('s_branch L_waitS')
    k.reset_bg(); k('L_QA:'); main_loop(k, 'Q', 'A')
    k(f's_setprio 1\ns_add_u32 s{sC}, s{sKap}, 3\ns_lshl_b32 s{sC}, s{sC}, 11\ns_add_u32 s{sC}, s{sC}, s{sHo}\ns_nop 3')
    ob = obatch(); n0 = o.get('qwo0', 4)
    for g in ob[:n0]: k.emit_all(g)
    for tt in range(2): ffn_unit(k, 1, tt, o.get('plainQA', 0))
    k('s_setprio 0')
    for tt in range(2): h_store(k, 1, tt, sC, tt*1024)
    n1 = o.get('qwo1', 8)
    for g in ob[n0:n1]: k.emit_all(g)
    k.wait('d0'); k.emit_all(preads('S', 0))
    sync_wait(k, 4, 96)
    s_issue(k, (2, 3))
    drain_post(k, 'hst', sFh)
    gap = o.get('qgap', 0)
    for g in [g for p in (4, 5, 6) for g in pbatch('S', p)] + ob[n1:]: k.bg.append((gap, g))
    if not gap: k.flush()
    k.stamp(4, 3)
    project(k, 64)
    k('s_nop 9')
    softmaxes(k, QF, plain=o.get('plainQS', 0))
    k.flush()
    s_collect(k)
    if o.get('prioQA', 1): k(f's_setprio {o.get("prioQA", 1)}')
    o_part(k)
    k('s_setprio 0')
    open_stream(k, 'S', 'ost', sF2, True)
    stream(k, 'S')
    finish(k, 'S')

def generate(opt):
    global CST
    CST = opt.get('cst', 128)
    k = K(opt); name = NAME + '_kernel'
    kernel_begin(k.A, name)
    prologue(k)
    path_P(k)
    path_S(k)
    k('L_codeend:')
    txt = k.A.text()
    if opt.get('align', 1):
        import align
        txt = align.align(txt)[0]
    return assemble_file([(name, 256, 512, NLDS)], txt, [kernel_desc(name, 256, accum=144)])

if __name__ == '__main__':
    import json, hazard
    opt = json.loads(sys.argv[2]) if len(sys.argv) > 2 else {}
    txt = generate(opt)
    open(sys.argv[1], 'w').write(txt)
    e = hazard.check(txt)
    print(len(txt), 'bytes of text;', len(e), 'hazards')
```

```python
import sys, struct, math
from collections import deque
from asmgen import *

def f2u(x): return struct.unpack('<I', struct.pack('<f', x))[0]

WS_H    = 0
WS_KVP  = 10 << 20
WS_ST   = 12 << 20
WS_FL   = 13 << 20
CST = 128
WS_CS   = WS_ST + 32768
WS_STAMP = 128 << 20
OOB = 0x40000000
NW = 8
XW = 24576
WB = 98304; WS_ = 20736
L_CS = L_KVF = WB + 57344
L_FLG = L_CS + 5120
L_PHI = 163840 - 2048
SP = 208
NLDS = 163840

sWi, sP = 0, 1
sA, sA2, sB, sB2, sC, sC2 = 4, 5, 6, 7, 8, 9
sMx, sMa, sMf = 10, 11, 12
sT0, sT1, sT2 = 13, 14, 15
sFh, sF2 = 16, 17
sHm = 18
sG2, sNb, sDb, sHo = 20, 21, 22, 23
sSpin, sKap, sWave, sRb = 24, 25, 26, 27
SX, SQ, SG, SU, SD, SO, SW, SOUT, SDBG, SPH, SGU = 28, 32, 36, 40, 44, 48, 52, 56, 60, 64, 68
sG, sU, sJ, sCg, sSt, sXb, sQb, sFb = 72, 73, 74, 75, 76, 77, 78, 79
sMu, sH0, sFl, sRes = 32, 33, 34, 35
sH, sOb, sKb, sKf = 36, 37, 38, 39
sWo, sWg = 40, 41
sPl = 68
sOne, sRo = 42, 43
STAMP0 = 80

def srd(n): return f's[{n}:{n+3}]'
def pr(r): return f'v[{r}:{r+1}]'
def items(t): return [x.strip().replace('|', '\n') for x in t.strip().split('\n')]

TRANS = ('v_exp_f32', 'v_rcp_f32', 'v_rsq_f32')
def cost(line):
    op = line.split()[0]
    if op.endswith(':') or op.startswith('.') or op.startswith(';'): return 0
    if op.startswith('v_mfma'): return 32 if '32x32' in op else 16
    if op in TRANS: return 8
    if op == 's_nop': return 4*(int(line.split()[1]) + 1)
    if op == 'ds_write_b128' or op.startswith('buffer_'): return 16
    return 4

class K:
    def __init__(self, opt):
        self.A = Asm(); self.vm = []; self.opt = opt
        self.t = 0; self.credit = 0; self.tail = []
        self.reset_bg()
    def reset_bg(self):
        self.bg = deque(); self.timed = []; self.lastbg = -10**9; self.inbg = False; self.done = {}
    def raw(self, t):
        for l in t.strip('\n').split('\n'):
            l = l.strip()
            if not l: continue
            self.A(l); c = cost(l)
            if l.startswith('v_mfma'): self.t += c; self.credit = c - 8
            else:
                u = min(c, self.credit); self.credit -= u; self.t += c - u
    def __call__(self, t): self.raw(t)
    def f(self, t):
        for l in t.strip('\n').split('\n'):
            l = l.strip()
            if l: self.raw(l); self.tick()
    def run_timed(self, force=None):
        for it in [x for x in self.timed if x[0] <= self.t or force == 'all' or x[2] == force]:
            self.timed.remove(it); it[1]()
    def pop_bg(self):
        g = self.bg.popleft()
        for it in g[1]: self.emit(it)
        self.lastbg = self.t
    def tick(self):
        if self.inbg: return
        self.inbg = True
        self.run_timed()
        if self.bg and self.t - self.lastbg >= self.bg[0][0]: self.pop_bg()
        self.inbg = False
    def flush(self):
        self.inbg = True
        while self.bg:
            self.pop_bg(); self.t += 40; self.run_timed()
        self.inbg = False
    def vmem(self, t, tag):
        if tag in self.opt.get('x_skip', []): return
        self.raw(t); self.vm.append(tag)
    def wait(self, *tags, extra=''):
        last = max((i for i, x in enumerate(self.vm) if x in tags), default=None)
        if last is None:
            if extra: self.raw(f's_waitcnt {extra}')
            return
        n = len(self.vm) - 1 - last
        assert n <= 63, n
        self.raw(f's_waitcnt vmcnt({n}) {extra}')
        self.vm = self.vm[len(self.vm)-n:] if n else []
    def stamp(self, i, grp=1):
        pb = self.opt.get('probe')
        if pb:
            if i == 0: self.A('s_memtime s[96:97]\ns_mov_b32 s98, 0')
            if [i, grp] == pb[:2]: self.A('s_memrealtime s[98:99]' if pb[2] == 'rt' else 's_memtime s[98:99]')
        if self.opt.get('stamps') and (i <= 2 or self.opt.get('stamps') == grp):
            self.A(f'{"s_memrealtime" if self.opt.get("rt") else "s_memtime"} s[{STAMP0+2*i}:{STAMP0+2*i+1}]')
    def emit(self, item):
        if callable(item): item()
        elif isinstance(item, tuple): self.vmem(*item)
        else: self.raw(item)
    def emit_all(self, its):
        for it in its: self.emit(it)

vXA = 96
vFA, vAP, vFP, vZF = 98, 101, 102, 105
vAA, vF3, vCA, vXP = 98, 100, 101, 104
vS0, vSV = 100, 84
vL16, vF0, vOne, vPoll, vPA = 112, 113, 114, 115, 116
vDA, vDP, vU0 = 117, 119, 123
vST = (124, 126, 108, 110)
vP2, vP3 = 128, 132
vMB = vT = 136
vCR, vWP = 64, 88
def acc(c, tt): return 32*c + 16*tt
def accD(c, mt, tq): return 32*c + 16*(tq >> 1) + 8*mt + 4*(tq & 1)
def kap(tq): return vP2 + 1 + 2*tq
def nT(role): return 2 if role == 'A' else 3
def fX(K, tq): return 80 + 16*K + 4*tq
def fW(role, b, i): return 80 - (2 - b)*4*nT(role) + 4*i
def mtiles(role, half):
    return [(c, half) for c in range(3)] if role == 'F' else [(half, 0), (half, 1)]
def tile_id(typ, role, c):
    if typ == 'KV': return c if role == 'A' else 2 + c
    return (0, 4)[c] if role == 'A' else 1 + c

def post(k, sreg):
    k(f's_mov_b32 s{sOne}, 1\ns_atomic_add s{sOne}, s[{SW}:{SW+1}], s{sreg}')

def spin(k, name, load, conds, first_loaded=False):
    L = k.A.label(name)
    k(f's_mov_b32 s{sSpin}, 0')
    if first_loaded: k(f's_branch {L}c')
    k(f'{L}:\ns_add_u32 s{sSpin}, s{sSpin}, 1\ns_cmp_gt_u32 s{sSpin}, {k.opt.get("spin", 200000)}\ns_cbranch_scc1 {L}x\n' + (f's_sleep {k.opt["sleep"]}\n' if k.opt.get('sleep') else '') + load)
    k(f'{L}c:\ns_waitcnt lgkmcnt(0)')
    for r, n in conds: k(f's_cmp_lt_u32 s{r}, {n}\ns_cbranch_scc1 {L}')
    k(f'{L}x:')

def sync_post(k, n):
    k(f's_lshl_b32 s3, s{sWave}, 2\ns_add_u32 s3, s3, {L_FLG + 16*n}\nv_mov_b32 v{vPA}, s3\ns_mov_b64 exec, 1\ns_waitcnt lgkmcnt(0)\nds_write_b32 v{vPA}, v{vOne}\ns_mov_b64 exec, -1')
def sync_wait(k, n, R, two=False):
    L = k.A.label('L_sy')
    k(f'v_mov_b32 v{vPA}, {L_FLG + 16*n}\n{L}:\nds_read_b128 {v(R,4)}, v{vPA}')
    if two: k(f'ds_read_b128 {v(R+4,4)}, v{vPA} offset:16')
    k(f's_waitcnt lgkmcnt(0)\nv_min3_u32 v{R}, v{R}, v{R+1}, v{R+2}')
    if two: k(f'v_min3_u32 v{R}, v{R}, v{R+4}, v{R+5}\nv_min3_u32 v{R}, v{R}, v{R+6}, v{R+7}')
    k(f'v_min_u32 v{R}, v{R}, v{R+3}\nv_cmp_eq_u32 vcc, 0, v{R}\ns_cbranch_vccnz {L}')

def next_stage(first):
    return [] if first else [f's_add_u32 s{sSt}, s{sSt}, 1', f's_cmp_eq_u32 s{sSt}, 7', f's_cselect_b32 s{sSt}, 0, s{sSt}']

def xbatch(n_, slot):
    tag = f'b{n_}'; g = []
    for n in range(8):
        p = []
        if n == 0: p = next_stage(n_ == 0) + [f's_add_u32 m0, s{sMx}, {slot*8192}', f's_lshl_b32 s{sA}, s{sSt}, 7', f's_add_u32 s{sA}, s{sA}, s{sXb}']
        if n == 4: p = [f's_add_u32 m0, s{sMx}, {slot*8192+4096}', f's_add_u32 s{sA}, s{sA}, {32*896}']
        g.append(p + [(f'buffer_load_dwordx4 v{vXP+(n&3)}, {srd(SX)}, s{sA} offen offset:{(n&3)*1024} lds', tag)])
    return g

def wbatch(typ, n_, slot):
    tag = f'b{n_}'
    g = [next_stage(n_ == 0) + [f's_mul_i32 s{sB}, s{sSt}, {64*2688}', f's_add_u32 s{sB}, s{sB}, s{sQb}', f's_add_u32 m0, s{sMa}, {slot*WS_}',
         f's_mul_i32 s{sC}, s{sSt}, {64*3584}', (f'buffer_load_dwordx4 v{vAP}, {srd(SQ)}, s{sB} offen lds', tag)]]
    if typ == 'KV':
        g.append([f's_add_u32 m0, s{sMa}, {slot*WS_+4096}', f's_add_u32 s{sB2}, s{sB}, 896', (f'buffer_load_dwordx4 v{vAP}, {srd(SQ)}, s{sB2} offen lds', tag)])
        g.append([f's_add_u32 m0, s{sMf}, {slot*WS_}', f's_add_u32 s{sC}, s{sC}, s{sFb}', (f'buffer_load_dwordx4 v{vFP}, {srd(SGU)}, s{sC} offen lds', tag)])
        g.append([(f'buffer_load_dwordx4 v{vFP+1}, {srd(SGU)}, s{sC} offen offset:1024 lds', tag)])
        g.append([(f'buffer_load_dwordx4 v{vFP+2}, {srd(SGU)}, s{sC} offen offset:2048 lds', tag)])
    else:
        g.append([f's_add_u32 m0, s{sMf}, {slot*WS_}', f's_add_u32 s{sC}, s{sC}, s{sFb}', (f'buffer_load_dwordx4 v{vFP}, {srd(SG)}, s{sC} offen lds', tag)])
        g.append([f's_add_u32 s{sC2}, s{sC}, {8*3584-1024}', (f'buffer_load_dwordx4 v{vFP+1}, {srd(SG)}, s{sC2} offen offset:1024 lds', tag)])
        g.append([f's_add_u32 m0, s{sMf}, {slot*WS_+8192}', 's_nop 0', (f'buffer_load_dwordx4 v{vFP}, {srd(SU)}, s{sC} offen lds', tag)])
        g.append([(f'buffer_load_dwordx4 v{vFP+1}, {srd(SU)}, s{sC2} offen offset:1024 lds', tag)])
    return g

PSLOT = {'P': [8192 + 4096*j for j in (0, 1, 2, 3, 0, 1, 2)], 'S': [0, 4096, 20480, 8192, 12288, 16384, 0]}
def r2(typ, role): return 'P' if (typ == 'KV') == (role == 'A') else 'S'
def pbatch(role, p):
    g = []
    for n in range(4):
        pre = [f's_bfe_u32 s{sA}, s{sRo}, {hex(0x40000 + 4*p)}', f's_mul_i32 s{sA}, s{sA}, {32*896}', f's_add_u32 m0, s{sMx}, {PSLOT[role][p]}', f's_add_u32 s{sA}, s{sA}, s{sDb}'] if n == 0 else []
        g.append(pre + [(f'buffer_load_dwordx4 v{vDP+n}, {srd(SD)}, s{sA} offen offset:{n*1024} lds', f'd{p}')])
    return g
def preads(role, p):
    return [f'ds_read_b64_tr_b16 a[{16*p+8*kl+4*n+2*j2}:{16*p+8*kl+4*n+2*j2+1}], v{vDA+n} offset:{PSLOT[role][p] + (16*kl + 4*j2)*128}'
            for kl in range(2) for n in range(2) for j2 in range(2)]
def obatch():
    g = []
    for n in range(14):
        p = []
        if n % 4 == 0: p = [f's_add_u32 m0, s{sWo}, {n*1024}', f's_add_u32 s{sA2}, s{sWg}, {(n >> 2)*32*896}']
        g.append(p + [(f'buffer_load_dwordx4 v{vDP+(n&3)}, {srd(SO)}, s{sA2} offen offset:{(n&3)*1024} lds', 'wo')])
    return g

def wimm(typ, ffn, mt, K, j2):
    if not ffn: return (32*K + 4*j2)*64
    return (32*K + 8*j2)*96 + mt*6272 if typ == 'KV' else (32*K + 4*j2)*128 + mt*8192
def wread(typ, role, c, mt, slot, K, j2):
    if role == 'A':
        if typ == 'KV' or c == 0: return vAA + mt, slot*WS_ + c*4096 + wimm(typ, 0, mt, K, j2)
        return vF3, slot*WS_ + wimm(typ, 1, mt, K, j2)
    if typ == 'KV': return vFA, slot*WS_ + wimm(typ, 1, mt, K, j2) + c*32
    return vFA + c, slot*WS_ + wimm(typ, 1, mt, K, j2)

def w_reads(typ, role, slot, ks):
    r = []
    for i, (c, mt) in enumerate(mtiles(role, ks & 1)):
        for j2 in range(2):
            va, im = wread(typ, role, c, mt, slot, ks >> 1, j2)
            r.append(f'ds_read_b64_tr_b16 {a(fW(role,ks&1,i)+2*j2,2)}, v{va} offset:{im}')
    return r
def x_reads(slot, K, tqs): return [f'ds_read_b128 {a(fX(K,tq),4)}, v{vXA+K} offset:{slot*8192 + tq*2048}' for tq in tqs]
def first_reads(typ, role, slot):
    w = w_reads(typ, role, slot, 0); x = x_reads(slot, 0, range(4))
    return w[:2] + x + w[2:]

def prologue(k):
    o = k.opt
    k(f's_cmp_lt_u32 s2, 256\ns_cbranch_scc1 L_go\ns_endpgm\nL_go:')
    k.stamp(0)
    if o.get('stamps') or o.get('fixdur') or o.get('probe'): k('s_memrealtime s[100:101]')
    for n, off in ((SX, 0), (SQ, 8), (SG, 40), (SU, 48)): k(f's_load_dwordx2 s[{n}:{n+1}], s[0:1], {off}')
    k(f'v_lshrrev_b32 v1, 6, v0\ns_getpc_b64 s[20:21]\nL_pc:\nv_readfirstlane_b32 s{sT2}, v1')
    k(f's_lshr_b32 s{sCg}, s2, 3\nv_and_b32 v2, 0x1e0, v0\nv_add_u32 v2, s{sCg}, v2\nv_lshlrev_b32 v2, 7, v2\nv_min_u32 v2, L_codeend-L_pc-4, v2')
    k(f's_mov_b32 exec_lo, 1\ns_mov_b32 exec_hi, 1\nglobal_load_dword a0, v2, s[20:21]\ns_mov_b64 exec, -1')
    k(f's_and_b32 s{sWave}, s{sT2}, 3')
    for n, off in ((SW, 80), (SD, 56), (SO, 24), (SDBG, 72), (SPH, 16), (SOUT, 64)): k(f's_load_dwordx2 s[{n}:{n+1}], s[0:1], {off}')
    k(f'v_and_b32 v0, 63, v0\ns_and_b32 s{sG}, s2, 3')

    k(f's_and_b32 s{sRb}, s{sCg}, 3\ns_and_b32 s3, s2, 4\ns_or_b32 s{sRb}, s{sRb}, s3\ns_lshr_b32 s{sU}, s{sCg}, 2')
    k(f's_lshl_b32 s3, s{sRb}, 2\ns_lshr_b32 s{sSt}, {hex(sum(((o.get("rot", 2)*r) % 7) << (4*r) for r in range(8)))}, s3\ns_and_b32 s{sSt}, s{sSt}, 7')
    k(f's_lshr_b32 s{sJ}, s{sU}, 1\ns_lshl_b32 s3, s{sG}, 2\ns_or_b32 s{sJ}, s{sJ}, s3\ns_mul_i32 s{sKap}, s{sG}, 28')
    k(f'v_lshrrev_b32 v1, 3, v0\nv_and_b32 v2, 7, v0\nv_lshlrev_b32 v{vL16}, 4, v0\nv_and_b32 v14, 3, v0')
    k(f's_lshl_b32 s{sHo}, s{sRb}, 2\ns_add_u32 s{sHo}, s{sHo}, s{sWave}\ns_mul_i32 s{sMx}, s{sWave}, {XW}')
    for n, size in ((SX, 2048*896), (SQ, 448*2688), (SG, 448*3584), (SU, 448*3584), (SGU, 448*3584)):
        k(f's_mov_b32 s{n+2}, {size}\ns_mov_b32 s{n+3}, 0x20000')
    k(f's_cmp_ge_u32 s{sT2}, 4\ns_cbranch_scc1 L_proF')
    k(f'''v_mul_u32_u24 v3, 896, v1
    v_lshrrev_b32 v4, 1, v1
    v_xor_b32 v5, v2, v4
    v_lshl_add_u32 v{vXP}, v5, 4, v3
    v_xor_b32 v5, 4, v5
    v_lshl_add_u32 v{vXP+1}, v5, 4, v3
    v_add_u32 v{vXP+1}, 6144, v{vXP+1}
    v_add_u32 v{vXP+2}, {2*6144}, v{vXP}
    v_add_u32 v{vXP+3}, {2*6144}, v{vXP+1}
    s_mul_i32 s{sXb}, s{sHo}, {64*896}
    s_waitcnt lgkmcnt(0)''')
    k.stamp(3, 5)
    k(f's_lshl_b32 s3, s{sWave}, 5\ns_or_b32 s{sT1}, s3, s2\ns_cmp_ge_u32 s{sT1}, 32\ns_cbranch_scc1 L_nz')
    k(f's_mul_i32 s3, s2, {16*CST}\ns_add_u32 s3, s3, {WS_FL}\nv_mul_u32_u24 v6, {CST}, v0\nv_add_u32 v6, s3, v6\nv_mov_b32 v7, 0\ns_mov_b64 exec, 0xffff\nglobal_store_dword v6, v7, s[{SW}:{SW+1}] sc1\ns_mov_b64 exec, -1\nL_nz:')
    for g in xbatch(0, 0): k.emit_all(g)
    k.stamp(4, 5)
    lane_setup(k)
    k(f's_bitcmp1_b32 s{sU}, 0\ns_cbranch_scc1 L_QA\ns_branch L_KVA')
    k('L_proF:')
    k(f'''v_lshrrev_b32 v6, 2, v0
    v_mul_u32_u24 v6, 2688, v6
    v_lshrrev_b32 v8, 4, v0
    v_and_b32 v8, 2, v8
    v_xor_b32 v8, v8, v14
    v_lshlrev_b32 v8, 4, v8
    v_min_u32 v8, 40, v8
    v_add_u32 v{vAP}, v6, v8
    s_mul_i32 s{sQb}, s{sWave}, {16*2688}
    s_mul_i32 s3, s{sJ}, 56
    s_add_u32 s{sQb}, s{sQb}, s3
    s_lshl_b32 s{sMa}, s{sWave}, 10
    s_add_u32 s{sMa}, s{sMa}, {WB}''')
    k(f's_bitcmp1_b32 s{sU}, 0\ns_cbranch_scc1 L_proFQ')
    for typ in ('KV', 'Q'):
        if typ == 'Q': k('L_proFQ:')
        kap_setup(k, typ); dma_setup(k, typ)
        k('s_waitcnt lgkmcnt(0)')
        if typ == 'KV': k(f's_cmp_lt_u32 s{sWave}, 2\ns_cselect_b32 s{SGU}, s{SG}, s{SU}\ns_cselect_b32 s{SGU+1}, s{SG+1}, s{SU+1}')
        k.stamp(3, 5)
        for g in wbatch(typ, 0, 0): k.emit_all(g)
        k.stamp(4, 5)
        lane_setup(k)
        k(f's_branch L_{typ}F')

def kap_setup(k, typ):
    if typ == 'KV':
        tbl = 0
        for j in range(16): tbl |= ([0,1,3,2][j & 3] if j < 8 else [1,0,2,3][j & 3]) << (2*j)
        k(f's_lshl_b32 s3, s{sJ}, 1\ns_lshr_b32 s3, {hex(tbl)}, s3\ns_and_b32 s3, s3, 3\ns_mul_i32 s3, s3, 3\ns_add_u32 s{sKap}, s{sKap}, s3\ns_add_u32 s{sKap}, s{sKap}, 16')
    else:
        k(f's_and_b32 s3, s{sJ}, 3\ns_lshl_b32 s3, s3, 2\ns_add_u32 s{sKap}, s{sKap}, s3')

def dma_setup(k, typ):
    if typ == 'KV':
        k(f's_add_u32 s{sQb}, s{sQb}, 896')
        k(f's_and_b32 s3, s{sWave}, 1\ns_mul_i32 s{sFb}, s3, {32*3584}\ns_lshl_b32 s{sT0}, s{sKap}, 5\ns_add_u32 s{sFb}, s{sFb}, s{sT0}')
        k(f's_mul_i32 s{sMf}, s3, 3072\ns_lshr_b32 s3, s{sWave}, 1\ns_mul_i32 s3, s3, 6272\ns_add_u32 s{sMf}, s{sMf}, s3\ns_add_u32 s{sMf}, s{sMf}, {WB+8192}')
        k(f's_movk_i32 s3, {3584-96}\ns_movk_i32 s{sT0}, 3584')
        for n in range(3):
            k(f'v_add_u32 v12, {64*n}, v0\nv_mul_u32_u24 v19, 171, v12\nv_lshrrev_b32 v19, 10, v19\nv_mad_u32_u24 v{vFP+n}, v19, s3, v{vL16}')
            k(f'v_and_b32 v12, 4, v19\nv_lshrrev_b32 v19, 1, v19\nv_and_b32 v19, 4, v19\nv_sub_u32 v12, v12, v19\nv_mad_i32_i24 v{vFP+n}, v12, s{sT0}, v{vFP+n}')
    else:
        k(f's_mul_i32 s{sFb}, s{sWave}, {16*3584}\ns_lshl_b32 s{sT0}, s{sKap}, 5\ns_add_u32 s{sFb}, s{sFb}, s{sT0}')
        k(f's_lshl_b32 s{sMf}, s{sWave}, 11\ns_add_u32 s{sMf}, s{sMf}, {WB+4096}')
        k(f'''v_and_b32 v12, 2, v1
        v_xor_b32 v12, v2, v12
        v_mul_u32_u24 v19, 3584, v1
        v_lshl_add_u32 v{vFP}, v12, 4, v19
        v_xor_b32 v12, 4, v12
        v_lshl_add_u32 v{vFP+1}, v12, 4, v19''')

def lane_setup(k):
    k(f'''v_and_b32 v9, 15, v0
    v_lshrrev_b32 v10, 4, v0
    v_lshrrev_b32 v18, 1, v9
    v_lshlrev_b32 v12, 7, v9
    v_add_u32 v12, s{sMx}, v12
    v_xor_b32 v13, v10, v18
    v_lshl_add_u32 v{vXA}, v13, 4, v12
    v_xor_b32 v{vXA+1}, 64, v{vXA}
    v_bfe_u32 v13, v0, 2, 2
    v_and_b32 v15, 1, v10
    v_lshl_add_u32 v16, v10, 3, v13''')

def read_setup(k, typ, role):
    if typ == 'KV':
        k(f'v_lshlrev_b32 v19, 2, v15\nv_sub_u32 v19, v16, v19\nv_mul_u32_u24 v19, 96, v19\nv_lshl_add_u32 v19, v14, 3, v19')
        if role == 'F': k(f'v_add_u32 v{vFA}, {WB+8192}, v19')
        else: k(f's_min_u32 s3, s{sWave}, 2\ns_lshl_b32 s3, s3, 5\ns_add_u32 s3, s3, {WB+8192}\nv_add_u32 v{vCA}, s3, v19')
    else:
        k(f'v_lshlrev_b32 v19, 7, v16\nv_lshl_add_u32 v19, v14, 3, v19\nv_add_u32 v19, {WB+4096}, v19\nv_lshrrev_b32 v20, 1, v13\nv_lshl_add_u32 v20, v15, 1, v20')
        if role == 'F':
            for seg in range(3): k(f'v_xor_b32 v12, {seg}, v20\nv_lshl_add_u32 v{vFA+seg}, v12, 5, v19')
        else: k(f'v_xor_b32 v12, 3, v20\nv_lshl_add_u32 v{vF3}, v12, 5, v19\nv_xor_b32 v12, s{sWave}, v20\nv_lshl_add_u32 v{vCA}, v12, 5, v19')
    if role == 'A':
        k(f'''v_lshlrev_b32 v19, 6, v16
        v_lshl_add_u32 v19, v15, 5, v19
        v_add_u32 v19, {WB}, v19
        v_lshl_add_u32 v{vAA}, v14, 3, v19
        v_lshrrev_b32 v18, 1, v14
        v_xor_b32 v18, v18, v14
        v_xor_b32 v19, 32, v19
        v_lshl_add_u32 v{vAA+1}, v18, 3, v19''')
        k(f's_and_b32 s3, s{sWave}, {1 if typ == "KV" else 0}\ns_lshl_b32 s3, s3, 12\nv_add_u32 v{vCA+1}, s3, v{vAA}\nv_add_u32 v{vCA+2}, s3, v{vAA+1}')
        kap_setup(k, typ)
        k(f's_lshl_b32 s{sCg}, s{sG}, 3\ns_or_b32 s{sCg}, s{sCg}, s{sU}')
        k(f'v_mov_b32 v20, 0\nv_lshrrev_b32 v19, 2, v{vL16}\nv_add_u32 v19, {L_FLG}, v19\nds_write_b32 v19, v20')

def flag_addr_items(typ, role):
    return items(f'''s_mov_b32 s{SW+2}, {1 << 28}
    s_mov_b32 s{SW+3}, 0x20000
    s_lshl_b32 s{sFh}, s{sHo}, 2
    s_add_u32 s{sFh}, s{sFh}, s{sG}
    s_mul_i32 s{sFh}, s{sFh}, {4*CST}
    s_add_u32 s{sFh}, s{sFh}, {WS_FL + (CST if (typ, role) == ('KV', 'F') else 0)}
    s_mul_i32 s{sHo}, s{sHo}, {144*2048}
    v_mov_b32 v{vPoll}, {OOB}
    v_mov_b32 v{vOne}, 1''')

vZ = 124
vCSt, vStSt = 108, 110
def cs_reads(typ):
    return [f'ds_read_b64_tr_b16 {pr(vCR+16*r+8*mt+4*K+2*j2)}, v{vCA + (1+mt if r else 0)} offset:{wimm(typ, 1-r, mt, K, j2)}'
            for r in range(2) for mt in range(2) for K in range(2) for j2 in range(2)]

def srow_items(k):
    l, t, h, z, oob = 124, 125, 126, 109, vPoll
    k.srow = [(f'buffer_load_dwordx4 {v(vMB+4*i,4)}, v{z}, {srd(SX)}, s{sT1} offen offset:{448*i}', 'srow') for i in range(2)]
    return items(f'''v_lshrrev_b32 v{l}, 4, v{vL16}
    v_and_b32 v{t}, 31, v{l}
    v_lshrrev_b32 v{h}, 5, v{l}
    s_lshl_b32 s{sT2}, s{sRb}, 2
    s_add_u32 s{sT2}, s{sT2}, s{sG}
    s_lshl_b32 s{sT2}, s{sT2}, 3
    s_add_u32 s{sT2}, s{sT2}, s{sU}
    s_lshl_b32 s{sT2}, s{sT2}, 2
    s_add_u32 s{sT2}, s{sT2}, s{sWave}
    s_mul_i32 s{sT1}, s{sT2}, {2*896}
    v_mul_u32_u24 v{z}, 896, v{h}
    v_lshl_add_u32 v{z}, v{t}, 4, v{z}
    v_cmp_lt_u32 vcc, 27, v{t}|s_and_b32 s{sB}, s{sT2}, 7|s_lshl_b32 s{sB}, s{sB}, 6|v_cndmask_b32 v{z}, v{z}, v{oob}, vcc
    v_cmp_eq_u32 vcc, 0, v{t}|v_lshlrev_b32 v{h}, 5, v{h}|s_and_b32 s3, s{sT2}, 24|v_cndmask_b32 v{vStSt}, v{oob}, v{h}, vcc|s_add_u32 s{sB}, s{sB}, s3
    s_lshr_b32 s{sT2}, s{sT2}, 5
    s_lshl_b32 s{sT2}, s{sT2}, 9
    s_add_u32 s{sT2}, s{sT2}, s{sB}
    s_add_u32 s{sT2}, s{sT2}, {WS_ST}''')

def init_items(k, typ):
    l, t, z1 = vZ, vZ+1, vZ+4
    it = flag_addr_items(typ, 'A') + items(f'''v_lshrrev_b32 v{l}, 4, v{vL16}
    v_and_b32 v{t}, 31, v{l}''')
    if typ == 'KV':
        it += items(f'''s_lshl_b32 s{sF2}, s{sJ}, 2
        s_add_u32 s{sF2}, s{sF2}, s{sWave}
        s_andn2_b32 s3, s{sF2}, 1|s_add_u32 s{sF2}, s{sF2}, s3
        s_mul_i32 s{sF2}, s{sF2}, {4*CST}
        s_add_u32 s{sF2}, s{sF2}, {WS_FL + 11*CST}
        s_lshl_b32 s{sP}, s{sJ}, 2
        s_add_u32 s{sP}, s{sP}, s{sWave}
        s_lshl_b32 s{sP}, s{sP}, 3
        s_add_u32 s{sP}, s{sP}, s{sRb}
        s_lshl_b32 s{sP}, s{sP}, 10
        s_add_u32 s{sP}, s{sP}, {WS_KVP}''')
    else:
        it += items(f'''s_add_u32 s{sF2}, s{sFh}, {2*CST}
        s_lshl_b32 s{sP}, s{sJ}, 12
        s_add_u32 s{sP}, s{sP}, s{sHo}
        s_add_u32 s{sP}, s{sP}, {112*2048}''')
    it += items(f'''s_lshl_b32 s{sT0}, s{sCg}, 3
    s_add_u32 s{sT0}, s{sT0}, s{sRb}
    s_mul_i32 s{sT0}, s{sT0}, 640
    s_add_u32 s{sT0}, s{sT0}, {WS_CS}
    v_lshl_add_u32 v{vCSt}, v{t}, 2, s{sT0}''')
    if typ == 'KV':
        it += items(f'''s_add_u32 s3, s{sWave}, 2|s_lshl_b32 s3, s3, 7|s_cmp_lt_u32 s{sWave}, 3|s_cselect_b32 s3, s3, {OOB}|v_mov_b32 v{z1}, s3
        s_lshl_b32 s3, s{sWave}, 7|s_cmp_lt_u32 s{sWave}, 2|s_cselect_b32 s3, s3, {OOB}|v_mov_b32 v{t}, s3''')
    else:
        it += items(f'''s_add_u32 s3, s{sWave}, 1|s_lshl_b32 s3, s3, 7|v_mov_b32 v{z1}, s3
        s_cmp_lt_u32 s{sWave}, 1|s_cselect_b32 s3, 0, {OOB}|v_mov_b32 v{t}, s3''')
    it += items(f'''s_mov_b32 s{sHm}, 0
    s_mov_b32 s{sHm+1}, -1
    v_cndmask_b32 v{z1}, v{z1}, v{t}, s[{sHm}:{sHm+1}]
    v_add_u32 v{vCSt}, v{vCSt}, v{z1}''')
    return it

def cs_items(k):
    one, a0, a1 = 132, 130, 131
    it = [f'v_mov_b32 v{one+i}, 0x3f803f80' for i in range(4)]
    it.append('s_nop 1\n' + '\n'.join(f'v_mfma_f32_16x16x32_bf16 {a(16+4*q,4)}, {v(one,4)}, {v(vCR+8*q+4*K,4)}, {"0" if K == 0 else a(16+4*q,4)}' for K in range(2) for q in range(4)))
    it2 = [f'v_accvgpr_read_b32 v{a0}, a16'] + [f'v_accvgpr_read_b32 v{one+q}, a{16+4*q}' for q in range(1, 4)]
    it2.append(f's_cmp_eq_u32 s{sRb}, 7\ns_cselect_b32 s{sT0}, 0, -1')
    it2 += [f's_nop 1\nv_mov_b32_dpp v{a0}, v{one+q} quad_perm:[0,1,2,3] row_mask:{1 << q} bank_mask:0xf' for q in range(1, 4)]
    it2.append(f'v_and_b32 v{a1}, s{sT0}, v{a0}')
    return it, it2 + [(f'buffer_store_dword v{a1}, v{vCSt}, {srd(SW)}, 0 offen sc1', 'csst')]

def stats_items(k):
    X = vMB; Lo = 128; s1, s0, r1, t = 124, 125, 126, 127
    it = [lambda: k.wait('srow')]
    for i in range(8): it += [f'v_lshlrev_b32 v{Lo+i}, 16, v{X+i}', f'v_and_b32 v{X+i}, 0xffff0000, v{X+i}']
    it += [f'v_add_f32 v{s0}, v{Lo}, v{X}', f'v_add_f32 v{s1}, v{Lo+1}, v{X+1}']
    for i in range(2, 8): it += [f'v_add_f32 v{s0}, v{s0}, v{Lo+i}', f'v_add_f32 v{s1}, v{s1}, v{X+i}']
    def red(r):
        o_ = []
        for m in ('quad_perm:[1,0,3,2]', 'quad_perm:[2,3,0,1]', 'row_half_mirror', 'row_mirror'):
            o_.append(f's_nop 1\nv_add_f32_dpp v{r}, v{r}, v{r} {m} row_mask:0xf bank_mask:0xf')
        return o_ + [f'v_mov_b32 v{t}, v{r}', f's_nop 1\nv_permlane16_swap_b32 v{r}, v{t}', f'v_add_f32 v{r}, v{r}, v{t}']
    it += [f'v_add_f32 v{s0}, v{s0}, v{s1}'] + red(s0) + [f'v_mul_f32 v{s0}, {hex(f2u(-1.0/448))}, v{s0}']
    for i in range(8): it += [f'v_add_f32 v{Lo+i}, v{Lo+i}, v{s0}', f'v_add_f32 v{X+i}, v{X+i}, v{s0}']
    it += [f'v_mul_f32 v{s1}, v{Lo}, v{Lo}', f'v_mul_f32 v{r1}, v{X}, v{X}']
    for i in range(1, 8): it += [f'v_fmac_f32 v{s1}, v{Lo+i}, v{Lo+i}', f'v_fmac_f32 v{r1}, v{X+i}, v{X+i}']
    it += ['s_mov_b32 vcc_lo, 0xf0000000', 's_mov_b32 vcc_hi, 0xf0000000', f'v_add_f32 v{r1}, v{r1}, v{s1}', f'v_cndmask_b32 v{r1}, v{r1}, 0, vcc']
    it += red(r1) + [f'v_mov_b32 v{s1}, {hex(f2u(1e-5))}', f'v_fmac_f32 v{s1}, {hex(f2u(1.0/448))}, v{r1}']
    return it + [(f'buffer_store_dwordx2 v[{s1}:{s0}], v{vStSt}, {srd(SW)}, s{sT2} offen sc1', 'stst')]

def w2_addr_items(role, Z):
    l, a_, b_, c_, d_ = Z, Z+1, Z+2, Z+3, Z+4
    it = []
    for n, size in ((SD, 1792*896), (SO, 448*896), (SOUT, 2048*896)): it += [f's_mov_b32 s{n+2}, {size}', f's_mov_b32 s{n+3}, 0x20000']
    it += items(f'''s_and_b32 s{sG2}, s2, 7
    s_lshl_b32 s{sG2}, s{sG2}, 2
    s_bfe_u32 s{sNb}, s2, 0x20003
    s_or_b32 s{sG2}, s{sG2}, s{sNb}
    s_lshr_b32 s{sNb}, s2, 5
    s_lshl_b32 s{sDb}, s{sNb}, 7
    s_mul_i32 s3, s{sWave}, {448*896}|s_add_u32 s{sDb}, s{sDb}, s3
    v_lshrrev_b32 v{l}, 4, v{vL16}
    v_lshrrev_b32 v{a_}, 3, v{l}
    v_mul_u32_u24 v{b_}, 896, v{a_}
    v_and_b32 v{a_}, 2, v{a_}
    v_lshlrev_b32 v{a_}, 1, v{a_}
    v_and_b32 v{c_}, 7, v{l}
    v_xor_b32 v{a_}, v{a_}, v{c_}
    v_lshl_add_u32 v{vDP}, v{a_}, 4, v{b_}
    s_cmp_eq_u32 s{sNb}, 7|s_cselect_b32 s3, {OOB}, 0|v_add_u32 v{vDP}, s3, v{vDP}
    v_add_u32 v{vDP+1}, 6144, v{vDP}
    v_add_u32 v{vDP+2}, {2*6144}, v{vDP}
    v_add_u32 v{vDP+3}, {3*6144}, v{vDP}
    v_bfe_u32 v{a_}, v{l}, 2, 2
    v_lshrrev_b32 v{b_}, 5, v{l}
    v_lshl_add_u32 v{b_}, v{b_}, 3, v{a_}
    v_bfe_u32 v{c_}, v{l}, 4, 1
    v_and_b32 v{d_}, 3, v{l}
    v_lshl_add_u32 v{c_}, v{c_}, 2, v{d_}
    v_lshlrev_b32 v{d_}, 7, v{b_}
    v_lshl_add_u32 v{d_}, v{c_}, 3, v{d_}
    v_add_u32 v{d_}, s{sMx}, v{d_}
    v_lshrrev_b32 v{a_}, 1, v{a_}
    v_lshl_add_u32 v{vDA}, v{a_}, 6, v{d_}
    v_xor_b32 v{a_}, 1, v{a_}
    v_lshl_add_u32 v{vDA+1}, v{a_}, 6, v{d_}''')
    if role == 'A':
        it += items(f'''v_mul_u32_u24 v{b_}, 56, v{b_}
        v_min_u32 v{c_}, 6, v{c_}
        v_lshl_add_u32 v{b_}, v{c_}, 3, v{b_}
        v_add_u32 v{vU0}, {L_PHI}, v{b_}''')
    return it

def p2_scalar_items(k, role):
    it = [f's_and_b32 s3, s2, {k.opt.get("rotx", 7)}\ns_lshl_b32 s3, s3, 2\ns_lshr_b32 s{sRo}, 0x6543210, s3\ns_sub_u32 s3, 28, s3\ns_lshl_b32 s3, 0x6543210, s3\ns_or_b32 s{sRo}, s{sRo}, s3']
    it += items(f'''s_lshl_b32 s{sRes}, s{sG2}, 2
    s_add_u32 s{sFl}, s{sRes}, s{sWave}
    s_mul_i32 s{sFl}, s{sFl}, {4*CST}
    s_add_u32 s{sFl}, s{sFl}, {WS_FL}
    s_lshl_b32 s{sRes}, s{sRes}, 1
    s_add_u32 s{sRes}, s{sRes}, s{sWave}
    s_mul_i32 s{sRes}, s{sRes}, {8*896}
    s_lshl_b32 s{sH}, s{sNb}, 7
    s_add_u32 s{sRes}, s{sRes}, s{sH}
    s_mul_i32 s{sOb}, s{sG2}, {144*2048}
    s_mul_i32 s{sH0}, s{sWave}, {28*2048}
    s_add_u32 s{sH0}, s{sH0}, s{sOb}''')
    it += items(f'''s_mul_i32 s{sWo}, s{sWave}, {14*1024}
    s_add_u32 s{sWo}, s{sWo}, {WB}
    s_mul_i32 s{sWg}, s{sWave}, {(112-448)*896}
    s_add_u32 s{sWg}, s{sWg}, s{sDb}''')
    if role == 'P': it += [f's_add_u32 s{sMu}, s{sRes}, {32*896}']
    else:
        it += items(f'''s_add_u32 s{sDb}, s{sDb}, {224*896}
        s_add_u32 s{sH0}, s{sH0}, {14*2048}
        s_lshl_b32 s{sH}, s{sWave}, 14
        s_add_u32 s{sOb}, s{sOb}, s{sH}
        s_add_u32 s{sOb}, s{sOb}, {112*2048}
        s_lshl_b32 s{sKf}, s{sJ}, 2
        s_add_u32 s{sKf}, s{sKf}, s{sWave}
        s_andn2_b32 s3, s{sKf}, 1|s_add_u32 s{sKf}, s{sKf}, s3
        s_mul_i32 s{sKf}, s{sKf}, {4*CST}
        s_add_u32 s{sKf}, s{sKf}, {WS_FL + 11*CST}
        s_lshl_b32 s{sKb}, s{sJ}, 2
        s_add_u32 s{sKb}, s{sKb}, s{sWave}
        s_lshl_b32 s{sKb}, s{sKb}, 13
        s_add_u32 s{sKb}, s{sKb}, {WS_KVP}''')
    return it

def prefetch2(k, Z, i):
    mode = k.opt.get('pf2', 2)
    if mode == 2:
        if i in (1, 2): return []
        if i == 0: it = [f'v_lshl_add_u32 v{Z}, v{vL16}, 4, s2', f'v_min_u32 v{Z}, 1567, v{Z}', f'v_lshlrev_b32 v{Z}, 7, v{Z}', f's_mul_i32 s3, s{sWave}, {448*896}\ns_add_u32 s3, s3, {224*896}\nv_add_u32 v{Z}, s3, v{Z}']
    if mode == 1 or i == 3:
        it = [f's_lshl_b32 s3, s{sWave}, 8\ns_add_u32 s3, s3, s2\nv_lshl_add_u32 v{Z}, v{vL16}, 6, s3', f'v_lshlrev_b32 v{Z}, 7, v{Z}'] if (i == 0 or mode == 2) else []
    def ld():
        k(f's_mov_b64 exec, {(0x1f if mode == 1 else 0x7f, 0x1e0, 0x1e00, 0xf)[i]}')
        k.vmem(f'buffer_load_dword v{Z+1}, v{Z}, {srd(SD if i < 3 else SO)}, 0 offen', 'pf2')
        k('s_mov_b64 exec, -1')
    return it + [ld]

def kv_addr_items():
    a_, b_, l = 76, 77, 78
    return items(f'''v_lshrrev_b32 v{l}, 4, v{vL16}
        v_and_b32 v{a_}, 31, v{l}
        v_mul_u32_u24 v{a_}, {SP}, v{a_}
        v_and_b32 v{b_}, 32, v{l}
        s_mul_i32 s{sB2}, s{sWave}, {64*SP}
        s_add_u32 s{sB2}, s{sB2}, {WB}
        v_add3_u32 v{vS0}, v{a_}, v{b_}, s{sB2}
        v_and_b32 v{a_}, 15, v{l}
        v_mul_u32_u24 v{a_}, {SP}, v{a_}
        v_and_b32 v{b_}, 48, v{l}
        v_add3_u32 v{vSV}, v{a_}, v{b_}, s{sB2}
        v_lshrrev_b32 v{a_}, 4, v{l}
        v_lshlrev_b32 v{a_}, 3, v{a_}
        v_bfe_u32 v{b_}, v{l}, 2, 1
        v_add_u32 v{a_}, v{a_}, v{b_}
        v_bfe_u32 v{b_}, v{l}, 3, 1
        v_lshl_add_u32 v{a_}, v{b_}, 2, v{a_}
        v_mul_u32_u24 v{a_}, {SP}, v{a_}
        v_add_u32 v{a_}, {WB}, v{a_}
        v_and_b32 v{b_}, 3, v{l}
        v_lshl_add_u32 v{vS0+2}, v{b_}, 4, v{a_}
        v_and_b32 v{b_}, 1, v{l}
        v_lshl_add_u32 v{a_}, v{b_}, 5, v{a_}
        v_bfe_u32 v{b_}, v{l}, 1, 1
        v_lshl_add_u32 v{a_}, v{b_}, 3, v{a_}
        s_lshl_b32 s3, s{sWave}, 3|s_lshr_b32 s3, 0x50401000, s3|s_and_b32 s3, s3, 0xff|v_add_u32 v{vS0+1}, s3, v{a_}
        v_bfe_u32 v{a_}, v{l}, 4, 1
        v_lshlrev_b32 v{a_}, 9, v{a_}
        v_lshrrev_b32 v{b_}, 5, v{l}
        v_lshl_add_u32 v{a_}, v{b_}, 8, v{a_}
        v_and_b32 v{b_}, 15, v{l}
        v_lshl_add_u32 v{vS0+3}, v{b_}, 4, v{a_}''')

vCL = 64
def st_loads(role):
    r = [f'buffer_load_dwordx4 {v(vST[2*tt],4)}, v{vPA}, {srd(SW)}, s{sT2} offen offset:{16*tt} sc1' for tt in range(2)]
    if role == 'A': r += [f'buffer_load_dword v{vCL+4*r_+i}, v{(vF0, vPoll)[r_]}, {srd(SW)}, s{sC} offen offset:{640*i} sc1' for r_ in range(2) for i in range(4)]
    return r

def gelu_consts(tt):
    c0 = -2*math.sqrt(2/math.pi)*math.log2(math.e); it = []
    for i in range(2): it += [f'v_mul_f32 v{vP3+2*i}, v{kap(2*tt+i)}, v{kap(2*tt+i)}', f'v_mul_f32 v{vP2+2*i}, {hex(f2u(c0))}, v{kap(2*tt+i)}']
    for i in range(2): it.append(f'v_mul_f32 v{vP3+2*i}, {hex(f2u(0.044715))}, v{vP3+2*i}')
    for i in range(2): it.append(f'v_mul_f32 v{vP3+2*i}, v{vP2+2*i}, v{vP3+2*i}')
    return it

def main_loop(k, typ, role):
    o = k.opt
    A_role = role == 'A'; R2 = r2(typ, role)
    mkb = (lambda n: xbatch(n, n % 3)) if A_role else (lambda n: wbatch(typ, n, n % 3))
    k.vm = ['b0']*(8 if A_role else 5)
    read_setup(k, typ, role)
    b1 = mkb(1)
    npre = o.get('preA', 4) if A_role else o.get('preF', 5)
    for g in b1[:npre]: k.emit_all(g)
    k.stamp(1)
    if A_role:
        L = k.A.label('L_bt')
        k(f's_cmp_ge_u32 s{sT1}, 32\ns_cbranch_scc1 {L}\ns_and_b32 s3, s2, 1\ns_lshl_b32 s3, s3, 7\ns_mov_b32 s{sOne}, 1\ns_waitcnt vmcnt({len(k.vm)})\ns_atomic_add s{sOne}, s[{SDBG}:{SDBG+1}], s3\n{L}:')
    k.wait('b0', extra='lgkmcnt(0)')
    k('s_barrier')
    k.stamp(2)
    k.emit_all(first_reads(typ, role, 0))
    k(f's_setprio {2 if A_role else 1}')
    LEAD = o.get('leadA', 2) if A_role else o.get('leadF', 3)
    sched = {}; wq = []
    for n_ in range(1, 7):
        gs = b1[npre:] if n_ == 1 else mkb(n_)
        if n_ == 5 and not A_role:
            gs.append([f's_mov_b32 s{SPH+2}, {16*1568}', f's_mov_b32 s{SPH+3}, 0x20000', f's_and_b32 s{sC2}, s{sWave}, 1', f's_lshl_b32 s{sC2}, s{sC2}, 10', f's_add_u32 m0, s{sC2}, {L_PHI}',
                       f's_mul_i32 s{sB}, s{sJ}, 1568', f's_add_u32 s{sB}, s{sB}, s{sC2}', (f'buffer_load_dwordx4 v{vL16}, {srd(SPH)}, s{sB} offen lds', 'b5')])
        need = 4*(n_ - 1) + 3
        hi = max(need - LEAD, min(need, n_)); lo = max(hi - 4, 0, 4*(n_ - 3) + 3)
        for i_ in range(len(gs)):
            st_ = lo + (i_*(hi - lo))//len(gs)
            sched[st_] = sched.get(st_, 0) + 1
        wq += gs
    P0 = divmod(max(max(sched) + 1, 19), 4)
    pend = []; lazy = []
    T = lambda key, d: tuple(o.get(key, d))
    PS = o.get('ps', 3); GS = o.get('gs', 5); CS_ = (GS, o.get('csamp', 2)); CG = (GS, 3)
    SROW = [tuple(x) for x in o.get('srowat', [(0, 2), (1, 1)])]
    if A_role:
        csv, cspub = cs_items(k)
        lazy = [f'v_mov_b32 v{vPoll}, {OOB}'] + srow_items(k) + init_items(k, typ)
        work = [((0, 3), cspub), (T('statat', (1, 3)), stats_items(k)), ((PS, 3), w2_addr_items('A', 128) + p2_scalar_items(k, R2))]
    else:
        lazy = flag_addr_items(typ, 'F') + w2_addr_items('F', 124)
        work = []
    n = nT(role); ng = 2*n; spare = False
    order = [1, 0] if (typ, role) == ('Q', 'A') else list(range(n))
    flat = lambda *ps: [x for p in ps for g in pbatch(R2, p) for x in g]
    def st_issue():
        it = items(f'''v_and_b32 v{vPA}, 0xf0, v{vL16}
        v_lshlrev_b32 v{vPA}, 1, v{vPA}
        s_lshl_b32 s{sT2}, s{sRb}, 2
        s_add_u32 s{sT2}, s{sT2}, s{sWave}
        s_lshl_b32 s{sT2}, s{sT2}, 9
        s_add_u32 s{sT2}, s{sT2}, {WS_ST}''')
        if A_role: it += items(f'''v_lshrrev_b32 v{vPoll}, 9, v{vL16}
        v_mul_u32_u24 v{vPoll}, 2560, v{vPoll}
        v_bfe_u32 v{vF0}, v{vL16}, 2, 7
        v_add_u32 v{vF0}, v{vF0}, v{vPoll}
        s_movk_i32 s3, 512|s_cmp_lg_u32 s{sWave}, 0|s_cselect_b32 s3, {OOB}, s3|v_add_u32 v{vPoll}, s3, v{vF0}
        s_mul_i32 s{sC}, s{sCg}, 40
        s_add_u32 s{sC}, s{sC}, s{sWave}
        s_lshl_b32 s{sC}, s{sC}, 7
        s_add_u32 s{sC}, s{sC}, {WS_CS}''')
        return it + [(l, 'stld') for l in st_loads(role)]
    def st_consts():
        it = [lambda: k.wait('stld')]
        if A_role:
            for r_ in range(2):
                x = vCL + 4*r_
                it += [f'v_add_f32 v{x}, v{x}, v{x+1}', f'v_add_f32 v{x+2}, v{x+2}, v{x+3}', f'v_add_f32 v{x}, v{x}, v{x+2}', f'v_cvt_pk_bf16_f32 v{x+1}, v{x}, v{x}',
                       f'v_lshlrev_b32 v{x+1}, 16, v{x+1}', f'v_sub_f32 v{x+1}, v{x}, v{x+1}', f'v_cvt_pk_bf16_f32 v{x}, v{x}, v{x+1}']
            it += items(f'''v_bfe_u32 v{vPoll}, v{vL16}, 1, 8
            v_lshrrev_b32 v{vPA}, 9, v{vL16}
            v_lshl_add_u32 v{vPoll}, v{vPA}, 2, v{vPoll}
            s_lshl_b32 s3, s{sWave}, 8|s_add_u32 s3, s3, {L_CS}|v_add_u32 v{vPoll}, s3, v{vPoll}
            v_mov_b32 v{vCL+2}, 0
            ds_write_b32 v{vPoll}, v{vCL}
            ds_write_b32 v{vPoll}, v{vCL+4} offset:1024
            ds_write_b32 v{vPoll}, v{vCL+2} offset:2048''')
        it += items(f'''v_and_b32 v{vU0}, 0x130, v{vL16}
        v_lshrrev_b32 v{vU0}, 1, v{vU0}
        v_and_b32 v{vPA}, 0x40, v{vL16}
        v_add_u32 v{vU0}, v{vU0}, v{vPA}
        s_mov_b32 vcc_lo, 0xff00ff00|s_mov_b32 vcc_hi, 0x00ff00ff|v_mov_b32 v{vPA}, 1280|v_cndmask_b32 v{vU0}, v{vU0}, v{vPA}, vcc
        v_add_u32 v{vU0}, {L_CS}, v{vU0}''')
        it.append('s_mov_b32 vcc_lo, 0\ns_mov_b32 vcc_hi, -1\n' + '\n'.join(f'v_cndmask_b32 v{vMB+4*tt}, v{vST[2*tt]+1}, v{vST[2*tt+1]+1}, vcc' for tt in range(2)))
        it += [f'v_cvt_pk_bf16_f32 v{vMB+4*tt}, v{vMB+4*tt}, v{vMB+4*tt}' for tt in range(2)]
        it.append('s_mov_b32 vcc_lo, 0xffff0000\ns_mov_b32 vcc_hi, 0xffff0000\n' + '\n'.join(
            f'v_cndmask_b32 v{vMB+4*tt+2}, 0, v{vMB+4*tt}, vcc\nv_cndmask_b32 v{vMB+4*tt+3}, 0, v{vMB+4*tt}, vcc\nv_cndmask_b32 v{vMB+4*tt+1}, v{vMB+4*tt}, 0, vcc\nv_cndmask_b32 v{vMB+4*tt}, v{vMB+4*tt}, 0, vcc' for tt in range(2)))
        for tq in range(4): it.append(f'v_rsq_f32 v{kap(tq)}, v{vST[tq]}')
        if (typ, role) != ('KV', 'A'): it += gelu_consts(0)
        return it
    for (s, ks) in [(s, ks) for s in range(7) for ks in range(4)] + [(7, 0)]:
        slot = s % 3; b = (4*s + ks) & 1; at = (s, ks)
        reads = []; extra = []; pre_bar = []; post_ = []; first_ = []
        if s < 7:
            if ks < 3: reads = w_reads(typ, role, slot, ks + 1) + (x_reads(slot, 1, (2*ks, 2*ks + 1)) if ks < 2 else [])
            elif s < 6: reads = first_reads(typ, role, (s+1) % 3)
            else: reads = [f'ds_read2_b64 {a(fW(role,0,c),4)}, v{vU0} offset0:{tile_id(typ,role,c)*32} offset1:{tile_id(typ,role,c)*32 + 4}' for c in order]
        while work and at >= work[0][0]: lazy += work.pop(0)[1]
        if at == (PS, 3): assert not any(isinstance(x, tuple) and x[1] in ('stst', 'csst') for x in lazy + [y for w_ in work for y in w_[1]])
        if A_role:
            if s == 0 and ks < 2: reads += cs_reads(typ)[8*ks:8*ks+8]
            for i_, x in enumerate(SROW):
                if at == x:
                    assert at >= (0, 1)
                    extra.append(k.srow[i_])
            if at == (0, 2): post_ += csv
            IL = f'buffer_load_dword v{vPoll}, v{vPA}, {srd(SDBG)}, 0 offen sc1'
            if at == T('isamp', (PS - 1, 3)):
                extra += [f's_mov_b32 s{SDBG+2}, 256', f's_mov_b32 s{SDBG+3}, 0x20000', f'v_lshlrev_b32 v{vPA}, 3, v{vL16}', (IL, 'ipoll')]
            if at == (PS, 3):
                def igate():
                    k.wait('ipoll', 'stst', 'csst')
                    L = k.A.label('L_in')
                    C = f'v_cmp_gt_u32 vcc, 16, v{vPoll}\ns_and_b32 s3, vcc_lo, 3'
                    k(f'{C}\ns_cbranch_scc1 {L}f\n{L}b:')
                    k.tail.append(f'{L}f:\ns_mov_b32 s{sSpin}, 0\n{L}l:\n{IL}\ns_add_u32 s{sSpin}, s{sSpin}, 1\ns_waitcnt vmcnt(0)\n{C}\ns_cbranch_scc0 {L}b\ns_cmp_lt_u32 s{sSpin}, {o.get("spin", 200000)}\ns_cbranch_scc1 {L}l\ns_branch {L}b')
                def publish():
                    L = k.A.label('L_pb')
                    k(f's_mul_i32 s3, s{sCg}, {16*CST}\ns_add_u32 s{sT1}, s3, {WS_FL + 7*CST}\ns_cmp_lg_u32 s{sWave}, 0\ns_cbranch_scc1 {L}')
                    k(f's_lshl_b32 s3, s{sRb}, 2\ns_add_u32 s3, s3, s{sG}\ns_mul_i32 s3, s3, {16*CST}\ns_add_u32 s{sB}, s3, {WS_FL + 3*CST}')
                    post(k, sB); post(k, sT1)
                    k(f'{L}:')
                pre_bar.append(igate); extra.append(publish)
            if at == (4, 1):
                assert not work
                extra += lazy; lazy = []
            if at == (4, 3):
                reads += [f'ds_read_b64_tr_b16 {pr(vWP+4*s_+2*j2)}, v{vU0} offset:{(16*s_+4*j2)*56}' for s_ in range(2) for j2 in range(2)]
                if typ == 'KV': lazy += kv_addr_items()
            if at == (5, 0):
                extra += [f'v_mov_b32_dpp v{vWP+i}, v{vWP+i} quad_perm:[2,3,2,3] row_mask:0xa bank_mask:0x8' for i in range(8)]
                extra += [f'v_cndmask_b32 v{vWP+i}, v{vWP+i}, 0, s[{sHm}:{sHm+1}]' for i in (6, 7)]
            if at == CS_:
                first_.append(f's_lshl_b32 s3, s{sRb}, 2\ns_add_u32 s3, s3, s{sWave}\ns_mul_i32 s3, s3, {16*CST}\ns_add_u32 s{sB}, s3, {WS_FL + 3*CST}\n'
                              f's_load_dword s{sPl}, s[{SW}:{SW+1}], s{sB}\ns_load_dword s{sPl+1}, s[{SW}:{SW+1}], s{sT1}')
            if at == CG:
                def cgate():
                    L = k.A.label('L_sc')
                    k(f's_waitcnt lgkmcnt(0)\ns_min_u32 s3, s{sPl}, s{sPl+1}\ns_cmp_lt_u32 s3, 8\ns_cbranch_scc1 {L}f\n{L}b:')
                    k.tail.append(f'{L}f:\ns_mov_b32 s{sSpin}, 0\nv_mov_b32 v{vPA}, s{sB}\nv_writelane_b32 v{vPA}, s{sT1}, 1\n{L}l:\ns_sleep 4\ns_mov_b64 exec, 3\nbuffer_load_dword v{vPoll}, v{vPA}, {srd(SW)}, 0 offen sc1\n'
                                  f's_add_u32 s{sSpin}, s{sSpin}, 1\ns_waitcnt vmcnt(0)\nv_cmp_gt_u32 vcc, 8, v{vPoll}\ns_mov_b64 exec, -1\ns_cbranch_vccz {L}b\ns_cmp_lt_u32 s{sSpin}, {o.get("spin", 200000)}\ns_cbranch_scc1 {L}l\ns_branch {L}b')
                pre_bar.append(cgate)
        else:
            for i_, x in enumerate(o.get('pf2at', [(3, 2)]*4)):
                if at == tuple(x) and o.get('pf2', 2): extra += prefetch2(k, vZF, i_)
            if at == P0:
                assert not wq and not lazy
                pre_bar += p2_scalar_items(k, R2)
            if at == (6, 3) and o.get('endprio', 1): pre_bar.append('s_setprio 3')
        if at == CG: extra += st_issue()
        if at == T('cwr', (6, 1)): extra += st_consts()
        if R2 == 'P' and A_role:
            assert P0 <= (5, 2)
            if at == max(P0, T('p0at', (5, 0))): post_ += flat(0, 1)
            if at == (5, 3): post_ += flat(2, 3)
            if at == (6, 1): post_ += [lambda: k.wait('d1')] + preads('P', 0) + preads('P', 1)
            if at == (6, 2): post_ += flat(4, 5)
            if at == (6, 3): post_ += [lambda: k.wait('d2')] + preads('P', 2)
            if at == (7, 0): first_ += flat(6)
        elif R2 == 'P':
            if at == P0: pend += pbatch('P', 0) + pbatch('P', 1)
            if at == (5, 3): pend += pbatch('P', 2) + pbatch('P', 3)
            if at == (6, 0):
                assert all(g[-1][1] != 'd1' for g in pend)
                extra += [lambda: k.wait('d1')] + preads('P', 0) + preads('P', 1)
            if at == (6, 1): pend += pbatch('P', 4) + pbatch('P', 5)
            if at == (6, 3): extra += [lambda: k.wait('d2')] + preads('P', 2)
            if at == (7, 0): pend += pbatch('P', 6)
        elif at == (6, 3): pend += pbatch('S', 0) + pbatch('S', 1)
        k(f's_waitcnt lgkmcnt({2 if spare else 0})')
        spare = A_role and ((PS, 3) <= at < (PS + 1, 2) or CS_ <= at < CG)
        mf = []
        if s < 7:
            for i, (c, mt) in enumerate(mtiles(role, ks & 1)):
                for tt in range(2):
                    mf.append('\n'.join(f'v_mfma_f32_16x16x32_bf16 {v(accD(c,mt,tq),4)}, {a(fW(role,ks&1,i),4)}, {a(fX(ks>>1,tq),4)}, {"0" if at < (0, 2) else v(accD(c,mt,tq),4)}' for tq in (2*tt, 2*tt+1)))
        else:
            if order[0] == n - 1: k('s_nop 4')
            for c in order:
                for tt in range(2): mf.append(f'v_mfma_f32_32x32x16_bf16 {v(acc(c,tt),16)}, {a(fW(role,0,c),4)}, {v(vMB+4*tt,4)}, {v(acc(c,tt),16)}')
        gaps = [[] for _ in range(ng)]
        if s == 7 and typ == 'Q': pre_bar.append('s_barrier')
        if ks == 3:
            assert all(g[-1][1] != f'b{s+1}' for g in wq)
            def bar(s=s):
                k.stamp(3 + s, 7)
                k.wait(f'b{s+1}')
                k('s_barrier')
                k.stamp(3 + s, 9)
            pre_bar.append(bar)
        gaps[0] += pre_bar
        rd = list(reads); gi = 0
        per = max(4, -(-len(rd) // (ng - 1)))
        while rd:
            gaps[gi] += rd[:per]; rd = rd[per:]; gi += 1
        now = [wq.pop(0) for _ in range(sched.get(4*s + ks, 0))]
        while pend and len(now) < 4: now.append(pend.pop(0))
        for i_, g_ in enumerate(now): gaps[min(ng - 1, 1 + (i_*(ng - 1))//len(now))] += g_
        wt = lambda it: 3 if isinstance(it, tuple) else 1 if callable(it) else it.count('\n') + 1
        budget = o.get('lazyA', 16) if A_role else o.get('lazyF', 18); q = list(extra); tot = sum(wt(x) for x in q)
        while lazy and tot < budget:
            q.append(lazy.pop(0)); tot += wt(q[-1])
        if A_role and tot > 6: gaps[ng - 1] += ['s_setprio 0'] + q + ['s_setprio 2']
        else:
            accw = 0
            for it in q:
                gaps[min(ng - 1, 1 + (accw*(ng - 1))//max(tot, 1))].append(it); accw += wt(it)
        gaps[0] += first_; gaps[ng - 1] += post_
        if spare:
            last = max(i for i in range(ng) if any(isinstance(x, str) and 'ds_' in x for x in gaps[i]))
            gaps[last] += [f'ds_read_b32 a{2+i}, v{vL16}' for i in range(2)]
        for i in range(ng):
            k(mf[i]); k.emit_all(gaps[i])
        if o.get('verbose'): print(typ, role, s, ks, [sum(wt(x) for x in gp) for gp in gaps], 'lazy', len(lazy), 'pend', len(pend))
    assert not pend and not lazy
    k.stamp(3); k.stamp(3, 3)

def swap16(k, R):
    k.f(f'v_permlane16_swap_b32 v{R}, v{R+2}\nv_permlane16_swap_b32 v{R+1}, v{R+3}')

def ffn_unit(k, c, tt, plain=False):
    A_ = acc(c, tt); T = vT
    K_ = lambda i: vST[2*tt + i]; C0 = lambda i: vP2 + 2*i; C1 = lambda i: vP3 + 2*i
    if plain:
        for i in range(8): k.f(f'v_mul_f32 v{T+i}, v{A_+i}, v{A_+i}')
        for i in range(8): k.f(f'v_fma_f32 v{T+i}, v{T+i}, v{C1(i>>2)}, v{C0(i>>2)}')
        for i in range(8): k.f(f'v_mul_f32 v{T+i}, v{A_+i}, v{T+i}')
        for i in range(8): k.f(f'v_exp_f32 v{T+i}, v{T+i}')
        for i in range(8): k.f(f'v_mul_f32 v{A_+i}, v{A_+i}, v{A_+8+i}')
        for i in range(8): k.f(f'v_fma_f32 v{T+i}, v{T+i}, v{K_(i>>2)}, v{K_(i>>2)}')
        for i in range(8): k.f(f'v_rcp_f32 v{T+i}, v{T+i}')
        for i in range(8): k.f(f'v_mul_f32 v{A_+i}, v{A_+i}, v{T+i}')
    else:
        for i in range(4): k.f(f'v_pk_mul_f32 {pr(T+2*i)}, {pr(A_+2*i)}, {pr(A_+2*i)}')
        for i in range(4): k.f(f'v_pk_fma_f32 {pr(T+2*i)}, {pr(T+2*i)}, {pr(C1(i>>1))}, {pr(C0(i>>1))} op_sel_hi:[1,0,0]')
        for i in range(4): k.f(f'v_pk_mul_f32 {pr(T+2*i)}, {pr(A_+2*i)}, {pr(T+2*i)}')
        for i in range(8): k.f(f'v_exp_f32 v{T+i}, v{T+i}')
        for i in range(4): k.f(f'v_pk_mul_f32 {pr(A_+2*i)}, {pr(A_+2*i)}, {pr(A_+8+2*i)}')
        for i in range(4): k.f(f'v_pk_fma_f32 {pr(T+2*i)}, {pr(T+2*i)}, {pr(K_(i>>1))}, {pr(K_(i>>1))} op_sel_hi:[1,0,0]')
        for i in range(8): k.f(f'v_rcp_f32 v{T+i}, v{T+i}')
        for i in range(4): k.f(f'v_pk_mul_f32 {pr(A_+2*i)}, {pr(A_+2*i)}, {pr(T+2*i)}')
    for i in (0, 2, 1, 3): k.f(f'v_cvt_pk_bf16_f32 v{A_+8+i}, v{A_+2*i}, v{A_+2*i+1}')
    k.f('s_nop 0')
    swap16(k, A_ + 8)

def h_store(k, c, tt, sreg, off):
    k.vmem(f'buffer_store_dwordx4 {v(acc(c,tt)+8,4)}, v{vL16}, {srd(SW)}, s{sreg} offen offset:{off} sc1', 'hst')

def pack8(k, src, dst, n=8):
    for i in range(n): k.f(f'v_cvt_pk_bf16_f32 v{dst+i}, v{src+2*i}, v{src+2*i+1}')

def project(k, E):
    for tt in range(2): pack8(k, acc(0, tt), E + 8*tt)
    for q in range(4): swap16(k, E + 4*q)
    k('s_nop 1')
    for tt in range(2):
        P = acc(0, tt)
        k(f'v_mfma_f32_32x32x16_bf16 {v(P,16)}, {v(vWP,4)}, {v(E+8*tt,4)}, 0')
        k(f'v_mfma_f32_32x32x16_bf16 {v(P,16)}, {v(vWP+4,4)}, {v(E+8*tt+4,4)}, {v(P,16)}')

def softmaxes(k, F, after=None, plains=0):
    T = [vT, vT + 4]; S = 104
    R = range(2); P = [acc(0, 0), acc(0, 1)]; M = [acc(1, 0), acc(1, 1)]
    for tt in R: k.f(f'v_max3_f32 v{T[tt]}, v{P[tt]}, v{P[tt]+1}, v{P[tt]+2}\nv_min3_f32 v{T[tt]+2}, v{P[tt]}, v{P[tt]+1}, v{P[tt]+2}')
    for i in range(3, 13, 2):
        for tt in R: k.f(f'v_max3_f32 v{T[tt]}, v{T[tt]}, v{P[tt]+i}, v{P[tt]+i+1}\nv_min3_f32 v{T[tt]+2}, v{T[tt]+2}, v{P[tt]+i}, v{P[tt]+i+1}')
    for tt in R: k.f(f'v_max_f32 v{T[tt]+1}, v{T[tt]}, v{P[tt]+13}\nv_min_f32 v{T[tt]+3}, v{T[tt]+2}, v{P[tt]+13}')
    for tt in R: k.f(f'v_max_f32 v{T[tt]}, v{T[tt]}, v{P[tt]+13}\nv_min_f32 v{T[tt]+2}, v{T[tt]+2}, v{P[tt]+13}')
    k('s_mov_b32 vcc_lo, 0xffff0000\ns_mov_b32 vcc_hi, 0xffff0000\n' + '\n'.join(f'v_cndmask_b32 v{vP2+2*tt}, v{kap(2*tt)}, v{kap(2*tt+1)}, vcc' for tt in R))
    for tt in R: k.f(f'v_mul_f32 v{vP2+2*tt}, {hex(f2u(math.log2(math.e)))}, v{vP2+2*tt}')
    for tt in R: k.f(f'v_permlane32_swap_b32 v{T[tt]}, v{T[tt]+1}\nv_permlane32_swap_b32 v{T[tt]+2}, v{T[tt]+3}')
    for tt in R: k.f(f'v_max_f32 v{T[tt]}, v{T[tt]}, v{T[tt]+1}\nv_min_f32 v{T[tt]+2}, v{T[tt]+2}, v{T[tt]+3}')
    for tt in R: k.f(f'v_mul_f32 v{T[tt]}, v{T[tt]}, v{vP2+2*tt}\nv_mul_f32 v{T[tt]+2}, v{T[tt]+2}, v{vP2+2*tt}')
    for tt in R:
        L = pr(vP2 + 2*tt); p = P[tt]; m = M[tt]; t = T[tt]; s_ = S + 4*tt
        Ls = vP2 + 2*tt; plain = (plains >> tt) & 1
        if plain:
            for i in range(14): k.f(f'v_fma_f32 v{m+i}, -v{p+i}, v{Ls}, v{t+2}')
            for i in range(14): k.f(f'v_fma_f32 v{p+i}, v{p+i}, v{Ls}, -v{t}')
        else:
            for i in range(7): k.f(f'v_pk_fma_f32 {pr(m+2*i)}, {pr(p+2*i)}, {L}, {pr(t+2)} op_sel_hi:[1,0,0] neg_lo:[1,0,0] neg_hi:[1,0,0]')
            for i in range(7): k.f(f'v_pk_fma_f32 {pr(p+2*i)}, {pr(p+2*i)}, {L}, {pr(t)} op_sel_hi:[1,0,0] neg_lo:[0,0,1] neg_hi:[0,0,1]')
        for i in range(14): k.f(f'v_exp_f32 v{m+i}, v{m+i}')
        for i in range(14): k.f(f'v_exp_f32 v{p+i}, v{p+i}')
        for i in range(1, 7):
            for d, x in ((s_+2, m), (s_, p)):
                src = x if i == 1 else d
                if plain: k.f(f'v_add_f32 v{d}, v{src}, v{x+2*i}\nv_add_f32 v{d+1}, v{src+1}, v{x+2*i+1}')
                else: k.f(f'v_pk_add_f32 {pr(d)}, {pr(src)}, {pr(x+2*i)}')
        k.f(f'v_add_f32 v{t+2}, v{s_+2}, v{s_+3}\nv_add_f32 v{t+3}, v{s_+2}, v{s_+3}\nv_add_f32 v{t}, v{s_}, v{s_+1}\nv_add_f32 v{t+1}, v{s_}, v{s_+1}')
        k.f(f's_waitcnt lgkmcnt(0)\nv_permlane32_swap_b32 v{t+2}, v{t+3}\nv_permlane32_swap_b32 v{t}, v{t+1}')
        k.f(f'v_add_f32 v{t+2}, v{t+2}, v{t+3}\nv_add_f32 v{t}, v{t}, v{t+1}\nv_rcp_f32 v{t+2}, v{t+2}\nv_rcp_f32 v{t}, v{t}\nv_mov_b32 v{F[tt]+7}, 0\nv_mov_b32 v{F[tt]+15}, 0')
        if plain:
            for i in range(14): k.f(f'v_mul_f32 v{p+i}, v{p+i}, v{t}')
            for i in range(14): k.f(f'v_mul_f32 v{m+i}, v{m+i}, v{t+2}')
        else:
            for i in range(7): k.f(f'v_pk_mul_f32 {pr(p+2*i)}, {pr(p+2*i)}, {pr(t)} op_sel_hi:[1,0]')
            for i in range(7): k.f(f'v_pk_mul_f32 {pr(m+2*i)}, {pr(m+2*i)}, {pr(t+2)} op_sel_hi:[1,0]')
        pack8(k, p, F[tt], 7); pack8(k, m, F[tt]+8, 7)
        if after: after(tt)

def kv_part(k):
    V = 64
    project(k, V)
    k(f's_mov_b32 s{sB}, 0\ns_mov_b32 s{sB2}, 0xffff0000\nv_mov_b32 v80, 0x3f80')
    for tq in range(4):
        for mt in range(2):
            for i in range(4): k.f(f'v_mul_f32 v{accD(1,mt,tq)+i}, v{accD(1,mt,tq)+i}, v{kap(tq)}')
    for tq in range(4):
        for mt in range(2): pack8(k, accD(1, mt, tq), V + 4*tq + 2*mt, 2)
        k.f(f'v_cndmask_b32 v{V+4*tq+2}, v{V+4*tq+2}, v80, s[{sB}:{sB2}]\nv_cndmask_b32 v{V+4*tq+3}, v{V+4*tq+3}, 0, s[{sB}:{sB2}]')
        k.f(f'ds_write_b128 v{vSV}, {v(V+4*tq,4)} offset:{tq*16*SP+128}')
    k.stamp(4, 3)
    def wr(tt):
        for sec in range(2):
            for q in range(2): k.f(f'ds_write_b128 v{vS0}, {v(V+8*sec+4*q,4)} offset:{tt*32*SP+64*sec+16*q}')
    softmaxes(k, [V, V], after=wr, plains=k.opt.get('plainKA', 0))
    k.stamp(5, 3)
    sync_post(k, 0); sync_wait(k, 0, 80)
    k.stamp(6, 3)
    D = 136
    def rd(kk):
        base = 12*(kk % 5)
        for j2 in range(2):
            im = (32*kk + 2*j2)*SP
            k(f'ds_read_b64_tr_b16 {pr(base+2*j2)}, v{vS0+1} offset:{im}')
            for dt in range(2): k(f'ds_read_b64_tr_b16 {pr(base+4+4*dt+2*j2)}, v{vS0+2} offset:{im+128+8*dt}')
    rd(0); rd(1)
    for kk in range(8):
        if kk + 2 < 8: rd(kk + 2)
        k(f's_waitcnt lgkmcnt({min(12, 6*(7-kk))})')
        base = 12*(kk % 5)
        for dt in range(2):
            k(f'v_mfma_f32_16x16x32_bf16 {v(D+4*dt,4)}, {v(base,4)}, {v(base+4+4*dt,4)}, {"0" if kk == 0 else v(D+4*dt,4)}')
    sync_post(k, 1)
    sample_h(k, 'P')
    for i in range(4): k(f'v_cvt_pk_bf16_f32 v{D+i}, v{D+2*i}, v{D+2*i+1}')
    k(f's_nop 0\nv_permlane32_swap_b32 v{D}, v{D+2}\nv_permlane32_swap_b32 v{D+1}, v{D+3}')
    k.vmem(f'buffer_store_dwordx4 {v(D,4)}, v{vS0+3}, {srd(SW)}, s{sP} offen sc1', 'kvst')
    k.stamp(7, 3)

QF = [64, 80]
def o_part(k):
    k.stamp(5, 3)
    spin(k, 'L_kq', f's_load_dword s{sPl}, s[{SW}:{SW+1}], s{sKf} glc', [(sPl, 8)])
    k.stamp(6, 3)
    k(f's_add_u32 s{sC}, s{sKb}, 4096')
    for rb in range(8): k.vmem(f'buffer_load_dwordx4 {v(16+4*rb,4)}, v{vL16}, {srd(SW)}, s{sC if rb >= 4 else sKb} offen offset:{1024*(rb&3)} sc1', f'kv{rb}')
    k(f'v_add_u32 v96, {L_KVF}, v{vL16}\ns_lshl_b32 s3, s{sWave}, 10\nv_add_u32 v97, s3, v96')
    for rb in range(8):
        k.wait(f'kv{rb}')
        for i in range(4):
            x = 16 + 4*rb + i
            if rb == 0: k(f'v_lshlrev_b32 v{2*i}, 16, v{x}\nv_and_b32 v{2*i+1}, 0xffff0000, v{x}')
            else: k(f'v_lshlrev_b32 v{8+i}, 16, v{x}\nv_and_b32 v{x}, 0xffff0000, v{x}')
        if rb:
            for i in range(4): k(f'v_add_f32 v{2*i}, v{2*i}, v{8+i}\nv_add_f32 v{2*i+1}, v{2*i+1}, v{16+4*rb+i}')
    k.stamp(7, 3)
    for i in range(4): k(f'v_cvt_pk_bf16_f32 v{8+i}, v{2*i}, v{2*i+1}')
    k('ds_write_b128 v97, v[8:11]')
    sync_post(k, 0); sync_wait(k, 0, 12)
    for s_ in range(4): k(f'ds_read_b128 {v(16+4*s_,4)}, v96 offset:{s_*1024}')
    k('s_waitcnt lgkmcnt(0)')
    sample_h(k, 'S')
    for tt in range(2):
        for s_ in range(4): k(f'v_mfma_f32_32x32x16_bf16 {v(32+16*tt,16)}, {v(16+4*s_,4)}, {v(QF[tt]+4*s_,4)}, {"0" if s_ == 0 else v(32+16*tt,16)}')
    k('s_nop 7')
    T = vT
    for tt in range(2):
        N = 32 + 16*tt
        k(f'v_mov_b32 v{T}, v{N+12}\nv_mov_b32 v{T+1}, v{N+12}\nv_cndmask_b32 v{N+12}, v{N+12}, 0, s[{sHm}:{sHm+1}]\ns_nop 0\nv_permlane32_swap_b32 v{T}, v{T+1}')
        k(f'v_add_f32 v{T}, {hex(f2u(1e-6))}, v{T+1}\nv_rcp_f32 v{T}, v{T}\ns_nop 0')
        for i in range(16): k(f'v_mul_f32 v{N+i}, v{N+i}, v{T}')
        for i in range(8): k(f'v_cvt_pk_bf16_f32 v{N+i}, v{N+2*i}, v{N+2*i+1}')
        for s_ in range(2): k.vmem(f'buffer_store_dwordx4 {v(N+4*s_,4)}, v{vL16}, {srd(SW)}, s{sP} offen offset:{2048*s_+1024*tt} sc1', 'ost')
    k.stamp(8, 3)

HB, NQ = 64, 12
vOUT, vOA, vRW, vRR, XR = 123, 124, 128, 132, 136
def late_setup(role):
    T = 119
    it = []
    if role == 'P':
        it += items(f'''v_lshrrev_b32 v{T}, 7, v{vL16}
        v_mul_u32_u24 v{vOUT}, 896, v{T}
        v_and_b32 v{T+1}, 0x70, v{vL16}
        v_add_u32 v{vOUT}, v{vOUT}, v{T+1}''')
        it += items(f'''v_lshrrev_b32 v{T+1}, 3, v{T+1}
        v_xor_b32 v{T+1}, v{T+1}, v{T}
        v_lshlrev_b32 v{T}, 8, v{T}
        s_lshl_b32 s3, s{sWave}, 11|v_add_u32 v{T}, s3, v{T}
        v_lshl_add_u32 v{vRR}, v{T+1}, 4, v{T}
        v_xor_b32 v{vRR+1}, 16, v{vRR}
        v_add_u32 v{vRR+2}, {2*XW}, v{vRR}
        v_add_u32 v{vRR+3}, {2*XW}, v{vRR+1}
        v_add_u32 v{vOA}, {WB}, v{vRR}
        v_add_u32 v{vOA+1}, {WB}, v{vRR+1}''')
    it += items(f'''v_bfe_u32 v{T}, v{vL16}, 4, 5
    v_lshrrev_b32 v{T+1}, 9, v{vL16}
    v_and_b32 v{T+2}, 7, v{T}
    v_xor_b32 v{T+1}, v{T+1}, v{T+2}
    v_lshlrev_b32 v{T}, 8, v{T}
    v_lshl_add_u32 v{T}, v{T+1}, 4, v{T}
    v_add_u32 v{vRW}, s{sMx}, v{T}''')
    it += [f'v_xor_b32 v{vRW+q}, {32*q}, v{vRW}' for q in range(1, 4)]
    if role == 'S':
        it += items(f'''s_sub_u32 s3, s{sWo}, s{sMx}|v_add_u32 v{vOA}, s3, v{vDA}|v_add_u32 v{vOA+1}, s3, v{vDA+1}|v_add_u32 v{vRR}, s3, v{vRW}|v_add_u32 v{vRR+1}, s3, v{vRW+1}|v_add_u32 v{vRR+2}, s3, v{vRW+2}|v_add_u32 v{vRR+3}, s3, v{vRW+3}
        v_and_b32 v{T}, 0x200, v{vL16}
        v_sub_u32 v{vOA}, v{vOA}, v{T}
        v_sub_u32 v{vOA+1}, v{vOA+1}, v{T}
        v_sub_u32 v{vOA+2}, v{vOA}, v{T}
        v_sub_u32 v{vOA+3}, v{vOA+1}, v{T}''')
    return it

def halves(role):
    hs = [(e, tt) for e in range(14) for tt in range(2)]
    if role == 'S': hs += [(e, tt) for tt in range(2) for e in range(14, 22)]
    return hs

FL = lambda i, r=0: f's_add_u32 s3, s{sFl}, {CST*i}\ns_load_dword s{sPl+r}, s[{SW}:{SW+1}], s3 glc'
def h_load(k, role, x):
    e, tt = halves(role)[x]
    if role == 'S' and x == 28 - 2*k.opt.get('samp', 3): k(FL(2))
    if x == 28:
        k.stamp(7)
        spin(k, 'L_go', FL(2), [(sPl, 4)], first_loaded=True)
        k.stamp(8)
    if e == 14: k(f's_mov_b32 s{sH}, s{sOb}')
    elif e < 14 and x % 4 == 0: k(f's_bfe_u32 s{sH}, s{sRo}, {hex(0x40000 + x)}\ns_lshl_b32 s{sH}, s{sH}, 12\ns_add_u32 s{sH}, s{sH}, s{sH0}')
    elif e > 14 and e % 2 == 0: k(f's_add_u32 s{sH}, s{sH}, 4096')
    k.vmem(f'buffer_load_dwordx4 {v(HB + 4*(x % NQ),4)}, v{vL16}, {srd(SW)}, s{sH} offen offset:{(e&1)*2048 + tt*1024} sc1', f'e{x}')

def first_loads(k, role):
    k.stamp(6)
    for x in range(k.opt.get('depth' + role, 8)): h_load(k, role, x)

def sample_h(k, role):
    k(FL(0, 1))
    if role == 'S': k(FL(1, 2))

def wait_h(k, role):
    k.stamp(5)
    if role == 'S':
        k(FL(0, 1))
        spin(k, 'L_hS', FL(1), [(sPl, 4)])
        k(f's_mov_b32 s{sPl}, s{sPl+1}')
    spin(k, 'L_hP', FL(0), [(sPl, 8)], first_loaded=(role == 'S'))

def open_stream(k, role, tag, sreg, idle):
    L = k.A.label('L_os')
    if idle: k(f's_cmp_eq_u32 s{sNb}, 7\ns_cbranch_scc1 {L}')
    k(f's_waitcnt lgkmcnt(0)\ns_cmp_lt_u32 s{sPl+1}, 8\ns_cbranch_scc1 {L}')
    if role == 'S': k(f's_cmp_lt_u32 s{sPl+2}, 4\ns_cbranch_scc1 {L}')
    sv = list(k.vm)
    k.stamp(5)
    first_loads(k, role)
    drain_post(k, tag, sreg)
    k.stamp(4)
    k(f's_branch L_tail{role}\n{L}:')
    k.vm = sv
    drain_post(k, tag, sreg)
    k.stamp(4)
    if idle: k(f's_cmp_eq_u32 s{sNb}, 7\ns_cbranch_scc1 L_end{role}')
    k(f's_branch L_wait{role}')

def stream(k, role):
    o = k.opt
    DEPTH = o.get('depth' + role, 8); EARLY = o.get('ldearly', 1); FINE = o.get('fine', 1)
    assert DEPTH + 1 <= NQ
    hs = halves(role)
    k(f'L_wait{role}:')
    wait_h(k, role)
    k.vm = []
    first_loads(k, role)
    k(f'L_tail{role}:')
    if o.get('prio' + role): k(f's_setprio {o["prio" + role]}')
    def oreads(ko):
        jj, s_ = ko >> 1, ko & 1
        return [f'ds_read_b64_tr_b16 {a(8*ko + 4*n + 2*j2, 2)}, v{vOA + n + (2 if (s_ == 1 and j2 == 1) else 0)} offset:{(28*jj + 16*s_ + 8*j2)*128}' for n in range(2) for j2 in range(2)]
    def writes(tt, n):
        if role == 'P': return [f'ds_write_b128 v{vRW+q}, {v(32*n+16*tt+4*q,4)} offset:{8192 + tt*8192 + n*128}' for q in range(4)]
        return [f'ds_write_b128 v{(vRR if tt else vRW)+q}, {v(32*n+16*tt+4*q,4)} offset:{n*128}' for q in range(4)]
    def mm(x, n):
        e, tt = hs[x]; D = 32*n + 16*tt
        k(f'v_mfma_f32_32x32x16_bf16 {v(D,16)}, {a(8*(e % 14) + 4*n, 4)}, {v(HB + 4*(x % NQ),4)}, {"0" if e == 0 else v(D,16)}')
    k.emit_all(late_setup(role))
    NL = 4 if role == 'S' else 0
    fill = []
    for x in range(len(hs) - NL):
        e, tt = hs[x]
        if e >= 14 or tt == 0 or FINE: k.wait(f'e{x if (e >= 14 or FINE) else x+1}', extra='lgkmcnt(0)' if x in (0, 28) else '')
        if role == 'P' and x == 20:
            for i in range(2): k.vmem(f'buffer_load_dwordx4 {v(XR+4*i,4)}, v{vOUT}, {srd(SX)}, s{sMu if i else sRes} offen', 'xr')
        mm(x, 0)
        if EARLY and x + DEPTH < len(hs): h_load(k, role, x + DEPTH)
        if role == 'S':
            if 17 <= x < 25: k.emit_all(oreads(x - 17))
            if x == 36: k('s_nop 8'); fill = writes(0, 0) + writes(0, 1)
        k.emit_all(fill[:1]); fill = fill[1:]
        mm(x, 1)
        if not EARLY and x + DEPTH < len(hs): h_load(k, role, x + DEPTH)
        k.emit_all(fill[:1]); fill = fill[1:]
    if role == 'S':
        assert not fill
        xs = range(len(hs) - NL, len(hs))
        for x in xs:
            k.wait(f'e{x}'); mm(x, 0)
        k('s_waitcnt lgkmcnt(0)\ns_barrier')
        for x in xs: mm(x, 1)
        k.stamp(9)
        k('s_nop 5'); k.emit_all(writes(1, 0))
        k('s_nop 1'); k.emit_all(writes(1, 1))
        k('s_waitcnt lgkmcnt(0)\ns_barrier')
        return
    k.stamp(9)
    k.wait('xr')
    SUM = 64
    for i in range(8): k(f'v_lshlrev_b32 v{SUM+2*i}, 16, v{XR+i}\nv_and_b32 v{SUM+2*i+1}, 0xffff0000, v{XR+i}')
    sync_wait(k, 5, 136)
    for tt in range(2):
        for n in range(2): k.emit_all(writes(tt, n))
    sync_post(k, 3); sync_wait(k, 3, 136)
    def gather(tt, rd):
        for i, (va, im) in enumerate(rd): k(f'ds_read_b128 {v(4*i,4)}, v{va} offset:{im}')
        for p in range(4):
            k(f's_waitcnt lgkmcnt({2*(3-p)})')
            for i in range(8): k(f'v_add_f32 v{SUM+8*tt+i}, v{SUM+8*tt+i}, v{8*p+i}')
    for tt in range(2): gather(tt, [(vRR + 2*(p >> 1) + hf, (p & 1)*XW + 8192 + tt*8192) for p in range(4) for hf in range(2)])
    for tt in range(2):
        k('s_barrier')
        gather(tt, [(vRR + 2*(p >> 1) + hf, (p & 1)*XW) if tt == 0 else (vOA + hf, p*14336) for p in range(4) for hf in range(2)])
        for i in range(4): k(f'v_cvt_pk_bf16_f32 v{80+4*tt+i}, v{SUM+8*tt+2*i}, v{SUM+8*tt+2*i+1}')
        k.vmem(f'buffer_store_dwordx4 {v(80+4*tt,4)}, v{vOUT}, {srd(SOUT)}, s{sMu if tt else sRes} offen {o.get("outfl", "sc1")}', 'out')

def finish(k, role):
    o = k.opt; L = f'L_end{role}'
    k(f'{L}:')
    if o.get('probe'):
        k.stamp(10)
        k('s_waitcnt lgkmcnt(0)')
        if o['probe'][2] == 'rt': k('s_cmp_eq_u32 s98, 0\ns_cselect_b32 s98, s100, s98\ns_sub_u32 s98, s98, s100\ns_lshl_b32 s98, s98, 1')
        else: k('s_cmp_eq_u32 s98, 0\ns_cselect_b32 s98, s96, s98\ns_sub_u32 s98, s98, s96\ns_lshr_b32 s98, s98, 3')
        if o.get('probex') is not None: k(f's_getreg_b32 s3, hwreg(HW_REG_XCC_ID)\ns_and_b32 s3, s3, 7\ns_cmp_eq_u32 s3, {o["probex"]}\ns_cselect_b32 s98, s98, -3000')
        k(f's_add_u32 s98, s98, 3000\n{L}f:\ns_memrealtime s[{sC}:{sC+1}]\ns_waitcnt lgkmcnt(0)\ns_sub_u32 s3, s{sC}, s100\ns_cmp_lt_u32 s3, s98\ns_cbranch_scc1 {L}f')
    if o.get('stamps'):
        k(f'{"s_memrealtime" if o.get("rt") else "s_memtime"} s[{sA}:{sA+1}]\ns_memrealtime s[{sC}:{sC+1}]\ns_waitcnt lgkmcnt(0)')
        k(f's_lshl_b32 s3, s2, 3\ns_add_u32 s3, s3, s{sWave}\ns_add_u32 s3, s3, {0 if role == "S" else 4}\ns_lshl_b32 s3, s3, 6\ns_add_u32 s3, s3, {WS_STAMP}\nv_mov_b32 v40, s3\ns_mov_b64 exec, 1')
        k(f'v_mov_b32 v24, s100\nv_mov_b32 v25, s{sC}')
        for i in range(1, 10): k(f's_sub_u32 s3, s{STAMP0+2*i}, s{STAMP0}\nv_mov_b32 v{25+i}, s3')
        k(f's_sub_u32 s3, s{sA}, s{STAMP0}\nv_mov_b32 v35, s3')
        for q in range(3): k(f'buffer_store_dwordx4 {v(24+4*q,4)}, v40, {srd(SW)}, 0 offen offset:{16*q}')
    k('s_endpgm')
    for t in k.tail: k(t)
    k.tail = []

def ffn3(k, hold, plain=0):
    k(f's_lshl_b32 s{sC}, s{sKap}, 11\ns_add_u32 s{sC}, s{sC}, s{sHo}\ns_add_u32 s{sC2}, s{sC}, 4096')
    q = []
    for u in range(6):
        c, tt = u % 3, u // 3
        if u == 3:
            for x in gelu_consts(1): k.f(x)
        ffn_unit(k, c, tt, (plain >> u) & 1); q.append((c, tt))
        if u + 1 >= hold:
            for c_, t_ in q: h_store(k, c_, t_, sC2 if c_ == 2 else sC, (c_ & 1)*2048 + t_*1024)
            q = []

def drain_post(k, tag, sreg):
    k.wait(tag)
    post(k, sreg)

def p_release(k):
    k.wait('d6')
    for p in (3, 4, 5, 6): k.emit_all(preads('P', p))
    k.timed.append((k.t + 120, lambda: sync_post(k, 4), 'rel'))

def s_issue(k, ps):
    for p in ps:
        for g in pbatch('S', p): k.emit_all(g)
def s_collect(k):
    k.wait('d6')
    for p in range(1, 7): k.emit_all(preads('S', p))
    sync_post(k, 5)

def path_P(k):
    o = k.opt
    k.reset_bg(); k('L_KVA:'); main_loop(k, 'KV', 'A')
    k(f's_setprio {o.get("prioKA", 1)}\ns_nop 4')
    k.timed.append((k.t + o.get('relK', 600), lambda: p_release(k), 'rel'))
    kv_part(k)
    assert not k.timed
    k('s_setprio 0')
    open_stream(k, 'P', 'kvst', sF2, False)
    k.reset_bg(); k('L_QF:'); main_loop(k, 'Q', 'F')
    k(f's_setprio {o.get("prioQF", 1)}\ns_nop 4')
    k.timed.append((k.t + o.get('relQ', 100), lambda: p_release(k), 'rel'))
    ffn3(k, o.get('holdQ', 0), o.get('plainQ', 0))
    assert not k.timed
    k.stamp(4)
    k('s_setprio 0')
    drain_post(k, 'hst', sFh)
    k(f's_cmp_eq_u32 s{sNb}, 7\ns_cbranch_scc1 L_endP')
    stream(k, 'P')
    finish(k, 'P')

def path_S(k):
    o = k.opt
    k.reset_bg(); k('L_KVF:'); main_loop(k, 'KV', 'F')
    k(f's_setprio {o.get("prioKF", 0)}\ns_nop 4')
    def more():
        k.wait('d0'); k.emit_all(preads('S', 0))
        sync_wait(k, 4, 96)
        s_issue(k, (2, 3, 4, 5, 6))
        k.stamp(4, 3)
    k.timed.append((k.t + o.get('issK', 200), more, 'iss'))
    ffn3(k, o.get('holdK', 0), o.get('plainK', 0))
    assert not k.timed
    k.stamp(4); k.stamp(5, 3)
    k('s_setprio 0')
    s_collect(k)
    ob = obatch()
    nwo = o.get('kwo', 6)
    sync_wait(k, 1, 0)
    for g in ob[:nwo]: k.emit_all(g)
    drain_post(k, 'hst', sFh); k.stamp(6, 3)
    for g in ob[nwo:]: k.emit_all(g)
    k.stamp(7, 3)
    k('s_branch L_waitS')
    k.reset_bg(); k('L_QA:'); main_loop(k, 'Q', 'A')
    k(f's_setprio 1\ns_add_u32 s{sC}, s{sKap}, 3\ns_lshl_b32 s{sC}, s{sC}, 11\ns_add_u32 s{sC}, s{sC}, s{sHo}\ns_nop 3')
    ob = obatch(); n0 = o.get('qwo0', 4)
    for g in ob[:n0]: k.emit_all(g)
    for tt in range(2):
        if tt:
            for x in gelu_consts(1): k.f(x)
        ffn_unit(k, 1, tt, o.get('plainQA', 0))
    k('s_setprio 0')
    for tt in range(2): h_store(k, 1, tt, sC, tt*1024)
    n1 = o.get('qwo1', 8)
    for g in ob[n0:n1]: k.emit_all(g)
    k.wait('d0'); k.emit_all(preads('S', 0))
    sync_wait(k, 4, 96)
    nb4 = o.get('qpost', 0)
    s_issue(k, range(2, 2 + nb4))
    drain_post(k, 'hst', sFh)
    nq = o.get('qnow', 7)
    s_issue(k, range(2 + nb4, nq))
    gap = o.get('qgap', 0)
    for g in [g for p in range(nq, 7) for g in pbatch('S', p)] + ob[n1:]: k.bg.append((gap, g))
    if not gap: k.flush()
    k.stamp(4, 3)
    project(k, 64)
    k('s_nop 9')
    softmaxes(k, QF, plains=o.get('plainQS', 0))
    k.flush()
    s_collect(k)
    if o.get('prioQA', 1): k(f's_setprio {o.get("prioQA", 1)}')
    o_part(k)
    k('s_setprio 0')
    open_stream(k, 'S', 'ost', sF2, True)
    stream(k, 'S')
    finish(k, 'S')

def generate(opt):
    global CST
    CST = opt.get('cst', 128)
    k = K(opt); name = NAME + '_kernel'
    kernel_begin(k.A, name)
    prologue(k)
    path_P(k)
    path_S(k)
    k('L_codeend:')
    txt = k.A.text()
    if opt.get('align', 1):
        import align
        txt = align.align(txt)[0]
    return assemble_file([(name, 256, 512, NLDS)], txt, [kernel_desc(name, 256, accum=144)])

if __name__ == '__main__':
    import json, hazard
    opt = json.loads(sys.argv[2]) if len(sys.argv) > 2 else {}
    txt = generate(opt)
    open(sys.argv[1], 'w').write(txt)
    e = hazard.check(txt)
    print(len(txt), 'bytes of text;', len(e), 'hazards')
```
